```python
import torch

def _softmax(x, axis=-1):
    return torch.softmax(x, dim=axis)
def _gelu(x):
    return torch.nn.functional.gelu(x, approximate="tanh")
def _silu(x):
    return torch.nn.functional.silu(x)
def _sigmoid(x):
    return torch.sigmoid(x)
def _layernorm(x, axis=-1, eps=1e-5):
    m = x.mean(dim=axis, keepdim=True)
    v = x.var(dim=axis, keepdim=True, unbiased=False)
    return (x - m) / torch.sqrt(v + eps)
def _scatter_add(tgt, idx, src, axis=0):
    return tgt.clone().index_add_(axis, idx, src)
def _segment_sum(src, seg, n):
    out = torch.zeros((n,) + src.shape[1:], dtype=src.dtype)
    return out.index_add_(0, seg, src)
def _pad(x, pw):
    flat = tuple(v for pair in reversed(pw) for v in pair)
    return torch.nn.functional.pad(x, flat)

kernel_name = 'parallel_sum__ssm_conv_s4__dense_activation_relu__prompt'

def setup_inputs():

    _w = (lambda a: (lambda t: t.to(torch.bfloat16) if t.is_floating_point() else t)(torch.as_tensor(a)))
    def _A_setup():
        B, L, D, N = 1, 2048, 512, 128
        A_re = -(lambda _x: torch.exp(torch.as_tensor(_x)))((lambda *s: torch.randn(*s, dtype=torch.bfloat16) * 3.2)(D, N))
        A_im = torch.pi * (lambda *s: torch.randn(*s, dtype=torch.bfloat16) * 0.2)(D, N)
        B_re = (lambda *s: torch.randn(*s, dtype=torch.bfloat16) * 0.4)(D, N)
        B_im = (lambda *s: torch.randn(*s, dtype=torch.bfloat16) * 0.4)(D, N)
        C_re = (lambda *s: torch.randn(*s, dtype=torch.bfloat16) * 0.4)(D, N)
        C_im = (lambda *s: torch.randn(*s, dtype=torch.bfloat16) * 0.4)(D, N)
        log_dt = (lambda *s: torch.randn(*s, dtype=torch.bfloat16) * 0.2)(D) * 0.5 - 4.0
        Dskip = (lambda *s: torch.randn(*s, dtype=torch.bfloat16) * 0.4)(D)
        return {
            "u": _w((lambda *s: torch.randn(*s, dtype=torch.bfloat16) * 0.05)(B, L, D)),
            "A_re": _w(A_re),
            "A_im": _w(A_im),
            "B_re": _w(B_re),
            "B_im": _w(B_im),
            "C_re": _w(C_re),
            "C_im": _w(C_im),
            "log_dt": _w(log_dt),
            "Dskip": _w(Dskip),
        }
    _A_in = _A_setup()

    def _B_setup():
        B, S, D, Dff = 1, 2048, 512, 1792
        return {
            "x": _w((lambda *s: torch.randn(*s, dtype=torch.bfloat16) * 0.05)(B, S, D)),
            "w1": _w((lambda *s: torch.randn(*s, dtype=torch.bfloat16) * 0.05)(D, Dff)),
            "w2": _w((lambda *s: torch.randn(*s, dtype=torch.bfloat16) * 0.05)(Dff, D)),
        }
    _B_in = _B_setup()

    return {
        "A_u": _A_in["u"],
        "A_A_re": _A_in["A_re"],
        "A_A_im": _A_in["A_im"],
        "A_B_re": _A_in["B_re"],
        "A_B_im": _A_in["B_im"],
        "A_C_re": _A_in["C_re"],
        "A_C_im": _A_in["C_im"],
        "A_log_dt": _A_in["log_dt"],
        "A_Dskip": _A_in["Dskip"],
        "B_x": _B_in["x"],
        "B_w1": _B_in["w1"],
        "B_w2": _B_in["w2"],
    }

def reference(A_u, A_A_re, A_A_im, A_B_re, A_B_im, A_C_re, A_C_im, A_log_dt, A_Dskip, B_x, B_w1, B_w2):
    def _A_ref(u, A_re, A_im, B_re, B_im, C_re, C_im, log_dt, Dskip):
        Bsz, L, D = u.shape
        dt = torch.exp(log_dt)[:, None]
        A = A_re + 1j * A_im
        Bc = B_re + 1j * B_im
        Cc = C_re + 1j * C_im
        logdA = dt * A
        dB = dt * Bc
        l = (lambda x, dt: x.to(dt))(torch.arange(L), A_re.dtype)
        P = torch.exp(logdA[:, :, None] * l[None, None, :])
        K = torch.einsum("dn,dnl,dn->dl", Cc, P, dB).real
        L2 = 2 * L
        Kp = _pad(K, ((0, 0), (0, L)))
        up = (lambda x, *d: x.permute(*d))(u, 0, 2, 1)
        up = _pad(up, ((0, 0), (0, 0), (0, L)))
        Kf = (lambda x, axes=(-2,-1): torch.fft.rfft2(x.float(), dim=axes))(Kp[:, None, :], axes=(-2, -1))
        Uf = (lambda x, axes=(-2,-1): torch.fft.rfft2(x.float(), dim=axes))(up[:, :, None, :], axes=(-2, -1))
        Yf = Uf * Kf[None, :, :, :]
        y = (lambda x, s, axes=(-2,-1): torch.fft.irfft2(x, s=s, dim=axes).to(torch.bfloat16))(Yf, (1, L2), axes=(-2, -1))[:, :, 0, :L]
        y = (lambda x, *d: x.permute(*d))(y, 0, 2, 1) + u * Dskip[None, None, :]
        return y

    def _B_ref(x, w1, w2):
        h = torch.einsum("bsd,df->bsf", x, w1)
        zero = torch.zeros_like(h)
        h = torch.maximum(h, zero)
        return torch.einsum("bsf,fd->bsd", h, w2)

    x = A_u
    xn = _layernorm(x, axis=-1)
    return x + _A_ref(xn, A_A_re, A_A_im, A_B_re, A_B_im, A_C_re, A_C_im, A_log_dt, A_Dskip) + _B_ref(xn, B_w1, B_w2)
```

```python
import re
class Asm:
    def __init__(self):
        self.lines = []
        self.nlabel = 0
    def __call__(self, s):
        for ln in s.strip("\n").split("\n"):
            ln = ln.strip()
            if ln: self.lines.append(ln)
    def c(self, s): self.lines.append("; " + s)
    def label(self, name): self.lines.append(name + ":")
    def newlabel(self, base):
        self.nlabel += 1
        return "L_%s_%d" % (base, self.nlabel)
    def text(self):
        out = []
        for l in self.lines:
            if l.endswith(":") and not l.startswith(";"): out.append(l)
            else: out.append("    " + l)
        return "\n".join(out) + "\n"

def vr(a, n=1):
    return "v%d" % a if n == 1 else "v[%d:%d]" % (a, a + n - 1)
def sr(a, n=1):
    return "s%d" % a if n == 1 else "s[%d:%d]" % (a, a + n - 1)

_reg = re.compile(r"^-?\|?(?:abs\()?([vsa])(?:\[(\d+):(\d+)\]|(\d+))\)?\|?$")
def regs(op):
    op = op.strip()
    if op in ("vcc",): return {("s", "vcc")}
    if op == "m0": return {("s", "m0")}
    if op == "exec": return {("s", "exec")}
    m = _reg.match(op)
    if not m: return set()
    if m.group(2) is not None: return {(m.group(1), i) for i in range(int(m.group(2)), int(m.group(3)) + 1)}
    return {(m.group(1), int(m.group(4)))}
TRANS = ("v_exp_f32", "v_log_f32", "v_rcp_f32", "v_rsq_f32", "v_sqrt_f32", "v_sin_f32", "v_cos_f32")
def parse(line):
    line = line.split(";")[0].strip()
    if not line or line.endswith(":") or line.startswith("."): return None
    parts = line.split(None, 1)
    op = parts[0]
    args = []
    if len(parts) > 1:
        args = [a.strip() for a in parts[1].split(",")]
        last = args[-1].split()
        if "[" in args[-1] and args[-1].count("[") > 1 and False: pass
        args = args[:-1] + ([last[0]] if last else [])
    args = [a for a in args if regs(a) or True]
    dst, src = set(), set()
    R = [regs(a.split()[0]) if a else set() for a in args]
    if op.startswith("buffer_store") or op.startswith("global_store") or op.startswith("ds_write"):
        for r in R: src |= r
    elif op.startswith("buffer_load") and " lds" in line:
        for r in R: src |= r
        src |= {("s", "m0")}
    elif op.startswith("v_cmp"):
        dst = R[0]
        for r in R[1:]: src |= r
    elif op.startswith("v_permlane") and "swap" in op:
        dst = R[0] | R[1]; src = R[0] | R[1]
    elif op.startswith("s_cmp") or op.startswith("s_cbranch") or op.startswith("s_waitcnt") or op in ("s_nop", "s_barrier", "s_branch", "s_endpgm", "s_setprio", "s_sleep"):
        for r in R: src |= r
    else:
        if R: dst = R[0]
        for r in R[1:]: src |= r
        if op.startswith("v_fmac") or op.startswith("v_mac") or "d16" in op or op.startswith("v_writelane"): src |= R[0]
        if op.startswith("v_cndmask") and len(args) == 3: src |= {("s", "vcc")}
    kind = "salu"
    if op.startswith("v_mfma"): kind = "mfma"
    elif op.startswith("v_"): kind = "valu"
    elif op.startswith("ds_"): kind = "ds"
    elif op.startswith("buffer_") or op.startswith("global_"): kind = "vmem"
    elif op.startswith("s_load") or op.startswith("s_mem"): kind = "smem"
    ws = 1
    if op == "s_nop": ws = int(args[0], 0) + 1
    srcC = R[3] if kind == "mfma" else set()
    srcAB = (R[1] | R[2]) if kind == "mfma" else set()
    return dict(op=op, kind=kind, dst=dst, src=src, ws=ws, line=line, srcC=srcC, srcAB=srcAB, dpp=("_dpp" in op or "row_" in line or "quad_perm" in line))

def check_hazards(lines, verbose=True):
    ins = [p for p in (parse(l) for l in lines) if p]
    probs = []
    for i, b in enumerate(ins):
        dist = 0
        for j in range(i - 1, max(-1, i - 24), -1):
            a = ins[j]
            need = 0
            vd = {r for r in a["dst"] if r[0] in "va"}
            sd = {r for r in a["dst"] if r[0] == "s"}
            if a["kind"] == "valu":
                if b["kind"] == "mfma" and vd & b["src"]: need = max(need, 2)
                if b["kind"] == "valu" and b["dpp"] and vd & b["src"]: need = max(need, 2)
                if b["op"].startswith("v_permlane") and vd & b["src"]: need = max(need, 2)
                if (b["op"].startswith("v_readlane") or b["op"].startswith("v_readfirstlane")) and vd & b["src"]: need = max(need, 1)
                if a["op"].replace("_e32", "").replace("_e64", "") in TRANS and b["kind"] == "valu" and b["op"].replace("_e32", "").replace("_e64","") not in TRANS and vd & b["src"]: need = max(need, 1)
                if sd & b["src"]:
                    if b["kind"] == "vmem": need = max(need, 5)
                    elif b["kind"] == "valu": need = max(need, 2)
                    elif b["kind"] in ("salu", "smem"): need = max(need, 1)
            if a["kind"] == "mfma":
                p8 = "32x32x16" in a["op"]
                if b["kind"] == "mfma":
                    if vd & b["srcAB"]: need = max(need, 12 if p8 else 8)
                    if vd & b["srcC"] and not (a["dst"] == b["srcC"] and a["op"] == b["op"]): need = max(need, 10 if p8 else 6)
                    if vd & b["dst"] and not (a["dst"] == b["dst"]): need = max(need, 10 if p8 else 6)
                elif b["kind"] in ("valu", "ds", "vmem"):
                    if vd & (b["src"] | b["dst"]): need = max(need, 12 if p8 else 8)
                    if b["kind"] == "valu" and a["srcC"] & b["dst"]: need = max(need, 7 if p8 else 3)
            if a["kind"] == "salu" and ("s", "m0") in sd and b["kind"] == "vmem" and " lds" in b["line"]: need = max(need, 1)
            if a["kind"] == "vmem" and ("store_dwordx4" in a["op"] or "store_dwordx3" in a["op"]) and b["kind"] == "valu":
                data = regs(a["line"].split(None, 1)[1].split(",")[0]) if a["op"].startswith("buffer") else regs(a["line"].split(None, 1)[1].split(",")[1])
                if data & b["dst"]: need = max(need, 2)
            if need > dist:
                probs.append("need %d have %d: [%s] -> [%s]" % (need, dist, a["line"], b["line"]))
            dist += a["ws"]
            if dist >= 20: break
    if verbose:
        for p in probs: print("HAZARD", p)
    return probs
```

```python
import sys
from asmlib import *

NAME = "parallel_sum__ssm_conv_s4__dense_activation_relu__prompt_kernel"
WS_H, WS_XT, WS_YT = 0, 0x700000, 0x900000
WS_ST, WS_CS = 0xB00000, 0xB02000
WS_FA, WS_FC, WS_FH, WS_FY, WS_TS = 0xB04000, 0xB04400, 0xB04800, 0xB06000, 0xB08000
WS_SIZE = 0xB10000
SLOT = 32768
FREE = 4 * SLOT
L_U = FREE
L_K = FREE + 9216
L_XTS = FREE
L_YS = FREE
L_CSX = FREE + 16384
LDS_BYTES = 163840
SRD_X, SRD_W1, SRD_W2, SRD_OUT, SRD_WS, SRD_DBG = 36, 40, 44, 48, 52, 56
sWAVE, sMT, sSL, sP, sC, sNONCE, sMB, sDB = 60, 61, 62, 63, 64, 65, 66, 67
sSOX, sSOW, sLDT, sDSK, sSPARE, sT0, sT1, sT2, sT3, sCNT = 68, 69, 70, 71, 72, 73, 74, 75, 76, 77
sW2O, sHO = 78, 79
sTS = 80
sM0, sM1 = 100, 101
vTID, vLANE = 0, 1
vT = 2
vPAR = 10
vDX, vDW = 16, 20
vAX, vAW = 24, 32
vD2, vA2 = 36, 40
vNON, vFL = 44, 45
vFLQ = 46
vUS = 50
vACC = 64
vFR = 128
vCS, vMEAN = 160, 192
vUL = 196

class Gen:
    def __init__(self, diag=False, stop_after=None, opt=None):
        self.a = Asm(); self.diag = diag; self.stop = stop_after
        self.vm = []
        self.ds = []
        self.nts = 0
        self.seen = set()
        self.o = dict(poll_c=4, rot=2)
        if opt: self.o.update(opt)
    def vmem(self, s, tag="x"):
        self.a(s); self.vm.append(tag); self.seen.add(tag)
    def dsop(self, s, tag="x"):
        self.a(s); self.ds.append(tag); self.seen.add(tag)
    def _n(self, lst, tag):
        idx = [i for i, t in enumerate(lst) if t == tag]
        assert idx, tag
        return len(lst) - 1 - idx[-1]
    def wait_vm(self, tag=None):
        if tag is not None:
            assert tag in self.seen, tag
            if tag not in self.vm: return
        n = 0 if tag is None else self._n(self.vm, tag)
        assert n <= 63, (tag, n)
        self.a("s_waitcnt vmcnt(%d)" % n)
        self.vm = self.vm[len(self.vm) - n:] if n else []
    def wait_ds(self, tag=None):
        if tag is not None:
            assert tag in self.seen, tag
            if tag not in self.ds: return
        n = 0 if tag is None else self._n(self.ds, tag)
        n = min(n, 15)
        self.a("s_waitcnt lgkmcnt(%d)" % n)
        self.ds = self.ds[len(self.ds) - n:] if n else []
    def ts(self):
        if not self.diag: return
        assert self.nts < 20
        self.a("s_memtime s[%d:%d]" % (sM0, sM1)); self.a("s_waitcnt lgkmcnt(0)"); self.ds = []
        self.a("s_mov_b32 s%d, s%d" % (sTS + self.nts, sM0)); self.nts += 1
    def srd(self, r, p, size):
        self.a("s_mov_b32 s%d, s%d\ns_mov_b32 s%d, s%d\ns_mov_b32 s%d, 0x%x\ns_mov_b32 s%d, 0x20000" % (r, p, r + 1, p + 1, r + 2, size, r + 3))
    def poll(self, load, regs, first_issued_tag=None):
        a = self.a
        Lr, Ld = a.newlabel("retry"), a.newlabel("ok")
        a("s_mov_b32 s%d, 0" % sCNT)
        if first_issued_tag is None:
            load(); self.wait_vm("poll")
        else:
            self.wait_vm(first_issued_tag)
        a.label(Lr)
        a("v_cmp_ne_u32 vcc, s%d, v%d" % (sNONCE, regs[0]))
        for r in regs[1:]:
            a("v_cmp_ne_u32 s[%d:%d], s%d, v%d" % (sM0, sM1, sNONCE, r))
            a("s_nop 1")
            a("s_or_b64 vcc, vcc, s[%d:%d]" % (sM0, sM1))
        a("s_nop 1")
        a("s_cmp_eq_u64 vcc, 0")
        a("s_cbranch_scc1 %s" % Ld)
        a("s_add_u32 s%d, s%d, 1" % (sCNT, sCNT))
        a("s_cmp_ge_u32 s%d, 20000" % sCNT)
        a("s_cbranch_scc1 %s" % Ld)
        save = list(self.vm)
        load()
        self.vm = save
        a("s_waitcnt vmcnt(0)")
        a("s_branch %s" % Lr)
        a.label(Ld)
    def get_nonce(self, tag):
        a = self.a
        Lr, Ld = a.newlabel("nretry"), a.newlabel("nok")
        a("s_mov_b32 s%d, 0" % sCNT)
        self.wait_vm(tag)
        a.label(Lr)
        a("v_readfirstlane_b32 s%d, v%d" % (sNONCE, vNON))
        a("s_nop 1")
        a("s_cmp_lg_u32 s%d, 0" % sNONCE)
        a("s_cbranch_scc1 %s" % Ld)
        a("s_add_u32 s%d, s%d, 1" % (sCNT, sCNT))
        a("s_cmp_ge_u32 s%d, 20000" % sCNT)
        a("s_cbranch_scc1 %s" % Ld)
        a("buffer_load_dword v%d, off, s[%d:%d], 0 sc1" % (vNON, SRD_DBG, SRD_DBG + 3))
        a("s_waitcnt vmcnt(0)")
        a("s_branch %s" % Lr)
        a.label(Ld)
    def publish(self, soff_reg, tmpv):
        a = self.a
        a("v_mov_b32 v%d, s%d" % (tmpv, sNONCE))
        a("s_mov_b64 exec, 1")
        self.vmem("buffer_store_dword v%d, off, s[%d:%d], s%d sc1" % (tmpv, SRD_WS, SRD_WS + 3, soff_reg), "flag")
        a("s_mov_b64 exec, -1")

    def setup(self):
        a = self.a
        a("s_cmp_ge_u32 s2, 256\ns_cbranch_scc1 L_END")
        if self.diag:
            a("s_memrealtime s[%d:%d]" % (sM0, sM1)); a("s_waitcnt lgkmcnt(0)"); a("s_mov_b32 s99, s%d" % sM0)
            self.ts()
        a("""s_load_dwordx16 s[4:19], s[0:1], 0
             s_load_dwordx8 s[20:27], s[0:1], 64
             s_load_dwordx4 s[28:31], s[0:1], 96
             s_load_dwordx2 s[32:33], s[0:1], 112
             v_and_b32 v1, 63, v0
             v_lshrrev_b32 v2, 6, v0
             s_and_b32 s%d, s2, 7""" % sT0)
        a("v_readfirstlane_b32 s%d, v2" % sWAVE)
        a("s_lshr_b32 s%d, s2, 3" % sT1)
        a("s_lshr_b32 s%d, s%d, 3" % (sT2, sT1))
        a("s_and_b32 s%d, s%d, 7" % (sDB, sT1))
        a("s_lshl_b32 s%d, s%d, 2" % (sMB, sT0))
        a("s_add_u32 s%d, s%d, s%d" % (sMB, sMB, sT2))
        a("s_lshr_b32 s%d, s%d, 1" % (sMT, sT0))
        a("s_lshl_b32 s%d, s%d, 2" % (sMT, sMT))
        a("s_add_u32 s%d, s%d, s%d" % (sMT, sMT, sT2))
        a("s_and_b32 s%d, s%d, 1" % (sT0, sT0))
        a("s_mul_i32 s%d, s%d, 7" % (sSL, sT0))
        a("s_add_u32 s%d, s%d, s%d" % (sSL, sSL, sDB))
        a("s_lshl_b32 s%d, s%d, 3" % (sP, sT0))
        a("s_add_u32 s%d, s%d, s%d" % (sP, sP, sDB))
        a("s_mul_i32 s%d, s%d, %d" % (sT3, sMT, self.o["rot"]))
        a("s_add_u32 s%d, s%d, s%d" % (sP, sP, sT3))
        a("s_and_b32 s%d, s%d, 15" % (sP, sP))
        a("s_lshr_b32 s%d, s%d, 1" % (sC, sP))
        a("s_lshl_b32 s%d, s%d, 1" % (sSPARE, sMT))
        a("s_add_u32 s%d, s%d, s%d" % (sSPARE, sSPARE, sT0))
        t = vT
        a("v_lshrrev_b32 v%d, 3, v1" % t)
        a("v_lshrrev_b32 v%d, 4, v1" % (t + 1))
        a("v_and_b32 v%d, 7, v1" % (t + 2))
        a("s_lshl_b32 s%d, s%d, 15" % (sT0, sWAVE))
        a("v_lshl_add_u32 v%d, v%d, 10, s%d" % (t + 3, t, sT0))
        a("v_xor_b32 v%d, v%d, v%d" % (t + 4, t + 2, t + 1))
        a("v_xor_b32 v%d, 4, v%d" % (t + 5, t + 4))
        a("v_lshl_add_u32 v%d, v%d, 4, v%d" % (vDX, t + 4, t + 3))
        a("v_lshl_add_u32 v%d, v%d, 4, v%d" % (vDX + 1, t + 5, t + 3))
        a("v_add_u32 v%d, %d, v%d" % (vDX + 2, 2 * 7168, vDX))
        a("v_add_u32 v%d, %d, v%d" % (vDX + 3, 3 * 7168, vDX + 1))
        a("v_add_u32 v%d, %d, v%d" % (vDX + 1, 7168, vDX + 1))
        a("s_lshl_b32 s%d, s%d, 4" % (sT0, sWAVE))
        a("v_add_u32 v%d, s%d, v%d" % (t + 3, sT0, t + 1))
        a("v_mul_u32_u24 v%d, 3584, v%d" % (t + 3, t + 3))
        a("v_and_b32 v%d, 15, v1" % (t + 4))
        a("v_lshlrev_b32 v%d, 2, v%d" % (t + 5, t + 1))
        a("v_xor_b32 v%d, v%d, v%d" % (t + 4, t + 4, t + 5))
        a("v_lshl_add_u32 v%d, v%d, 4, v%d" % (vDW, t + 4, t + 3))
        for i in range(1, 4): a("v_add_u32 v%d, %d, v%d" % (vDW + i, i * (14336 - 1024), vDW))
        a("s_lshl_b32 s%d, s%d, 4" % (sT0, sMT))
        a("s_add_u32 s%d, s%d, s%d" % (sT0, sT0, sP))
        a("s_lshl_b32 s%d, s%d, 2" % (sT0, sT0))
        a("s_add_u32 s%d, s%d, s%d" % (sT0, sT0, sWAVE))
        a("s_lshl_b32 s%d, s%d, 11" % (sT1, sT0))
        a("s_lshl_b32 s%d, s%d, 3" % (sT2, sT0))
        a("s_add_u32 s%d, s%d, 0x%x" % (sT2, sT2, WS_ST))
        a("v_lshlrev_b32 v%d, 4, v1" % (t + 6))
        a("s_lshl_b32 s%d, s%d, 17" % (sSOX, sMT))
        a("s_lshl_b32 s%d, s%d, 8" % (sSOW, sSL))
        for k in range(6): a("v_mov_b32 v%d, 0" % (vPAR + k))
        a("s_lshl_b32 s%d, s2, 9" % sT0)
        a("v_lshl_add_u32 v%d, v0, 1, s%d" % (t + 7, sT0))
        a("s_waitcnt lgkmcnt(0)")
        self.srd(SRD_X, 4, 2097152)
        self.vmem("buffer_load_dwordx4 v[%d:%d], v%d, s[%d:%d], s%d offen" % (vFR, vFR + 3, t + 6, SRD_X, SRD_X + 3, sT1), "st")
        self.vmem("buffer_load_dwordx4 v[%d:%d], v%d, s[%d:%d], s%d offen offset:1024" % (vFR + 4, vFR + 7, t + 6, SRD_X, SRD_X + 3, sT1), "st")
        self.srd(SRD_W1, 24, 1835008)
        self.srd(SRD_WS, 32, WS_SIZE)
        self.srd(SRD_DBG, 30, 256)
        self.srd(SRD_W2, 26, 1835008)
        self.srd(SRD_OUT, 28, 2097152)
        a("s_lshl_b32 s%d, s2, 2" % sT0)
        a("s_load_dword s%d, s[18:19], s%d" % (sLDT, sT0))
        a("s_load_dword s%d, s[20:21], s%d" % (sDSK, sT0))
        L = a.newlabel("nononce")
        a("s_or_b32 s%d, s2, s%d" % (sT0, sWAVE))
        a("s_cmp_lg_u32 s%d, 0" % sT0)
        a("s_cbranch_scc1 %s" % L)
        a("s_memrealtime s[%d:%d]" % (sM0, sM1))
        a("s_waitcnt lgkmcnt(0)")
        a("s_or_b32 s%d, s%d, 1" % (sT0, sM0))
        a("v_mov_b32 v%d, s%d" % (vNON, sT0))
        a("s_mov_b64 exec, 1")
        a("buffer_store_dword v%d, off, s[%d:%d], 0 sc1" % (vNON, SRD_DBG, SRD_DBG + 3))
        a("s_mov_b64 exec, -1")
        a.label(L)
    def params_load(self):
        for k in range(6):
            self.vmem("global_load_short_d16_hi v%d, v%d, s[%d:%d]" % (vPAR + k, vT + 7, 6 + 2 * k, 7 + 2 * k), "par")
    def chunk_soffsets(self):
        a = self.a
        a("s_lshl_b32 s%d, s%d, 7" % (sT0, sC))
        a("s_add_u32 s%d, s%d, s%d" % (sT0, sT0, sSOX))
        a("s_mul_i32 s%d, s%d, %d" % (sT1, sC, 64 * 3584))
        a("s_add_u32 s%d, s%d, s%d" % (sT1, sT1, sSOW))
        a("s_add_u32 s%d, s%d, 1" % (sC, sC))
        a("s_and_b32 s%d, s%d, 7" % (sC, sC))
    def g1_dma_ops(self, slot, tag, xonly=False):
        ops = []
        def mk(kind, i):
            def f():
                a = self.a
                if i == 0:
                    a("s_lshl_b32 s%d, s%d, 12" % (sT3, sWAVE))
                    a("s_add_u32 m0, s%d, %d" % (sT3, slot * SLOT + (16384 if kind else 0)))
                    a("s_nop 0")
                if kind == 0:
                    self.vmem("buffer_load_dwordx4 v%d, s[%d:%d], s%d offen offset:%d lds" % (vDX + i, SRD_X, SRD_X + 3, sT0, 1024 * i), tag)
                else:
                    self.vmem("buffer_load_dwordx4 v%d, s[%d:%d], s%d offen offset:%d lds" % (vDW + i, SRD_W1, SRD_W1 + 3, sT1, 1024 * i), tag)
            return f
        for kind in ((0,) if xonly else (0, 1)):
            for i in range(4): ops.append(mk(kind, i))
        return ops
    def w2_dma_ops(self, ks0, nks=4):
        ops = []
        def mk(ks, j):
            def f():
                a = self.a
                if j == 0:
                    a("s_lshl_b32 s%d, s%d, 13" % (sT3, sWAVE))
                    a("s_add_u32 m0, s%d, %d" % (sT3, ((ks >> 2) & 3) * SLOT + (ks & 3) * 2048))
                    a("s_add_u32 s%d, s%d, %d" % (sT2, sW2O, ks * 16384))
                self.vmem("buffer_load_dwordx4 v%d, s[%d:%d], s%d offen offset:%d lds" % (vD2 + j, SRD_W2, SRD_W2 + 3, sT2, 1024 * j), "w2_%d" % (ks + (j >> 1)))
            return f
        for ks in range(ks0, ks0 + nks, 2):
            for j in range(4): ops.append(mk(ks, j))
        return ops

    def allreduce2(self, r0, r1, t0, t1):
        a = self.a
        for sh in (8, 4, 2, 1):
            a("s_nop 0")
            a("v_add_f32_dpp v%d, v%d, v%d row_ror:%d row_mask:0xf bank_mask:0xf" % (r0, r0, r0, sh))
            a("v_add_f32_dpp v%d, v%d, v%d row_ror:%d row_mask:0xf bank_mask:0xf" % (r1, r1, r1, sh))
        for op in ("v_permlane16_swap_b32", "v_permlane32_swap_b32"):
            a("v_mov_b32 v%d, v%d\nv_mov_b32 v%d, v%d\ns_nop 0" % (t0, r0, t1, r1))
            a("%s v%d, v%d" % (op, r0, t0))
            a("%s v%d, v%d" % (op, r1, t1))
            a("v_add_f32 v%d, v%d, v%d\nv_add_f32 v%d, v%d, v%d" % (r0, r0, t0, r1, r1, t1))
    def stats(self):
        a = self.a
        a.c("---- row statistics")
        U = vFR + 8
        s0, s1, t0, t1 = vT, vT + 1, vT + 2, vT + 3
        a("s_waitcnt lgkmcnt(0)")
        self.wait_vm("st")
        for r in range(2):
            for k in range(4):
                a("v_lshlrev_b32 v%d, 16, v%d" % (U + 8 * r + 2 * k, vFR + 4 * r + k))
                a("v_and_b32 v%d, 0xffff0000, v%d" % (U + 8 * r + 2 * k + 1, vFR + 4 * r + k))
        for r, s in ((0, s0), (1, s1)):
            a("v_add_f32 v%d, v%d, v%d" % (s, U + 8 * r, U + 8 * r + 1))
        for k in range(2, 8):
            for r, s in ((0, s0), (1, s1)):
                a("v_add_f32 v%d, v%d, v%d" % (s, s, U + 8 * r + k))
        a("s_nop 0")
        self.allreduce2(s0, s1, t0, t1)
        m0, m1 = vT + 4, vT + 5
        a("v_mul_f32 v%d, 0x3b000000, v%d\nv_mul_f32 v%d, 0x3b000000, v%d" % (m0, s0, m1, s1))
        for k in range(8):
            a("v_sub_f32 v%d, v%d, v%d" % (U + k, U + k, m0))
            a("v_sub_f32 v%d, v%d, v%d" % (U + 8 + k, U + 8 + k, m1))
        a("v_mul_f32 v%d, v%d, v%d\nv_mul_f32 v%d, v%d, v%d" % (s0, U, U, s1, U + 8, U + 8))
        for k in range(1, 8):
            a("v_fmac_f32 v%d, v%d, v%d\nv_fmac_f32 v%d, v%d, v%d" % (s0, U + k, U + k, s1, U + 8 + k, U + 8 + k))
        a("s_nop 0")
        self.allreduce2(s0, s1, t0, t1)
        a("v_mul_f32 v%d, 0x3b000000, v%d\nv_mul_f32 v%d, 0x3b000000, v%d" % (s0, s0, s1, s1))
        a("v_cvt_pk_bf16_f32 v%d, v%d, v%d" % (t0, s0, s1))
        a("v_lshlrev_b32 v%d, 16, v%d\nv_and_b32 v%d, 0xffff0000, v%d" % (s0, t0, s1, t0))
        a("v_add_f32 v%d, 0x3727c5ac, v%d\nv_add_f32 v%d, 0x3727c5ac, v%d" % (s0, s0, s1, s1))
        a("v_cvt_pk_bf16_f32 v%d, v%d, v%d" % (t0, s0, s1))
        a("v_lshlrev_b32 v%d, 16, v%d\nv_and_b32 v%d, 0xffff0000, v%d" % (s0, t0, s1, t0))
        a("v_sqrt_f32 v%d, v%d\nv_sqrt_f32 v%d, v%d\ns_nop 0" % (s0, s0, s1, s1))
        a("v_cvt_pk_bf16_f32 v%d, v%d, v%d\nv_cvt_pk_bf16_f32 v%d, v%d, v%d" % (t0, m0, s0, t1, m1, s1))
        a("s_mov_b64 exec, 1")
        self.vmem("buffer_store_dwordx2 v[%d:%d], off, s[%d:%d], s%d sc1" % (t0, t1, SRD_WS, SRD_WS + 3, sT2), "pubA")
        a("s_mov_b64 exec, -1")

    def xt_part1(self):
        a = self.a
        a.c("---- x^T: transpose reads")
        t = vT
        D = vUL
        a("v_lshrrev_b32 v%d, 4, v1" % t)
        a("v_bfe_u32 v%d, v1, 2, 2" % (t + 1))
        a("v_and_b32 v%d, 3, v1" % (t + 2))
        a("v_lshl_add_u32 v%d, v%d, 3, v%d" % (t + 3, t, t + 1))
        a("v_bfe_u32 v%d, v%d, 1, 3" % (t + 4, t + 3))
        a("s_and_b32 s%d, s%d, 1" % (sT3, sP))
        a("s_lshl_b32 s%d, s%d, 2" % (sT3, sT3))
        a("v_lshrrev_b32 v%d, 1, v%d" % (t + 5, t + 2))
        a("v_add_u32 v%d, s%d, v%d" % (t + 5, sT3, t + 5))
        a("v_xor_b32 v%d, v%d, v%d" % (t + 5, t + 5, t + 4))
        a("v_lshlrev_b32 v%d, 4, v%d" % (t + 5, t + 5))
        a("v_lshl_add_u32 v%d, v%d, 7, v%d" % (t + 5, t + 3, t + 5))
        a("v_and_b32 v%d, 1, v%d" % (t + 2, t + 2))
        a("v_lshl_add_u32 v%d, v%d, 3, v%d" % (t + 5, t + 2, t + 5))
        a("s_lshl_b32 s%d, s%d, 12" % (sT3, sWAVE))
        a("v_add_u32 v%d, s%d, v%d" % (t + 5, sT3, t + 5))
        a("v_xor_b32 v%d, 32, v%d" % (t + 4, t + 5))
        self.dsop("ds_read_b64_tr_b16 v[%d:%d], v%d" % (D, D + 1, t + 5))
        self.dsop("ds_read_b64_tr_b16 v[%d:%d], v%d offset:512" % (D + 2, D + 3, t + 4))
        self.dsop("ds_read_b64_tr_b16 v[%d:%d], v%d" % (D + 4, D + 5, t + 4))
        self.dsop("ds_read_b64_tr_b16 v[%d:%d], v%d offset:512" % (D + 6, D + 7, t + 5), "xt")
        a("v_and_b32 v%d, 15, v1" % (t + 1))
        a("v_mul_u32_u24 v%d, 272, v%d" % (t + 1, t + 1))
        a("v_lshl_add_u32 v%d, v%d, 4, v%d" % (t + 1, t, t + 1))
        a("s_lshl_b32 s%d, s%d, 6" % (sT3, sWAVE))
        a("s_add_u32 s%d, s%d, %d" % (sT3, sT3, L_XTS))
        a("v_add_u32 v%d, s%d, v%d" % (t + 1, sT3, t + 1))
        self.wait_ds("xt")
        self.dsop("ds_write_b128 v%d, v[%d:%d]" % (t + 1, D, D + 3))
        self.dsop("ds_write_b128 v%d, v[%d:%d] offset:%d" % (t + 1, D + 4, D + 7, 16 * 272), "xtw")
    def xt_part2(self):
        a = self.a
        a.c("---- x^T: coalesced stores")
        t = vT
        D = vUL
        a("v_lshrrev_b32 v%d, 4, v1" % t)
        a("v_and_b32 v%d, 15, v1" % (t + 1))
        a("s_lshl_b32 s%d, s%d, 3" % (sT3, sWAVE))
        a("v_add_u32 v%d, s%d, v%d" % (t, sT3, t))
        a("v_mul_u32_u24 v%d, 272, v%d" % (t + 2, t))
        a("v_lshl_add_u32 v%d, v%d, 4, v%d" % (t + 2, t + 1, t + 2))
        a("v_add_u32 v%d, %d, v%d" % (t + 2, L_XTS, t + 2))
        self.dsop("ds_read_b128 v[%d:%d], v%d" % (D, D + 3, t + 2))
        self.dsop("ds_read_b128 v[%d:%d], v%d offset:%d" % (D + 4, D + 7, t + 2, 4 * 272), "xt2")
        a("v_lshlrev_b32 v%d, 12, v%d" % (t, t))
        a("v_lshl_add_u32 v%d, v%d, 4, v%d" % (t, t + 1, t))
        a("v_add_u32 v%d, 16384, v%d" % (t + 1, t))
        a("s_lshl_b32 s%d, s%d, 17" % (sT3, sP))
        a("s_lshl_b32 s%d, s%d, 8" % (sT2, sMT))
        a("s_add_u32 s%d, s%d, s%d" % (sT3, sT3, sT2))
        a("s_add_u32 s%d, s%d, 0x%x" % (sT2, sT3, WS_XT))
        self.wait_ds("xt2")
        self.vmem("buffer_store_dwordx4 v[%d:%d], v%d, s[%d:%d], s%d offen sc1" % (D, D + 3, t, SRD_WS, SRD_WS + 3, sT2), "pubA")
        self.vmem("buffer_store_dwordx4 v[%d:%d], v%d, s[%d:%d], s%d offen sc1" % (D + 4, D + 7, t + 1, SRD_WS, SRD_WS + 3, sT2), "pubA")
        self.vmem("buffer_load_dword v%d, off, s[%d:%d], 0 sc1" % (vNON, SRD_DBG, SRD_DBG + 3), "non")
    def publish_A(self):
        a = self.a
        L = a.newlabel("noA")
        a("s_cmp_lg_u32 s%d, 0" % sWAVE)
        a("s_cbranch_scc1 %s" % L)
        a("s_lshl_b32 s%d, s2, 2" % sT3)
        a("s_add_u32 s%d, s%d, 0x%x" % (sT3, sT3, WS_FA))
        save = list(self.vm)
        self.publish(sT3, vT)
        self.vm = save
        a.label(L)
    def load_flagsA(self, with_c):
        a = self.a
        a("v_lshlrev_b32 v%d, 4, v1" % vT)
        a("s_mov_b32 s%d, 0x%x" % (sT3, WS_FA))
        self.vmem("buffer_load_dwordx4 v[%d:%d], v%d, s[%d:%d], s%d offen sc1" % (vFLQ, vFLQ + 3, vT, SRD_WS, SRD_WS + 3, sT3), "poll")
        if with_c:
            a("s_lshl_b32 s%d, s%d, 3" % (sT3, sSL))
            a("s_add_u32 s%d, s%d, 0x%x" % (sT3, sT3, WS_FC))
            a("v_and_b32 v%d, 1, v1" % vT)
            a("v_lshlrev_b32 v%d, 2, v%d" % (vT, vT))
            self.vmem("buffer_load_dword v%d, v%d, s[%d:%d], s%d offen sc1" % (vFL, vT, SRD_WS, SRD_WS + 3, sT3), "poll")
    def load_u(self):
        a = self.a
        a("v_lshlrev_b32 v%d, 4, v0" % vT)
        a("v_lshlrev_b32 v%d, 5, v0" % (vT + 1))
        a("s_lshl_b32 s%d, s2, 13" % sT3)
        a("s_add_u32 s%d, s%d, 0x%x" % (sT3, sT3, WS_XT))
        a("s_add_u32 s%d, s%d, 4096" % (sT2, sT3))
        self.vmem("buffer_load_dwordx4 v[%d:%d], v%d, s[%d:%d], s%d offen sc1" % (vUL, vUL + 3, vT, SRD_WS, SRD_WS + 3, sT3), "u")
        self.vmem("buffer_load_dwordx4 v[%d:%d], v%d, s[%d:%d], s%d offen sc1" % (vUL + 4, vUL + 7, vT, SRD_WS, SRD_WS + 3, sT2), "u")
        a("s_mov_b32 s%d, 0x%x" % (sT3, WS_ST))
        self.vmem("buffer_load_dwordx4 v[%d:%d], v%d, s[%d:%d], s%d offen sc1" % (vUL + 8, vUL + 11, vT + 1, SRD_WS, SRD_WS + 3, sT3), "u")
        self.vmem("buffer_load_dwordx4 v[%d:%d], v%d, s[%d:%d], s%d offen offset:16 sc1" % (vUL + 12, vUL + 15, vT + 1, SRD_WS, SRD_WS + 3, sT3), "u")
    def w2_setup(self):
        a = self.a
        t = vT
        a("v_lshrrev_b32 v%d, 3, v1" % t)
        a("v_and_b32 v%d, 7, v1" % (t + 1))
        a("v_bfe_u32 v%d, v1, 4, 1" % (t + 2))
        a("v_lshlrev_b32 v%d, 2, v%d" % (t + 2, t + 2))
        a("v_xor_b32 v%d, v%d, v%d" % (t + 1, t + 1, t + 2))
        a("v_lshlrev_b32 v%d, 4, v%d" % (t + 1, t + 1))
        a("v_lshl_add_u32 v%d, v%d, 10, v%d" % (vD2, t, t + 1))
        for j in range(1, 4): a("v_add_u32 v%d, %d, v%d" % (vD2 + j, j * 7168, vD2))
        a("s_mul_i32 s%d, s%d, %d" % (sW2O, sWAVE, 448 * 1024))
        a("s_lshl_b32 s%d, s%d, 7" % (sT3, sDB))
        a("s_add_u32 s%d, s%d, s%d" % (sW2O, sW2O, sT3))
        a("v_bfe_u32 v%d, v1, 2, 2" % t)
        a("v_lshrrev_b32 v%d, 5, v1" % (t + 1))
        a("v_lshl_add_u32 v%d, v%d, 2, v%d" % (t + 1, t + 1, t))
        a("v_lshlrev_b32 v%d, 7, v%d" % (t + 1, t + 1))
        a("v_lshrrev_b32 v%d, 1, v%d" % (t, t))
        a("v_lshl_add_u32 v%d, v%d, 6, v%d" % (t + 1, t, t + 1))
        a("v_bfe_u32 v%d, v1, 4, 1" % t)
        a("v_lshl_add_u32 v%d, v%d, 5, v%d" % (t + 1, t, t + 1))
        a("v_and_b32 v%d, 3, v1" % t)
        a("v_lshl_add_u32 v%d, v%d, 3, v%d" % (t + 1, t, t + 1))
        a("s_lshl_b32 s%d, s%d, 13" % (sT3, sWAVE))
        a("v_add_u32 v%d, s%d, v%d" % (vA2, sT3, t + 1))
        a("v_xor_b32 v%d, 64, v%d" % (vA2 + 1, vA2))
        a("v_add_u32 v%d, 0x10000, v%d\nv_add_u32 v%d, 0x10000, v%d" % (vA2 + 2, vA2, vA2 + 3, vA2 + 1))

    def g1_addr(self):
        a = self.a
        t = vT
        a("v_and_b32 v%d, 31, v1" % t)
        a("v_lshrrev_b32 v%d, 5, v1" % (t + 1))
        a("v_bfe_u32 v%d, v1, 1, 3" % (t + 2))
        a("s_and_b32 s%d, s%d, 1" % (sT3, sWAVE))
        a("s_lshl_b32 s%d, s%d, 13" % (sT3, sT3))
        a("v_lshl_add_u32 v%d, v%d, 7, s%d" % (t + 3, t, sT3))
        for ks in range(4):
            a("v_add_u32 v%d, %d, v%d" % (t + 4, 2 * ks, t + 1))
            a("v_xor_b32 v%d, v%d, v%d" % (t + 4, t + 4, t + 2))
            a("v_lshl_add_u32 v%d, v%d, 4, v%d" % (vAX + ks, t + 4, t + 3))
            a("v_add_u32 v%d, 0x10000, v%d" % (vAX + 4 + ks, vAX + ks))
        a("v_bfe_u32 v%d, v1, 2, 2" % t)
        a("v_lshl_add_u32 v%d, v%d, 3, v%d" % (t + 3, t + 1, t))
        a("v_lshlrev_b32 v%d, 8, v%d" % (t + 3, t + 3))
        a("s_and_b32 s%d, s%d, 2" % (sT3, sWAVE))
        a("v_xor_b32 v%d, s%d, v%d" % (t, sT3, t))
        a("v_lshl_add_u32 v%d, v%d, 6, v%d" % (t + 3, t, t + 3))
        a("v_bfe_u32 v%d, v1, 4, 1" % t)
        a("v_lshl_add_u32 v%d, v%d, 5, v%d" % (t + 3, t, t + 3))
        a("v_and_b32 v%d, 3, v1" % t)
        a("v_lshl_add_u32 v%d, v%d, 3, v%d" % (t + 3, t, t + 3))
        a("v_add_u32 v%d, 16384, v%d" % (vAW, t + 3))
        a("v_xor_b32 v%d, 64, v%d" % (vAW + 1, vAW))
        a("v_add_u32 v%d, 0x10000, v%d\nv_add_u32 v%d, 0x10000, v%d" % (vAW + 2, vAW, vAW + 3, vAW + 1))
    def g1_reads(self, g):
        c, ks = g >> 2, g & 3
        slot = c & 3
        hi, so = slot >> 1, (slot & 1) * SLOT
        B = vFR + 16 * (g & 1)
        X0, X1, W0, W1 = B, B + 4, B + 8, B + 12
        ax = vAX + 4 * hi + ks
        aw = vAW + 2 * hi
        t = "g%d" % g
        return [
            ("ds_read_b128 v[%d:%d], v%d offset:%d" % (X0, X0 + 3, ax, so), t + "a"),
            ("ds_read_b64_tr_b16 v[%d:%d], v%d offset:%d" % (W0, W0 + 1, aw, so + ks * 4096), t + "a"),
            ("ds_read_b64_tr_b16 v[%d:%d], v%d offset:%d" % (W0 + 2, W0 + 3, aw, so + ks * 4096 + 1024), t + "a"),
            ("ds_read_b128 v[%d:%d], v%d offset:%d" % (X1, X1 + 3, ax, so + 4096), t + "b"),
            ("ds_read_b64_tr_b16 v[%d:%d], v%d offset:%d" % (W1, W1 + 1, aw + 1, so + ks * 4096), t + "c"),
            ("ds_read_b64_tr_b16 v[%d:%d], v%d offset:%d" % (W1 + 2, W1 + 3, aw + 1, so + ks * 4096 + 1024), t + "c"),
        ]
    def g1_mfma(self, g, i):
        B = vFR + 16 * (g & 1)
        ft, mt2 = i >> 1, i & 1
        D = vACC + 16 * (2 * ft + mt2)
        C = "0" if g == 0 else "v[%d:%d]" % (D, D + 15)
        self.a("v_mfma_f32_32x32x16_bf16 v[%d:%d], v[%d:%d], v[%d:%d], %s" % (D, D + 15, B + 8 + 4 * ft, B + 11 + 4 * ft, B + 4 * mt2, B + 3 + 4 * mt2, C))
    def gemm1(self):
        a = self.a
        pc = self.o["poll_c"]
        a.c("==== GEMM1")
        self.wait_vm("c0"); a("s_barrier")
        self.ts()
        for r, tg in self.g1_reads(0): self.dsop(r, tg)
        self.xt_part1()
        for c in range(8):
            pre = []
            if c <= 5:
                dma = self.g1_dma_ops((c + 2) & 3, "c%d" % (c + 2)); pre = [self.chunk_soffsets]
            else:
                dma = self.w2_dma_ops(4 * (c - 6))
            first = []
            if c == 1: first = [self.xt_part2]
            if c == 3: first = [lambda: self.get_nonce("non"), self.publish_A]
            last = []
            if c == pc: last = [lambda: self.load_flagsA(True)]
            if c == pc + 1:
                chk = [lambda: self.poll(lambda: self.load_flagsA(True), [vFLQ, vFLQ + 1, vFLQ + 2, vFLQ + 3, vFL], "poll"), self.g1_epi_loads, self.load_u]
                if c <= 5: last = chk
                else: first = chk
            if c == 2: last = last + [self.w2_setup]
            for f in first + pre: f()
            for ks in range(4):
                g = 4 * c + ks
                t = "g%d" % g
                nxt = self.g1_reads(g + 1) if g < 31 else []
                if ks == 3 and c < 7:
                    for f in last: f()
                    self.wait_ds()
                    self.wait_vm("c%d" % (c + 1)); a("s_barrier")
                    for i in range(4):
                        self.g1_mfma(g, i)
                        for r, tg in nxt[2 * i:2 * i + 2]: self.dsop(r, tg)
                else:
                    for i in range(4):
                        if i < 3: self.wait_ds(t + "abc"[i])
                        self.g1_mfma(g, i)
                        for r, tg in nxt[2 * i:2 * i + 2]: self.dsop(r, tg)
                        if ks < 3 and i < 3 and dma: dma.pop(0)()
            assert not dma
        self.ts()
    def g1_epi_loads(self):
        a = self.a
        t = vT
        a("v_and_b32 v%d, 31, v1" % t)
        a("v_lshlrev_b32 v%d, 2, v%d" % (t, t))
        a("s_lshl_b32 s%d, s%d, 1" % (sT3, sMT))
        a("s_and_b32 s%d, s%d, 1" % (sT2, sWAVE))
        a("s_add_u32 s%d, s%d, s%d" % (sT3, sT3, sT2))
        a("s_lshl_b32 s%d, s%d, 8" % (sT3, sT3))
        a("s_add_u32 s%d, s%d, 0x%x" % (sT3, sT3, WS_ST))
        self.vmem("buffer_load_dword v%d, v%d, s[%d:%d], s%d offen sc1" % (vMEAN, t, SRD_WS, SRD_WS + 3, sT3), "epi")
        self.vmem("buffer_load_dword v%d, v%d, s[%d:%d], s%d offen offset:128 sc1" % (vMEAN + 1, t, SRD_WS, SRD_WS + 3, sT3), "epi")
        a("v_lshrrev_b32 v%d, 5, v1" % (t + 1))
        a("v_lshlrev_b32 v%d, 4, v%d" % (t + 1, t + 1))
        a("s_lshl_b32 s%d, s%d, 1" % (sT3, sSL))
        a("s_lshr_b32 s%d, s%d, 1" % (sT2, sWAVE))
        a("s_add_u32 s%d, s%d, s%d" % (sT3, sT3, sT2))
        a("s_lshl_b32 s%d, s%d, 8" % (sT3, sT3))
        a("s_add_u32 s%d, s%d, 0x%x" % (sT3, sT3, WS_CS))
        for k in range(8):
            self.vmem("buffer_load_dwordx4 v[%d:%d], v%d, s[%d:%d], s%d offen offset:%d sc1" % (vCS + 4 * k, vCS + 4 * k + 3, t + 1, SRD_WS, SRD_WS + 3, sT3, 32 * k), "epi")
    def g1_epilogue(self):
        a = self.a
        a.c("==== GEMM1 epilogue: h = relu(acc - mean*colsum) -> fragment order")
        self.wait_vm("epi")
        a("v_lshlrev_b32 v%d, 16, v%d\nv_lshlrev_b32 v%d, 16, v%d" % (vMEAN, vMEAN, vMEAN + 2, vMEAN + 1))
        a("v_lshlrev_b32 v%d, 4, v1" % vT)
        a("s_lshl_b32 s%d, s%d, 1" % (sT3, sMT))
        a("s_and_b32 s%d, s%d, 1" % (sT2, sWAVE))
        a("s_add_u32 s%d, s%d, s%d" % (sT3, sT3, sT2))
        a("s_mul_i32 s%d, s%d, 224" % (sT0, sT3))
        a("s_lshl_b32 s%d, s%d, 1" % (sT1, sSL))
        a("s_lshr_b32 s%d, s%d, 1" % (sT2, sWAVE))
        a("s_add_u32 s%d, s%d, s%d" % (sT1, sT1, sT2))
        a("s_lshl_b32 s%d, s%d, 2" % (sT2, sT1))
        a("s_add_u32 s%d, s%d, s%d" % (sT0, sT0, sT2))
        a("s_lshl_b32 s%d, s%d, 10" % (sT0, sT0))
        a("s_lshl_b32 s%d, s%d, 5" % (sT3, sT3))
        a("s_add_u32 s%d, s%d, s%d" % (sT3, sT3, sT1))
        a("s_lshl_b32 s%d, s%d, 2" % (sT3, sT3))
        a("s_add_u32 s%d, s%d, 0x%x" % (sHO, sT3, WS_FH))
        a("s_add_u32 s%d, s%d, %d" % (sT1, sT0, 112 * 1024))
        a("s_nop 3")
        P = vFR
        n = 0
        for ft in range(2):
            for mt2 in range(2):
                D = vACC + 16 * (2 * ft + mt2)
                for sp in range(2):
                    Q = P + 4 * (n & 7); n += 1
                    for k in range(4):
                        r = 8 * sp + 2 * k
                        a("v_pk_fma_f32 v[%d:%d], v[%d:%d], v[%d:%d], v[%d:%d] op_sel_hi:[1,0,1] neg_lo:[0,1,0] neg_hi:[0,1,0]" %
                          (D + r, D + r + 1, vCS + 16 * ft + r, vCS + 16 * ft + r + 1, vMEAN + 2 * mt2, vMEAN + 2 * mt2 + 1, D + r, D + r + 1))
                    for k in range(4):
                        r = 8 * sp + 2 * k
                        a("v_cvt_pk_bf16_f32 v%d, v%d, v%d" % (Q + k, D + r, D + r + 1))
                    for k in range(4):
                        a("v_pk_max_i16 v%d, v%d, 0" % (Q + k, Q + k))
                    self.vmem("buffer_store_dwordx4 v[%d:%d], v%d, s[%d:%d], s%d offen offset:%d sc1" %
                              (Q, Q + 3, vT, SRD_WS, SRD_WS + 3, sT1 if mt2 else sT0, (2 * ft + sp) * 1024), "h")
    def publish_H(self):
        self.wait_vm("h")
        self.publish(sHO, vT)

    def spare_path(self):
        a = self.a
        a.c("==== spare workgroup: x^T piece, column sums of w1")
        self.chunk_soffsets()
        for f in self.g1_dma_ops(0, "c0", xonly=True): f()
        self.params_load()
        t = vT
        a("s_min_u32 s%d, s%d, 27" % (sT0, sSPARE))
        a("s_lshl_b32 s%d, s%d, 7" % (sT0, sT0))
        a("s_mul_i32 s%d, s%d, %d" % (sT1, sWAVE, 128 * 3584))
        a("s_add_u32 s%d, s%d, s%d" % (sT0, sT0, sT1))
        a("v_lshrrev_b32 v%d, 3, v1" % (vDW))
        a("v_mul_u32_u24 v%d, 3584, v%d" % (vDW, vDW))
        a("v_and_b32 v%d, 7, v1" % (vDW + 1))
        a("v_lshl_add_u32 v%d, v%d, 4, v%d" % (vDW, vDW + 1, vDW))
        for i in range(16):
            self.vmem("buffer_load_dwordx4 v[%d:%d], v%d, s[%d:%d], s%d offen" % (vACC + 4 * i, vACC + 4 * i + 3, vDW, SRD_W1, SRD_W1 + 3, sT0), "cs%d" % i)
            if i < 15: a("s_add_u32 s%d, s%d, %d" % (sT0, sT0, 8 * 3584))
        self.stats()
        self.wait_vm("c0")
        self.xt_part1()
        self.wait_ds()
        a("s_barrier")
        self.xt_part2()
        S = vFR + 8
        for i in range(16):
            self.wait_vm("cs%d" % i)
            for k in range(4):
                d = S + 2 * k if i == 0 else vFR
                a("v_lshlrev_b32 v%d, 16, v%d" % (d, vACC + 4 * i + k))
                a("v_and_b32 v%d, 0xffff0000, v%d" % (d + 1, vACC + 4 * i + k))
                if i: a("v_pk_add_f32 v[%d:%d], v[%d:%d], v[%d:%d]" % (S + 2 * k, S + 2 * k + 1, S + 2 * k, S + 2 * k + 1, vFR, vFR + 1))
        a("s_nop 0")
        for k in range(8):
            a("v_add_f32_dpp v%d, v%d, v%d row_ror:8 row_mask:0xf bank_mask:0xf" % (S + k, S + k, S + k))
        for op in ("v_permlane16_swap_b32", "v_permlane32_swap_b32"):
            for k in range(8): a("v_mov_b32 v%d, v%d" % (vFR + k, S + k))
            a("s_nop 0")
            for k in range(8): a("%s v%d, v%d" % (op, S + k, vFR + k))
            for k in range(8): a("v_add_f32 v%d, v%d, v%d" % (S + k, S + k, vFR + k))
        a("v_and_b32 v%d, 7, v1" % t)
        a("v_lshlrev_b32 v%d, 5, v%d" % (t, t))
        a("s_lshl_b32 s%d, s%d, 8" % (sT0, sWAVE))
        a("s_add_u32 s%d, s%d, %d" % (sT0, sT0, L_CSX))
        a("v_add_u32 v%d, s%d, v%d" % (t, sT0, t))
        self.dsop("ds_write_b128 v%d, v[%d:%d]" % (t, S, S + 3))
        self.dsop("ds_write_b128 v%d, v[%d:%d] offset:16" % (t, S + 4, S + 7))
        self.get_nonce("non")
        self.wait_vm(); self.wait_ds()
        a("s_barrier")
        self.publish_A()
        L = a.newlabel("nocs")
        a("s_cmp_lg_u32 s%d, 1" % sWAVE)
        a("s_cbranch_scc1 %s" % L)
        a("s_cmp_ge_u32 s%d, 28" % sSPARE)
        a("s_cbranch_scc1 %s" % L)
        a("v_and_b32 v%d, 15, v1" % t)
        a("v_lshlrev_b32 v%d, 4, v%d" % (t, t))
        a("v_add_u32 v%d, %d, v%d" % (t + 1, L_CSX, t))
        for k in range(4): a("ds_read_b128 v[%d:%d], v%d offset:%d" % (vFR + 4 * k, vFR + 4 * k + 3, t + 1, 256 * k))
        a("s_waitcnt lgkmcnt(0)")
        for k in range(1, 4):
            for q in range(0, 4, 2):
                a("v_pk_add_f32 v[%d:%d], v[%d:%d], v[%d:%d]" % (vFR + q, vFR + q + 1, vFR + q, vFR + q + 1, vFR + 4 * k + q, vFR + 4 * k + q + 1))
        a("s_lshl_b32 s%d, s%d, 8" % (sT0, sSPARE))
        a("s_add_u32 s%d, s%d, 0x%x" % (sT0, sT0, WS_CS))
        a("s_mov_b64 exec, 0xffff")
        a("buffer_store_dwordx4 v[%d:%d], v%d, s[%d:%d], s%d offen sc1" % (vFR, vFR + 3, t, SRD_WS, SRD_WS + 3, sT0))
        a("s_mov_b64 exec, -1")
        a("s_lshl_b32 s%d, s%d, 2" % (sT0, sSPARE))
        a("s_add_u32 s%d, s%d, 0x%x" % (sT0, sT0, WS_FC))
        a("s_waitcnt vmcnt(0)")
        self.publish(sT0, vT)
        a.label(L)
        self.w2_setup()
        for f in self.w2_dma_ops(0) + self.w2_dma_ops(4): f()
        self.poll(lambda: self.load_flagsA(False), [vFLQ, vFLQ + 1, vFLQ + 2, vFLQ + 3])
        self.load_u()
        self.wait_vm()

    def stage_u(self):
        a = self.a
        a.c("==== stage xn^T (two channels) into LDS")
        self.wait_vm("u")
        R = vFR
        M = vFR + 8
        W = vFR + 16
        for k in range(8):
            a("v_and_b32 v%d, 0xffff0000, v%d" % (R + k, vUL + 8 + k))
            a("v_rcp_f32 v%d, v%d" % (R + k, R + k))
            a("v_lshlrev_b32 v%d, 16, v%d" % (M + k, vUL + 8 + k))
        a("v_lshlrev_b32 v%d, 4, v0" % vT)
        a("v_add_u32 v%d, %d, v%d" % (vT, L_U, vT))
        for ch in range(2):
            for k in range(4):
                s = vUL + 4 * ch + k
                a("v_lshlrev_b32 v%d, 16, v%d\nv_and_b32 v%d, 0xffff0000, v%d" % (W, s, W + 1, s))
                a("v_pk_add_f32 v[%d:%d], v[%d:%d], v[%d:%d] neg_lo:[0,1] neg_hi:[0,1]" % (W, W + 1, W, W + 1, M + 2 * k, M + 2 * k + 1))
                a("v_cvt_pk_bf16_f32 v%d, v%d, v%d" % (s, W, W + 1))
                a("v_lshlrev_b32 v%d, 16, v%d\nv_and_b32 v%d, 0xffff0000, v%d" % (W, s, W + 1, s))
                a("v_pk_mul_f32 v[%d:%d], v[%d:%d], v[%d:%d]" % (W, W + 1, W, W + 1, R + 2 * k, R + 2 * k + 1))
                a("v_cvt_pk_bf16_f32 v%d, v%d, v%d" % (s, W, W + 1))
            self.dsop("ds_write_b128 v%d, v[%d:%d] offset:%d" % (vT, vUL + 4 * ch, vUL + 4 * ch + 3, 512 + 4608 * ch))
        for k in range(4): a("v_mov_b32 v%d, 0" % (W + k))
        a("v_and_b32 v%d, 31, v1" % (vT + 1))
        a("v_lshlrev_b32 v%d, 4, v%d" % (vT + 1, vT + 1))
        a("v_add_u32 v%d, %d, v%d" % (vT + 1, L_U, vT + 1))
        self.dsop("ds_write_b128 v%d, v[%d:%d]" % (vT + 1, W, W + 3))
        self.dsop("ds_write_b128 v%d, v[%d:%d] offset:4608" % (vT + 1, W, W + 3))
        a("v_min_u32 v%d, 8, v1" % (vT + 1))
        a("v_lshlrev_b32 v%d, 2, v%d" % (vT + 1, vT + 1))
        a("v_add_u32 v%d, %d, v%d" % (vT + 1, L_K, vT + 1))
        for ch in range(2):
            self.dsop("ds_write_b32 v%d, v%d offset:%d" % (vT + 1, W, 8320 * ch + 4096))
            self.dsop("ds_write_b32 v%d, v%d offset:%d" % (vT + 1, W, 8320 * ch + 4160 + 4092))
    def cmul(self, d, x, y):
        a = self.a
        a("v_pk_mul_f32 v[%d:%d], v[%d:%d], v[%d:%d] op_sel_hi:[0,1]" % (d, d + 1, x, x + 1, y, y + 1))
        a("v_pk_fma_f32 v[%d:%d], v[%d:%d], v[%d:%d], v[%d:%d] op_sel:[1,1,0] op_sel_hi:[1,0,1] neg_lo:[0,1,0]" % (d, d + 1, x, x + 1, y, y + 1, d, d + 1))
    def kgen(self, mid=None):
        a = self.a
        a.c("==== kernel generation: K[l] = Re sum_n CB_n z_n^bf16(l)")
        AD = 128
        Z1, Z16, Z256, CB = 144, 146, 148, 150
        WR = 152
        VV = 186
        PK = 190
        t = vT
        a("s_lshl_b32 s%d, s%d, 14" % (sT0, sWAVE))
        a("s_add_u32 s%d, s%d, %d" % (sT0, sT0, 2 * SLOT))
        a("v_lshl_add_u32 v%d, v1, 2, s%d" % (AD, sT0))
        for k in range(1, 16): a("v_xor_b32 v%d, %d, v%d" % (AD + k, 16 * k, AD))
        a("s_waitcnt lgkmcnt(0)"); self.ds = []
        a("s_lshr_b32 s%d, s%d, 1" % (sT1, sWAVE))
        a("s_lshl_b32 s%d, s%d, 4" % (sT1, sT1))
        a("s_lshr_b32 s%d, s%d, s%d" % (sT2, sLDT, sT1))
        a("s_lshl_b32 s%d, s%d, 16" % (sT2, sT2))
        a("s_lshr_b32 s%d, s%d, s%d" % (sDSK, sDSK, sT1))
        a("s_lshl_b32 s%d, s%d, 16" % (sDSK, sDSK))
        a("v_mov_b32 v%d, 0x3fb8aa3b" % t)
        a("v_mul_f32 v%d, s%d, v%d" % (t, sT2, t))
        a("v_exp_f32 v%d, v%d" % (t, t))
        a("s_nop 0")
        a("v_cvt_pk_bf16_f32 v%d, v%d, v%d" % (t, t, t))
        a("v_and_b32 v%d, 0xffff0000, v%d" % (t, t))
        for k in range(4): a("v_mul_f32 v%d, v%d, v%d" % (vPAR + k, t, vPAR + k))
        a("v_mul_f32 v%d, 0x3fb8aa3b, v%d" % (vPAR, vPAR))
        a("v_mul_f32 v%d, 0.15915494, v%d" % (vPAR + 1, vPAR + 1))
        for Z, sc in ((Z1, None), (Z16, "0x41800000"), (Z256, "0x43800000")):
            if sc:
                a("v_mul_f32 v%d, %s, v%d\nv_mul_f32 v%d, %s, v%d" % (t, sc, vPAR, t + 1, sc, vPAR + 1))
                e, p = t, t + 1
            else: e, p = vPAR, vPAR + 1
            a("v_fract_f32 v%d, v%d" % (t + 1, p))
            a("v_exp_f32 v%d, v%d" % (t, e))
            a("v_cos_f32 v%d, v%d" % (Z, t + 1))
            a("v_sin_f32 v%d, v%d" % (Z + 1, t + 1))
            a("s_nop 0")
            a("v_pk_mul_f32 v[%d:%d], v[%d:%d], v[%d:%d] op_sel_hi:[1,0]" % (Z, Z + 1, Z, Z + 1, t, t + 1))
        self.cmul(WR, vPAR + 4, vPAR + 2)
        npk = [0]
        def put(row, src, neg):
            p = PK + (npk[0] & 3); npk[0] += 1
            a("v_cvt_pk_bf16_f32 v%d, v%d, %sv%d" % (p, src, "-" if neg else "", src + 1))
            self.dsop("ds_write_b32 v%d, v%d offset:%d" % (AD + (row & 15), p, row * 256))
        a("v_mov_b32 v%d, 0x3f80" % PK); npk[0] = 1
        self.dsop("ds_write_b32 v%d, v%d" % (AD, PK))
        put(16, WR, False)
        put(1, Z16, True)
        prev = Z16
        for r in range(1, 17):
            self.cmul(WR + 2 * r, WR + 2 * (r - 1), Z1)
            if 2 <= r <= 15:
                cur = VV + 2 * (r & 1)
                self.cmul(cur, prev, Z16); prev = cur
            if r < 16: put(16 + r, WR + 2 * r, False)
            if 2 <= r <= 15: put(r, prev, True)
            if mid and r == 8: mid()
        base = {1: 32, 2: 41, 3: 46, 4: 51, 5: 54, 6: 57, 7: 60}
        loc = {r: WR + 2 * r for r in range(17)}
        for T in range(1, 8):
            k = [0, 1, 2, 2, 3, 3, 3, 3][T]
            for n, r in enumerate(range(0, 17, 1 << k)):
                alt = (WR + 2 * (r + 1)) if r < 16 else VV
                dst = alt if loc[r] == WR + 2 * r else WR + 2 * r
                self.cmul(dst, loc[r], Z256); loc[r] = dst
                put(base[T] + n, dst, False)
        KA = 64
        BF = 144
        AF = 160
        a("v_and_b32 v%d, 15, v1" % t)
        a("v_lshrrev_b32 v%d, 4, v1" % (t + 1))
        def addr(dst, rowreg):
            a("v_and_b32 v%d, 15, v%d" % (t + 5, rowreg))
            a("v_xor_b32 v%d, v%d, v%d" % (t + 5, t + 5, t + 1))
            a("v_lshlrev_b32 v%d, 4, v%d" % (t + 5, t + 5))
            a("v_lshl_add_u32 v%d, v%d, 8, v%d" % (t + 5, rowreg, t + 5))
            a("v_add_u32 v%d, s%d, v%d" % (dst, sT0, t + 5))
        AA = 96
        addr(AA, t)
        a("v_add_u32 v%d, 4096, v%d" % (AA + 1, AA))
        rho = {}
        for k in (1, 2, 3):
            a("v_bfe_u32 v%d, v%d, %d, 1" % (t + 2, t, k))
            a("v_add3_u32 v%d, v%d, v%d, %d" % (t + 2, t + 2, t, (1 << (k - 1)) - 1))
            a("v_lshrrev_b32 v%d, %d, v%d" % (t + 2, k, t + 2))
            for T in range(1, 8):
                if [0, 1, 2, 2, 3, 3, 3, 3][T] != k: continue
                a("v_add_u32 v%d, %d, v%d" % (t + 3, base[T], t + 2))
                addr(AA + 1 + T, t + 3)
        self.wait_ds()
        for ks in range(4):
            if ks: a("v_xor_b32 v%d, %d, v%d" % (t + 2, 64 * ks, AA))
            self.dsop("ds_read_b128 v[%d:%d], v%d" % (BF + 4 * ks, BF + 4 * ks + 3, t + 2 if ks else AA), "kb")
        seq = [(T, ks) for ks in range(4) for T in range(8)]
        def rd(n):
            T, ks = seq[n]
            r = AA + 1 + T
            if ks:
                a("v_xor_b32 v%d, %d, v%d" % (r, 64 * (ks ^ (ks - 1)), r))
            self.dsop("ds_read_b128 v[%d:%d], v%d" % (AF + 4 * (n & 7), AF + 4 * (n & 7) + 3, r), "ka%d" % n)
        for n in range(8): rd(n)
        for n in range(32):
            T, ks = seq[n]
            self.wait_ds("ka%d" % n)
            D = KA + 4 * T
            a("v_mfma_f32_16x16x32_bf16 v[%d:%d], v[%d:%d], v[%d:%d], %s" % (D, D + 3, AF + 4 * (n & 7), AF + 4 * (n & 7) + 3, BF + 4 * ks, BF + 4 * ks + 3,
                                                                          "0" if ks == 0 else "v[%d:%d]" % (D, D + 3)))
            if n + 8 < 32: rd(n + 8)
        a("v_lshl_add_u32 v%d, v1, 4, s%d" % (t, sT0))
        a("v_xor_b32 v%d, 16384, v%d" % (t + 1, t))
        Lh, Lj = a.newlabel("khi"), a.newlabel("kj")
        a("s_and_b32 s%d, s%d, 1" % (sT1, sWAVE))
        a("s_cmp_lg_u32 s%d, 0" % sT1)
        a("s_nop 3")
        a("s_cbranch_scc1 %s" % Lh)
        for k in range(4): a("ds_write_b128 v%d, v[%d:%d] offset:%d" % (t, KA + 16 + 4 * k, KA + 19 + 4 * k, 1024 * k))
        a("s_branch %s" % Lj)
        a.label(Lh)
        for k in range(4): a("ds_write_b128 v%d, v[%d:%d] offset:%d" % (t, KA + 4 * k, KA + 3 + 4 * k, 1024 * k))
        a("s_nop 0")
        for k in range(16): a("v_mov_b32 v%d, v%d" % (KA + k, KA + 16 + k))
        a.label(Lj)
        a("s_waitcnt lgkmcnt(0)"); self.ds = []
        a("s_barrier")
        for k in range(4): self.dsop("ds_read_b128 v[%d:%d], v%d offset:%d" % (KA + 16 + 4 * k, KA + 19 + 4 * k, t + 1, 1024 * k), "kx%d" % k)
        a("s_lshr_b32 s%d, s%d, 1" % (sT2, sWAVE))
        a("s_mul_i32 s%d, s%d, 8320" % (sT2, sT2))
        a("s_lshl_b32 s%d, s%d, 11" % (sT1, sT1))
        a("s_sub_u32 s%d, s%d, s%d" % (sT2, sT2, sT1))
        a("s_add_u32 s%d, s%d, %d" % (sT2, sT2, L_K + 4088 - 1536))
        a("v_and_b32 v%d, 15, v1" % (t + 2))
        a("v_lshlrev_b32 v%d, 5, v%d" % (t + 2, t + 2))
        a("v_lshrrev_b32 v%d, 4, v1" % (t + 3))
        a("v_lshl_add_u32 v%d, v%d, 3, v%d" % (t + 2, t + 3, t + 2))
        a("v_sub_u32 v%d, s%d, v%d" % (t + 2, sT2, t + 2))
        for k in range(4):
            D = KA + 4 * k
            self.wait_ds("kx%d" % k)
            a("v_pk_add_f32 v[%d:%d], v[%d:%d], v[%d:%d]" % (D, D + 1, D, D + 1, D + 16, D + 17))
            a("v_pk_add_f32 v[%d:%d], v[%d:%d], v[%d:%d]" % (D + 2, D + 3, D + 2, D + 3, D + 18, D + 19))
            Q = AF + 4 * k
            a("v_cvt_pk_bf16_f32 v%d, v%d, v%d" % (Q, D + 3, D + 2))
            a("v_cvt_pk_bf16_f32 v%d, v%d, v%d" % (Q + 1, D + 1, D))
            a("v_cvt_pk_bf16_f32 v%d, v%d, v%d" % (Q + 2, D + 2, D + 1))
            o = 512 * (3 - k)
            self.dsop("ds_write_b64 v%d, v[%d:%d] offset:%d" % (t + 2, Q, Q + 1, o))
            self.dsop("ds_write_b32 v%d, v%d offset:%d" % (t + 2, Q + 2, o + 4160))
            self.dsop("ds_write_b16_d16_hi v%d, v%d offset:%d" % (t + 2, Q + 1, o + 4164))
            self.dsop("ds_write_b16 v%d, v%d offset:%d" % (t + 2, Q, o + 4158))
    def conv(self):
        a = self.a
        a.c("==== causal convolution, Hankel(K) x windows(u)")
        t = vT
        YA = 64
        AA = 96
        FA_, FB_ = 128, 160
        a("s_lshr_b32 s%d, s%d, 1" % (sT0, sWAVE))
        a("s_and_b32 s%d, s%d, 1" % (sT1, sWAVE))
        a("v_and_b32 v%d, 15, v1" % t)
        a("v_lshrrev_b32 v%d, 4, v1" % (t + 1))
        a("v_and_b32 v%d, 1, v1" % (t + 2))
        a("v_mul_u32_u24 v%d, %d, v%d" % (t + 2, 4160 - 2, t + 2))
        a("v_lshl_add_u32 v%d, v%d, 1, v%d" % (t + 2, t, t + 2))
        a("v_lshlrev_b32 v%d, 4, v%d" % (t + 3, t + 1))
        a("v_sub_u32 v%d, v%d, v%d" % (t + 2, t + 3, t + 2))
        a("s_mul_i32 s%d, s%d, 8320" % (sT2, sT0))
        a("s_lshl_b32 s%d, s%d, 8" % (sT3, sT1))
        a("s_sub_u32 s%d, s%d, s%d" % (sT2, sT2, sT3))
        a("s_add_u32 s%d, s%d, %d" % (sT2, sT2, L_K + 4160 + 4060 - 192 - 512))
        a("v_add_u32 v%d, s%d, v%d" % (AA, sT2, t + 2))
        for ap in range(1, 4): a("v_subrev_u32 v%d, %d, v%d" % (AA + ap, 1024 * ap, AA))
        a("v_lshl_add_u32 v%d, v%d, 5, v%d" % (t + 2, t, t + 3))
        a("s_mul_i32 s%d, s%d, 4608" % (sT2, sT0))
        a("s_sub_u32 s%d, s%d, s%d" % (sT2, sT2, sT3))
        a("s_add_u32 s%d, s%d, %d" % (sT2, sT2, L_U + 512 - 32 - 192))
        a("v_add_u32 v%d, s%d, v%d" % (AA + 4, sT2, t + 2))
        self.wait_ds()
        a("s_barrier")
        self.ts()
        w2 = self.w2_dma_ops(8) + self.w2_dma_ops(12)
        def rdA(it, aa):
            o = 16 * (3 - it) + 128 * (1 - (aa & 1))
            self.dsop("ds_read2_b32 v[%d:%d], v%d offset0:%d offset1:%d" % (FA_ + 4 * aa, FA_ + 4 * aa + 1, AA + (aa >> 1), o, o + 1))
            self.dsop("ds_read2_b32 v[%d:%d], v%d offset0:%d offset1:%d" % (FA_ + 4 * aa + 2, FA_ + 4 * aa + 3, AA + (aa >> 1), o + 2, o + 3), "A%d_%d" % (it, aa))
        def rdB(it, b):
            self.dsop("ds_read_b128 v[%d:%d], v%d offset:%d" % (FB_ + 4 * b, FB_ + 4 * b + 3, AA + 4, 512 * b + 64 * (3 - it)), "B%d_%d" % (it, b))
        rdA(0, 0)
        for b in range(7, -1, -1): rdB(0, b)
        rdA(0, 1)
        need = self.wait_ds
        for it in range(4):
            for aa in range(8):
                for b in range(7 - aa, -1, -1):
                    need("A%d_%d" % (it, aa)); need("B%d_%d" % (it, b))
                    D = YA + 4 * (aa + b)
                    a("v_mfma_f32_16x16x32_bf16 v[%d:%d], v[%d:%d], v[%d:%d], %s" % (D, D + 3, FA_ + 4 * aa, FA_ + 4 * aa + 3, FB_ + 4 * b, FB_ + 4 * b + 3,
                                                                                  "0" if (it == 0 and aa == 0) else "v[%d:%d]" % (D, D + 3)))
                    if b == 7 - aa:
                        if it == 0 and aa + 2 < 8: rdA(0, aa + 2)
                        if it < 3: rdB(it + 1, b)
                    if b == 0 and it < 3: rdA(it + 1, aa)
                    if b == 1 and w2 and aa < 4: w2.pop(0)()
        assert not w2
        self.ts()
        a("v_lshlrev_b32 v%d, 4, v1" % t)
        a("s_lshl_b32 s%d, s%d, 12" % (sT2, sWAVE))
        a("s_add_u32 s%d, s%d, %d" % (sT2, sT2, L_K))
        a("v_add_u32 v%d, s%d, v%d" % (t + 2, sT2, t))
        a("s_xor_b32 s%d, s%d, 1" % (sT2, sWAVE))
        a("s_lshl_b32 s%d, s%d, 12" % (sT2, sT2))
        a("s_add_u32 s%d, s%d, %d" % (sT2, sT2, L_K))
        a("v_add_u32 v%d, s%d, v%d" % (t + 3, sT2, t))
        a("v_and_b32 v%d, 15, v1" % (t + 4))
        a("v_lshlrev_b32 v%d, 5, v%d" % (t + 4, t + 4))
        a("v_lshl_add_u32 v%d, v%d, 3, v%d" % (t + 4, t + 1, t + 4))
        a("s_mul_i32 s%d, s%d, 4608" % (sT2, sT0))
        a("s_lshl_b32 s%d, s%d, 11" % (sT3, sT1))
        a("s_add_u32 s%d, s%d, s%d" % (sT2, sT2, sT3))
        a("s_add_u32 s%d, s%d, %d" % (sT2, sT2, L_U + 512))
        a("v_add_u32 v%d, s%d, v%d" % (t + 5, sT2, t + 4))
        for k in range(4): self.dsop("ds_read_b64 v[%d:%d], v%d offset:%d" % (FA_ + 2 * k, FA_ + 2 * k + 1, t + 5, 512 * k))
        a("s_barrier")
        Lh, Lj = a.newlabel("yhi"), a.newlabel("yj")
        a("s_cmp_lg_u32 s%d, 0" % sT1)
        a("s_cbranch_scc1 %s" % Lh)
        for k in range(4): a("ds_write_b128 v%d, v[%d:%d] offset:%d" % (t + 2, YA + 16 + 4 * k, YA + 19 + 4 * k, 1024 * k))
        a("s_branch %s" % Lj)
        a.label(Lh)
        for k in range(4): a("ds_write_b128 v%d, v[%d:%d] offset:%d" % (t + 2, YA + 4 * k, YA + 3 + 4 * k, 1024 * k))
        a("s_nop 0")
        for k in range(16): a("v_mov_b32 v%d, v%d" % (YA + k, YA + 16 + k))
        a.label(Lj)
        a("s_waitcnt lgkmcnt(0)"); self.ds = []
        a("s_barrier")
        for k in range(4): self.dsop("ds_read_b128 v[%d:%d], v%d offset:%d" % (YA + 16 + 4 * k, YA + 19 + 4 * k, t + 3, 1024 * k), "yx%d" % k)
        a("s_lshl_b32 s%d, s2, 1" % sT2)
        a("s_add_u32 s%d, s%d, s%d" % (sT2, sT2, sT0))
        a("s_lshl_b32 s%d, s%d, 9" % (sT0, sT1))
        a("s_add_u32 s%d, s%d, s%d" % (sT0, sT0, sT2))
        a("s_lshl_b32 s%d, s%d, 2" % (sT0, sT0))
        a("s_add_u32 s%d, s%d, 0x%x" % (sT0, sT0, WS_FY))
        a("s_lshl_b32 s%d, s%d, 12" % (sT2, sT2))
        a("s_add_u32 s%d, s%d, s%d" % (sT2, sT2, sT3))
        a("s_add_u32 s%d, s%d, 0x%x" % (sT2, sT2, WS_YT))
        W = FB_
        for k in range(4):
            D = YA + 4 * k
            for q in range(2):
                a("v_lshlrev_b32 v%d, 16, v%d\nv_and_b32 v%d, 0xffff0000, v%d" % (W + 2 * q, FA_ + 2 * k + q, W + 2 * q + 1, FA_ + 2 * k + q))
            for q in range(4): a("v_fmac_f32 v%d, s%d, v%d" % (D + q, sDSK, W + q))
            self.wait_ds("yx%d" % k)
            a("v_pk_add_f32 v[%d:%d], v[%d:%d], v[%d:%d]" % (D, D + 1, D, D + 1, D + 16, D + 17))
            a("v_pk_add_f32 v[%d:%d], v[%d:%d], v[%d:%d]" % (D + 2, D + 3, D + 2, D + 3, D + 18, D + 19))
            Q = W + 4 + 2 * k
            a("v_cvt_pk_bf16_f32 v%d, v%d, v%d\nv_cvt_pk_bf16_f32 v%d, v%d, v%d" % (Q, D, D + 1, Q + 1, D + 2, D + 3))
            self.vmem("buffer_store_dwordx2 v[%d:%d], v%d, s[%d:%d], s%d offen offset:%d sc1" % (Q, Q + 1, t + 4, SRD_WS, SRD_WS + 3, sT2, 512 * k), "y")
        a("s_mov_b32 s%d, s%d" % (sLDT, sT0))
    def gemm2(self):
        a = self.a
        a.c("==== GEMM2")
        t = vT
        HR, NH = 128, 10
        WF = 208
        EX, EY, ESD = 224, 232, 240
        def ld_flagsH():
            a("v_min_u32 v%d, 6, v1" % t)
            a("v_lshlrev_b32 v%d, 2, v%d" % (t, t))
            a("s_lshl_b32 s%d, s%d, 5" % (sT3, sMB))
            a("s_mul_i32 s%d, s%d, 7" % (sT2, sWAVE))
            a("s_add_u32 s%d, s%d, s%d" % (sT3, sT3, sT2))
            a("s_lshl_b32 s%d, s%d, 2" % (sT3, sT3))
            a("s_add_u32 s%d, s%d, 0x%x" % (sT3, sT3, WS_FH))
            self.vmem("buffer_load_dword v%d, v%d, s[%d:%d], s%d offen sc1" % (vFL, t, SRD_WS, SRD_WS + 3, sT3), "poll")
        self.poll(ld_flagsH, [vFL])
        self.publish(sLDT, vT)
        self.ts()
        vH0, vH1 = vFLQ, vFLQ + 1
        a("v_lshlrev_b32 v%d, 4, v1" % vH0)
        a("v_add_u32 v%d, %d, v%d" % (vH1, 112 * 1024, vH0))
        a("s_mul_i32 s%d, s%d, 224" % (sHO, sMB))
        a("s_mul_i32 s%d, s%d, 28" % (sT2, sWAVE))
        a("s_add_u32 s%d, s%d, s%d" % (sHO, sHO, sT2))
        a("s_lshl_b32 s%d, s%d, 10" % (sHO, sHO))
        def ldH(s):
            R = HR + 8 * (s % NH)
            if s and s % 4 == 0: a("s_add_u32 s%d, s%d, 4096" % (sHO, sHO))
            self.vmem("buffer_load_dwordx4 v[%d:%d], v%d, s[%d:%d], s%d offen offset:%d sc1" % (R, R + 3, vH0, SRD_WS, SRD_WS + 3, sHO, 1024 * (s & 3)), "h%d" % s)
            self.vmem("buffer_load_dwordx4 v[%d:%d], v%d, s[%d:%d], s%d offen offset:%d sc1" % (R + 4, R + 7, vH1, SRD_WS, SRD_WS + 3, sHO, 1024 * (s & 3)), "h%d" % s)
        def rdW(s):
            slot = (s >> 2) & 3
            ad = vA2 + 2 * (slot >> 1)
            o = (slot & 1) * SLOT + (s & 3) * 2048
            R = WF + 8 * (s & 1)
            return [("ds_read_b64_tr_b16 v[%d:%d], v%d offset:%d" % (R + 4 * dt + 2 * tt, R + 4 * dt + 2 * tt + 1, ad + dt, o + 1024 * tt), "W%d_%d" % (s, dt))
                    for dt in range(2) for tt in range(2)]
        AH = NH - 1
        for s in range(AH): ldH(s)
        need = self.wait_vm
        need("w2_0")
        for r, tg in rdW(0): self.dsop(r, tg)
        def epi_prefetch1():
            a("v_and_b32 v%d, 15, v1" % t)
            a("v_lshrrev_b32 v%d, 4, v1" % (t + 1))
            a("s_lshl_b32 s%d, s%d, 2" % (sT3, sMB))
            a("s_add_u32 s%d, s%d, s%d" % (sT3, sT3, sWAVE))
            a("s_lshl_b32 s%d, s%d, 6" % (sT2, sT3))
            a("s_add_u32 s%d, s%d, 0x%x" % (sT2, sT2, WS_ST))
            a("v_lshlrev_b32 v%d, 2, v%d" % (t + 2, t))
            self.vmem("buffer_load_dword v%d, v%d, s[%d:%d], s%d offen sc1" % (ESD, t + 2, SRD_WS, SRD_WS + 3, sT2), "ex")
            a("v_lshlrev_b32 v%d, 10, v%d" % (t, t))
            a("v_lshl_add_u32 v%d, v%d, 4, v%d" % (ESD + 1, t + 1, t))
            a("s_lshl_b32 s%d, s%d, 14" % (sT3, sT3))
            a("s_lshl_b32 s%d, s%d, 7" % (sT2, sDB))
            a("s_add_u32 s%d, s%d, s%d" % (sSOX, sT3, sT2))
            self.vmem("buffer_load_dwordx4 v[%d:%d], v%d, s[%d:%d], s%d offen" % (EX, EX + 3, ESD + 1, SRD_X, SRD_X + 3, sSOX), "ex")
            self.vmem("buffer_load_dwordx4 v[%d:%d], v%d, s[%d:%d], s%d offen offset:64" % (EX + 4, EX + 7, ESD + 1, SRD_X, SRD_X + 3, sSOX), "ex")
            ld_flagsY()
        def ld_flagsY():
            a("v_lshlrev_b32 v%d, 2, v1" % t)
            a("s_lshr_b32 s%d, s%d, 4" % (sT3, sMB))
            a("s_lshl_b32 s%d, s%d, 3" % (sT3, sT3))
            a("s_add_u32 s%d, s%d, s%d" % (sT3, sT3, sDB))
            a("s_lshl_b32 s%d, s%d, 8" % (sT3, sT3))
            a("s_add_u32 s%d, s%d, 0x%x" % (sT3, sT3, WS_FY))
            self.vmem("buffer_load_dword v%d, v%d, s[%d:%d], s%d offen sc1" % (vFL, t, SRD_WS, SRD_WS + 3, sT3), "polly")
        def epi_prefetch2():
            self.poll(ld_flagsY, [vFL], "polly")
            a("v_lshrrev_b32 v%d, 2, v0" % t)
            a("v_and_b32 v%d, 3, v0" % (t + 1))
            a("v_lshlrev_b32 v%d, 4, v%d" % (t + 1, t + 1))
            a("v_lshl_add_u32 v%d, v%d, 12, v%d" % (t + 2, t, t + 1))
            a("v_mul_u32_u24 v%d, 144, v%d" % (t, t))
            a("v_add3_u32 v%d, v%d, v%d, s%d" % (ESD + 2, t, t + 1, sSOW))
            a("s_lshl_b32 s%d, s%d, 18" % (sT3, sDB))
            a("s_lshl_b32 s%d, s%d, 7" % (sT2, sMB))
            a("s_add_u32 s%d, s%d, s%d" % (sT3, sT3, sT2))
            a("s_add_u32 s%d, s%d, 0x%x" % (sT3, sT3, WS_YT))
            self.vmem("buffer_load_dwordx4 v[%d:%d], v%d, s[%d:%d], s%d offen sc1" % (EY, EY + 3, t + 2, SRD_WS, SRD_WS + 3, sT3), "ey")
            self.vmem("buffer_load_dwordx4 v[%d:%d], v%d, s[%d:%d], s%d offen offset:64 sc1" % (EY + 4, EY + 7, t + 2, SRD_WS, SRD_WS + 3, sT3), "ey")
        a("s_mov_b32 s%d, %d" % (sSOW, L_YS))
        for s in range(28):
            R = HR + 8 * (s % NH)
            Wr = WF + 8 * (s & 1)
            nxt = []
            if s + 1 < 28:
                need("w2_%d" % (s + 1))
                nxt = rdW(s + 1)
            need("h%d" % s)
            for i in range(4):
                dt, tt = i >> 1, i & 1
                if tt == 0: self.wait_ds("W%d_%d" % (s, dt))
                D = vACC + 16 * i
                a("v_mfma_f32_32x32x16_bf16 v[%d:%d], v[%d:%d], v[%d:%d], %s" % (D, D + 15, Wr + 4 * dt, Wr + 4 * dt + 3, R + 4 * tt, R + 4 * tt + 3,
                                                                              "0" if s == 0 else "v[%d:%d]" % (D, D + 15)))
                if i < 2:
                    for r, tg in nxt[2 * i:2 * i + 2]: self.dsop(r, tg)
            if s & 1 and s + 15 < 28:
                for f in self.w2_dma_ops(s + 15, 2): f()
            if s + AH < 28: ldH(s + AH)
            if s == 17: epi_prefetch1()
            if s == 21: epi_prefetch2()
        self.ts()
        a.c("==== reduction over the four k-quarters and output")
        need("ey")
        self.dsop("ds_write_b128 v%d, v[%d:%d]" % (ESD + 2, EY, EY + 3))
        self.dsop("ds_write_b128 v%d, v[%d:%d] offset:64" % (ESD + 2, EY + 4, EY + 7))
        a("v_and_b32 v%d, 31, v1" % t)
        a("v_lshrrev_b32 v%d, 5, v1" % (t + 1))
        a("v_and_b32 v%d, 15, v1" % (t + 2))
        a("v_xor_b32 v%d, v%d, v%d" % (t + 1, t + 1, t + 2))
        a("v_lshlrev_b32 v%d, 4, v%d" % (t + 1, t + 1))
        a("v_lshl_add_u32 v%d, v%d, 8, v%d" % (t + 1, t, t + 1))
        a("s_lshl_b32 s%d, s%d, 14" % (sT3, sWAVE))
        a("v_add_u32 v%d, s%d, v%d" % (HR, sT3, t + 1))
        for k in range(1, 8): a("v_xor_b32 v%d, %d, v%d" % (HR + k, 32 * k, HR))
        a("s_barrier")
        for i in range(4):
            dt, tt = i >> 1, i & 1
            for g in range(4):
                D = vACC + 16 * i + 4 * g
                self.dsop("ds_write_b128 v%d, v[%d:%d] offset:%d" % (HR + 4 * dt + g, D, D + 3, 8192 * tt))
        a("v_lshrrev_b32 v%d, 4, v1" % (t + 1))
        a("v_lshlrev_b32 v%d, 1, v%d" % (t + 3, t + 1))
        a("v_xor_b32 v%d, v%d, v%d" % (t + 3, t + 3, t + 2))
        a("v_lshlrev_b32 v%d, 4, v%d" % (t + 3, t + 3))
        a("v_lshl_add_u32 v%d, v%d, 8, v%d" % (t + 3, t + 2, t + 3))
        a("s_lshl_b32 s%d, s%d, 12" % (sT3, sWAVE))
        a("v_add_u32 v%d, s%d, v%d" % (HR + 8, sT3, t + 3))
        a("v_xor_b32 v%d, 16, v%d\nv_xor_b32 v%d, 128, v%d\nv_xor_b32 v%d, 144, v%d" % (HR + 9, HR + 8, HR + 10, HR + 8, HR + 11, HR + 8))
        a("v_bfe_u32 v%d, v1, 2, 2" % (t + 3))
        a("v_lshl_add_u32 v%d, v%d, 3, v%d" % (t + 3, t + 1, t + 3))
        a("v_mul_u32_u24 v%d, 144, v%d" % (t + 3, t + 3))
        a("v_and_b32 v%d, 3, v1" % (t + 4))
        a("v_lshl_add_u32 v%d, v%d, 3, v%d" % (t + 3, t + 4, t + 3))
        a("s_lshl_b32 s%d, s%d, 5" % (sT3, sWAVE))
        a("s_add_u32 s%d, s%d, %d" % (sT3, sT3, L_YS))
        a("v_add_u32 v%d, s%d, v%d" % (t + 3, sT3, t + 3))
        a("v_and_b32 v%d, 0xffff0000, v%d" % (ESD, ESD))
        a("v_rcp_f32 v%d, v%d" % (ESD, ESD))
        T1 = HR + 16
        for k in range(8):
            a("v_lshlrev_b32 v%d, 16, v%d\nv_and_b32 v%d, 0xffff0000, v%d" % (T1 + 2 * k, EX + k, T1 + 2 * k + 1, EX + k))
        self.wait_ds()
        a("s_barrier")
        for j in range(4):
            self.dsop("ds_read_b64_tr_b16 v[%d:%d], v%d offset:%d" % (EY + 2 * j, EY + 2 * j + 1, t + 3, ((j & 1) * 4 + (j >> 1) * 32) * 144), "yt")
        for P in range(4):
            for j in range(4):
                self.dsop("ds_read_b128 v[%d:%d], v%d offset:%d" % (vACC + 16 * P + 4 * j, vACC + 16 * P + 4 * j + 3, HR + 8 + j, 16384 * P), "p%d" % P)
        self.wait_ds("yt")
        W = HR + 32
        for k in range(8):
            a("v_lshlrev_b32 v%d, 16, v%d\nv_and_b32 v%d, 0xffff0000, v%d" % (W, EY + k, W + 1, EY + k))
            a("v_pk_add_f32 v[%d:%d], v[%d:%d], v[%d:%d]" % (T1 + 2 * k, T1 + 2 * k + 1, T1 + 2 * k, T1 + 2 * k + 1, W, W + 1))
        for P in range(1, 4):
            self.wait_ds("p%d" % P)
            for k in range(8):
                a("v_pk_add_f32 v[%d:%d], v[%d:%d], v[%d:%d]" % (vACC + 2 * k, vACC + 2 * k + 1, vACC + 2 * k, vACC + 2 * k + 1, vACC + 16 * P + 2 * k, vACC + 16 * P + 2 * k + 1))
        for k in range(8):
            a("v_pk_fma_f32 v[%d:%d], v[%d:%d], v[%d:%d], v[%d:%d] op_sel_hi:[1,0,1]" % (T1 + 2 * k, T1 + 2 * k + 1, vACC + 2 * k, vACC + 2 * k + 1, ESD, ESD + 1, T1 + 2 * k, T1 + 2 * k + 1))
            a("v_cvt_pk_bf16_f32 v%d, v%d, v%d" % (EX + k, T1 + 2 * k, T1 + 2 * k + 1))
        self.vmem("buffer_store_dwordx4 v[%d:%d], v%d, s[%d:%d], s%d offen" % (EX, EX + 3, ESD + 1, SRD_OUT, SRD_OUT + 3, sSOX))
        self.vmem("buffer_store_dwordx4 v[%d:%d], v%d, s[%d:%d], s%d offen offset:64" % (EX + 4, EX + 7, ESD + 1, SRD_OUT, SRD_OUT + 3, sSOX))

    def finish(self):
        a = self.a
        if self.diag:
            a("s_waitcnt vmcnt(0)")
            self.ts()
            a("s_memrealtime s[%d:%d]" % (sM0, sM1)); a("s_waitcnt lgkmcnt(0)"); a("s_mov_b32 s98, s%d" % sM0)
            a("s_cmp_lg_u32 s%d, 0" % sWAVE); a("s_cbranch_scc1 L_END")
            a("s_lshl_b32 s%d, s2, 7" % sT0); a("s_add_u32 s%d, s%d, 0x%x" % (sT0, sT0, WS_TS))
            a("s_mov_b64 exec, 1")
            for k in range(20):
                a("v_mov_b32 v2, s%d" % (sTS + k))
                a("buffer_store_dword v2, off, s[%d:%d], s%d offset:%d" % (SRD_WS, SRD_WS + 3, sT0, 4 * k))
            a("s_waitcnt vmcnt(0)")
        a.label("L_END")
        a("s_endpgm")

    def build(self):
        a = self.a
        if self.diag:
            for k in range(20): a("s_mov_b32 s%d, 0" % (sTS + k))
        self.setup()
        a("s_cmp_eq_u32 s%d, 7" % sDB)
        a("s_cbranch_scc1 L_SPARE")
        vm0, nts0 = list(self.vm), self.nts
        self.chunk_soffsets()
        for f in self.g1_dma_ops(0, "c0"): f()
        self.params_load()
        self.chunk_soffsets()
        for f in self.g1_dma_ops(1, "c1"): f()
        self.g1_addr()
        self.stats()
        self.gemm1()
        self.g1_epilogue()
        self.ts()
        a("s_mov_b32 s%d, 1" % sSPARE)
        a.label("L_JOIN")
        a("s_barrier")
        self.stage_u()
        def mid():
            L = a.newlabel("noH")
            a("s_cmp_eq_u32 s%d, 7" % sDB)
            a("s_cbranch_scc1 %s" % L)
            save = list(self.vm)
            self.publish_H()
            self.vm = save
            a.label(L)
        self.ts()
        self.kgen(mid)
        self.conv()
        self.gemm2()
        a("s_branch L_FIN")
        vm1, ds1, nts1 = self.vm, self.ds, self.nts
        a.label("L_SPARE")
        self.vm, self.ds = vm0, []
        d = self.diag; self.diag = False
        self.spare_path()
        self.diag = d
        a("s_branch L_JOIN")
        a.label("L_FIN")
        self.vm, self.ds, self.nts = vm1, ds1, nts1
        self.finish()
        return a

HEADER = open("parallel_sum__ssm_conv_s4__dense_activation_relu__prompt.s.ref").read().split("; Override launch")[0] if __name__ == "__main__" else ""
def full_text(a, header=""):
    return header + """; @launch grid=(256,1,1) block=(256,1,1) lds=%d
.amdgcn_target "amdgcn-amd-amdhsa--gfx950"
.text
.globl %s
.p2align 8
.type %s,@function
%s:
""" % (LDS_BYTES, NAME, NAME, NAME) + a.text() + """.section .rodata,"a"
.p2align 6
.amdhsa_kernel %s
  .amdhsa_next_free_vgpr 256
  .amdhsa_next_free_sgpr 102
  .amdhsa_accum_offset 256
  .amdhsa_group_segment_fixed_size 0
  .amdhsa_kernarg_size 120
  .amdhsa_user_sgpr_count 2
  .amdhsa_user_sgpr_kernarg_segment_ptr 1
  .amdhsa_system_sgpr_workgroup_id_x 1
  .amdhsa_float_denorm_mode_32 3
.end_amdhsa_kernel
""" % NAME

if __name__ == "__main__":
    import argparse
    ap = argparse.ArgumentParser()
    ap.add_argument("-o", default="k.s")
    ap.add_argument("--diag", action="store_true")
    ap.add_argument("--opt", default="")
    args = ap.parse_args()
    opt = {}
    for kv in args.opt.split(","):
        if kv: k, v = kv.split("="); opt[k] = int(v)
    g = Gen(diag=args.diag, opt=opt)
    a = g.build()
    check_hazards(a.lines)
    open(args.o, "w").write(full_text(a, HEADER))
    print("wrote", args.o, "instructions:", sum(1 for l in a.lines if parse(l)))
```

```python
import sys
from asmlib import *

NAME = "parallel_sum__ssm_conv_s4__dense_activation_relu__prompt_kernel"
WS_H, WS_XT, WS_YT = 0, 0x700000, 0x900000
WS_ST, WS_CS = 0xB00000, 0xB02000
WS_FA, WS_FC, WS_FH, WS_FY, WS_TS = 0xB04000, 0xB04400, 0xB04800, 0xB06000, 0xB08000
WS_SIZE = 0xB10000
SLOT = 32768
XPART = 16 * 1040
SLOT1 = XPART + 16384
FREE = 4 * SLOT1
L_U = FREE
L_K = FREE + 9216
L_XTS = FREE
L_YS = FREE
L_CSX = FREE + 16384
LDS_BYTES = 163840
SRD_X, SRD_W1, SRD_W2, SRD_OUT, SRD_WS, SRD_DBG = 36, 40, 44, 48, 52, 56
sWAVE, sMT, sSL, sP, sC, sNONCE, sMB, sDB = 60, 61, 62, 63, 64, 65, 66, 67
sSOX, sSOW, sLDT, sDSK, sSPARE, sT0, sT1, sT2, sT3, sCNT = 68, 69, 70, 71, 72, 73, 74, 75, 76, 77
sW2O, sHO = 78, 79
sTS = 80
sM0, sM1 = 100, 101
vTID, vLANE = 0, 1
vT = 2
vPAR = 10
vDX, vDW = 16, 20
vAX, vAW = 24, 32
vD2, vA2 = 36, 40
vNON, vFL = 44, 45
vFLQ = 46
vUS = 50
vACC = 64
vFR = 128
vCS, vMEAN = 160, 192
vUL = 196

class Gen:
    def __init__(self, diag=False, stop_after=None, opt=None):
        self.a = Asm(); self.diag = diag; self.stop = stop_after
        self.vm = []
        self.ds = []
        self.nts = 0
        self.seen = set()
        self.o = dict(poll_c=4, rot=2, g1only=0, dbgts=0, nodma=0, nomfma=0, nords=0)
        if opt: self.o.update(opt)
    def vmem(self, s, tag="x"):
        self.a(s); self.vm.append(tag); self.seen.add(tag)
    def dsop(self, s, tag="x"):
        self.a(s); self.ds.append(tag); self.seen.add(tag)
    def _n(self, lst, tag):
        idx = [i for i, t in enumerate(lst) if t == tag]
        assert idx, tag
        return len(lst) - 1 - idx[-1]
    def wait_vm(self, tag=None):
        if tag is not None:
            assert tag in self.seen, tag
            if tag not in self.vm: return
        n = 0 if tag is None else self._n(self.vm, tag)
        assert n <= 63, (tag, n)
        self.a("s_waitcnt vmcnt(%d)" % n)
        self.vm = self.vm[len(self.vm) - n:] if n else []
    def wait_ds(self, tag=None):
        if tag is not None:
            assert tag in self.seen, tag
            if tag not in self.ds: return
        n = 0 if tag is None else self._n(self.ds, tag)
        n = min(n, 15)
        self.a("s_waitcnt lgkmcnt(%d)" % n)
        self.ds = self.ds[len(self.ds) - n:] if n else []
    def ts(self):
        if not self.diag: return
        assert self.nts < 20
        self.a("s_memtime s[%d:%d]" % (sM0, sM1)); self.a("s_waitcnt lgkmcnt(0)"); self.ds = []
        self.a("s_mov_b32 s%d, s%d" % (sTS + self.nts, sM0)); self.nts += 1
    def srd(self, r, p, size):
        self.a("s_mov_b32 s%d, s%d\ns_mov_b32 s%d, s%d\ns_mov_b32 s%d, 0x%x\ns_mov_b32 s%d, 0x20000" % (r, p, r + 1, p + 1, r + 2, size, r + 3))
    def poll(self, load, regs, first_issued_tag=None):
        a = self.a
        Lr, Ld = a.newlabel("retry"), a.newlabel("ok")
        a("s_mov_b32 s%d, 0" % sCNT)
        if first_issued_tag is None:
            load(); self.wait_vm("poll")
        else:
            self.wait_vm(first_issued_tag)
        a.label(Lr)
        a("v_cmp_ne_u32 vcc, s%d, v%d" % (sNONCE, regs[0]))
        for r in regs[1:]:
            a("v_cmp_ne_u32 s[%d:%d], s%d, v%d" % (sM0, sM1, sNONCE, r))
            a("s_nop 1")
            a("s_or_b64 vcc, vcc, s[%d:%d]" % (sM0, sM1))
        a("s_nop 1")
        a("s_cmp_eq_u64 vcc, 0")
        a("s_cbranch_scc1 %s" % Ld)
        a("s_add_u32 s%d, s%d, 1" % (sCNT, sCNT))
        a("s_cmp_ge_u32 s%d, 20000" % sCNT)
        a("s_cbranch_scc1 %s" % Ld)
        save = list(self.vm)
        load()
        self.vm = save
        a("s_waitcnt vmcnt(0)")
        a("s_branch %s" % Lr)
        a.label(Ld)
    def get_nonce(self, tag):
        a = self.a
        Lr, Ld = a.newlabel("nretry"), a.newlabel("nok")
        a("s_mov_b32 s%d, 0" % sCNT)
        self.wait_vm(tag)
        a.label(Lr)
        a("v_readfirstlane_b32 s%d, v%d" % (sNONCE, vNON))
        a("s_nop 1")
        a("s_cmp_lg_u32 s%d, 0" % sNONCE)
        a("s_cbranch_scc1 %s" % Ld)
        a("s_add_u32 s%d, s%d, 1" % (sCNT, sCNT))
        a("s_cmp_ge_u32 s%d, 20000" % sCNT)
        a("s_cbranch_scc1 %s" % Ld)
        a("buffer_load_dword v%d, off, s[%d:%d], 0 sc1" % (vNON, SRD_DBG, SRD_DBG + 3))
        a("s_waitcnt vmcnt(0)")
        a("s_branch %s" % Lr)
        a.label(Ld)
    def publish(self, soff_reg, tmpv):
        a = self.a
        a("v_mov_b32 v%d, s%d" % (tmpv, sNONCE))
        a("s_mov_b64 exec, 1")
        self.vmem("buffer_store_dword v%d, off, s[%d:%d], s%d sc1" % (tmpv, SRD_WS, SRD_WS + 3, soff_reg), "flag")
        a("s_mov_b64 exec, -1")

    def setup(self):
        a = self.a
        a("s_cmp_ge_u32 s2, 256\ns_cbranch_scc1 L_END")
        if self.diag:
            a("s_memrealtime s[%d:%d]" % (sM0, sM1)); a("s_waitcnt lgkmcnt(0)"); a("s_mov_b32 s99, s%d" % sM0)
            self.ts()
        a("""s_load_dwordx16 s[4:19], s[0:1], 0
             s_load_dwordx8 s[20:27], s[0:1], 64
             s_load_dwordx4 s[28:31], s[0:1], 96
             s_load_dwordx2 s[32:33], s[0:1], 112
             v_and_b32 v1, 63, v0
             v_lshrrev_b32 v2, 6, v0
             s_and_b32 s%d, s2, 7""" % sT0)
        a("v_readfirstlane_b32 s%d, v2" % sWAVE)
        a("s_lshr_b32 s%d, s2, 3" % sT1)
        a("s_lshr_b32 s%d, s%d, 3" % (sT2, sT1))
        a("s_and_b32 s%d, s%d, 7" % (sDB, sT1))
        a("s_lshl_b32 s%d, s%d, 2" % (sMB, sT0))
        a("s_add_u32 s%d, s%d, s%d" % (sMB, sMB, sT2))
        a("s_lshr_b32 s%d, s%d, 1" % (sMT, sT0))
        a("s_lshl_b32 s%d, s%d, 2" % (sMT, sMT))
        a("s_add_u32 s%d, s%d, s%d" % (sMT, sMT, sT2))
        a("s_and_b32 s%d, s%d, 1" % (sT0, sT0))
        a("s_mul_i32 s%d, s%d, 7" % (sSL, sT0))
        a("s_add_u32 s%d, s%d, s%d" % (sSL, sSL, sDB))
        a("s_lshl_b32 s%d, s%d, 3" % (sP, sT0))
        a("s_add_u32 s%d, s%d, s%d" % (sP, sP, sDB))
        a("s_mul_i32 s%d, s%d, %d" % (sT3, sMT, self.o["rot"]))
        a("s_add_u32 s%d, s%d, s%d" % (sP, sP, sT3))
        a("s_and_b32 s%d, s%d, 15" % (sP, sP))
        a("s_lshr_b32 s%d, s%d, 1" % (sC, sP))
        a("s_lshl_b32 s%d, s%d, 1" % (sSPARE, sMT))
        a("s_add_u32 s%d, s%d, s%d" % (sSPARE, sSPARE, sT0))
        t = vT
        a("v_lshrrev_b32 v%d, 3, v1" % t)
        a("v_lshrrev_b32 v%d, 4, v1" % (t + 1))
        a("v_and_b32 v%d, 7, v1" % (t + 2))
        a("s_lshl_b32 s%d, s%d, 15" % (sT0, sWAVE))
        a("v_lshl_add_u32 v%d, v%d, 10, s%d" % (t + 3, t, sT0))
        a("v_bfe_u32 v%d, v1, 4, 1" % (t + 4))
        a("v_lshlrev_b32 v%d, 2, v%d" % (t + 4, t + 4))
        a("v_xor_b32 v%d, v%d, v%d" % (t + 4, t + 2, t + 4))
        a("v_lshl_add_u32 v%d, v%d, 4, v%d" % (vDX, t + 4, t + 3))
        for i in range(1, 4): a("v_add_u32 v%d, %d, v%d" % (vDX + i, i * (8192 - 1040), vDX))
        a("s_lshl_b32 s%d, s%d, 4" % (sT0, sWAVE))
        a("v_add_u32 v%d, s%d, v%d" % (t + 3, sT0, t + 1))
        a("v_mul_u32_u24 v%d, 3584, v%d" % (t + 3, t + 3))
        a("v_and_b32 v%d, 15, v1" % (t + 4))
        a("v_lshlrev_b32 v%d, 2, v%d" % (t + 5, t + 1))
        a("v_xor_b32 v%d, v%d, v%d" % (t + 4, t + 4, t + 5))
        a("v_lshl_add_u32 v%d, v%d, 4, v%d" % (vDW, t + 4, t + 3))
        for i in range(1, 4): a("v_add_u32 v%d, %d, v%d" % (vDW + i, i * (14336 - 1024), vDW))
        a("s_lshl_b32 s%d, s%d, 4" % (sT0, sMT))
        a("s_add_u32 s%d, s%d, s%d" % (sT0, sT0, sP))
        a("s_lshl_b32 s%d, s%d, 2" % (sT0, sT0))
        a("s_add_u32 s%d, s%d, s%d" % (sT0, sT0, sWAVE))
        a("s_lshl_b32 s%d, s%d, 11" % (sT1, sT0))
        a("s_lshl_b32 s%d, s%d, 3" % (sT2, sT0))
        a("s_add_u32 s%d, s%d, 0x%x" % (sT2, sT2, WS_ST))
        a("v_lshlrev_b32 v%d, 4, v1" % (t + 6))
        a("s_lshl_b32 s%d, s%d, 17" % (sSOX, sMT))
        a("s_lshl_b32 s%d, s%d, 8" % (sSOW, sSL))
        for k in range(6): a("v_mov_b32 v%d, 0" % (vPAR + k))
        a("s_lshl_b32 s%d, s2, 9" % sT0)
        a("v_lshl_add_u32 v%d, v0, 1, s%d" % (t + 7, sT0))
        a("s_waitcnt lgkmcnt(0)")
        self.srd(SRD_X, 4, 2097152)
        self.vmem("buffer_load_dwordx4 v[%d:%d], v%d, s[%d:%d], s%d offen" % (vFR, vFR + 3, t + 6, SRD_X, SRD_X + 3, sT1), "st")
        self.vmem("buffer_load_dwordx4 v[%d:%d], v%d, s[%d:%d], s%d offen offset:1024" % (vFR + 4, vFR + 7, t + 6, SRD_X, SRD_X + 3, sT1), "st")
        self.srd(SRD_W1, 24, 1835008)
        self.srd(SRD_WS, 32, WS_SIZE)
        self.srd(SRD_DBG, 30, 256)
        self.srd(SRD_W2, 26, 1835008)
        self.srd(SRD_OUT, 28, 2097152)
        a("s_lshl_b32 s%d, s2, 2" % sT0)
        a("s_load_dword s%d, s[18:19], s%d" % (sLDT, sT0))
        a("s_load_dword s%d, s[20:21], s%d" % (sDSK, sT0))
        L = a.newlabel("nononce")
        a("s_or_b32 s%d, s2, s%d" % (sT0, sWAVE))
        a("s_cmp_lg_u32 s%d, 0" % sT0)
        a("s_cbranch_scc1 %s" % L)
        a("s_memrealtime s[%d:%d]" % (sM0, sM1))
        a("s_waitcnt lgkmcnt(0)")
        a("s_or_b32 s%d, s%d, 1" % (sT0, sM0))
        a("v_mov_b32 v%d, s%d" % (vNON, sT0))
        a("s_mov_b64 exec, 1")
        a("buffer_store_dword v%d, off, s[%d:%d], 0 sc1" % (vNON, SRD_DBG, SRD_DBG + 3))
        a("s_mov_b64 exec, -1")
        a.label(L)
    def params_load(self):
        for k in range(6):
            self.vmem("global_load_short_d16_hi v%d, v%d, s[%d:%d]" % (vPAR + k, vT + 7, 6 + 2 * k, 7 + 2 * k), "par")
    def chunk_soffsets(self):
        a = self.a
        a("s_lshl_b32 s%d, s%d, 7" % (sT0, sC))
        a("s_add_u32 s%d, s%d, s%d" % (sT0, sT0, sSOX))
        a("s_mul_i32 s%d, s%d, %d" % (sT1, sC, 64 * 3584))
        a("s_add_u32 s%d, s%d, s%d" % (sT1, sT1, sSOW))
        a("s_add_u32 s%d, s%d, 1" % (sC, sC))
        a("s_and_b32 s%d, s%d, 7" % (sC, sC))
    def g1_dma_ops(self, slot, tag, xonly=False):
        ops = []
        def mk(kind, i):
            def f():
                a = self.a
                if i == 0:
                    a("s_mul_i32 s%d, s%d, %d" % (sT3, sWAVE, 4096 if kind else 4160))
                    a("s_add_u32 m0, s%d, %d" % (sT3, slot * SLOT1 + (XPART if kind else 0)))
                    a("s_nop 0")
                if kind == 0:
                    self.vmem("buffer_load_dwordx4 v%d, s[%d:%d], s%d offen offset:%d lds" % (vDX + i, SRD_X, SRD_X + 3, sT0, 1040 * i), tag)
                else:
                    self.vmem("buffer_load_dwordx4 v%d, s[%d:%d], s%d offen offset:%d lds" % (vDW + i, SRD_W1, SRD_W1 + 3, sT1, 1024 * i), tag)
            return f
        for kind in ((0,) if xonly else (0, 1)):
            for i in range(4): ops.append(mk(kind, i))
        return ops
    def w2_dma_ops(self, ks0, nks=4):
        ops = []
        def mk(ks, j):
            def f():
                a = self.a
                if j == 0:
                    a("s_lshl_b32 s%d, s%d, 13" % (sT3, sWAVE))
                    a("s_add_u32 m0, s%d, %d" % (sT3, ((ks >> 2) & 3) * SLOT + (ks & 3) * 2048))
                    a("s_add_u32 s%d, s%d, %d" % (sT2, sW2O, ks * 16384))
                self.vmem("buffer_load_dwordx4 v%d, s[%d:%d], s%d offen offset:%d lds" % (vD2 + j, SRD_W2, SRD_W2 + 3, sT2, 1024 * j), "w2_%d" % (ks + (j >> 1)))
            return f
        for ks in range(ks0, ks0 + nks, 2):
            for j in range(4): ops.append(mk(ks, j))
        return ops

    def allreduce2(self, r0, r1, t0, t1):
        a = self.a
        for sh in (8, 4, 2, 1):
            a("s_nop 0")
            a("v_add_f32_dpp v%d, v%d, v%d row_ror:%d row_mask:0xf bank_mask:0xf" % (r0, r0, r0, sh))
            a("v_add_f32_dpp v%d, v%d, v%d row_ror:%d row_mask:0xf bank_mask:0xf" % (r1, r1, r1, sh))
        for op in ("v_permlane16_swap_b32", "v_permlane32_swap_b32"):
            a("v_mov_b32 v%d, v%d\nv_mov_b32 v%d, v%d\ns_nop 0" % (t0, r0, t1, r1))
            a("%s v%d, v%d" % (op, r0, t0))
            a("%s v%d, v%d" % (op, r1, t1))
            a("v_add_f32 v%d, v%d, v%d\nv_add_f32 v%d, v%d, v%d" % (r0, r0, t0, r1, r1, t1))
    def stats(self):
        a = self.a
        a.c("---- row statistics")
        U = vFR + 8
        s0, s1, t0, t1 = vT, vT + 1, vT + 2, vT + 3
        a("s_waitcnt lgkmcnt(0)")
        self.wait_vm("st")
        for r in range(2):
            for k in range(4):
                a("v_lshlrev_b32 v%d, 16, v%d" % (U + 8 * r + 2 * k, vFR + 4 * r + k))
                a("v_and_b32 v%d, 0xffff0000, v%d" % (U + 8 * r + 2 * k + 1, vFR + 4 * r + k))
        for r, s in ((0, s0), (1, s1)):
            a("v_add_f32 v%d, v%d, v%d" % (s, U + 8 * r, U + 8 * r + 1))
        for k in range(2, 8):
            for r, s in ((0, s0), (1, s1)):
                a("v_add_f32 v%d, v%d, v%d" % (s, s, U + 8 * r + k))
        a("s_nop 0")
        self.allreduce2(s0, s1, t0, t1)
        m0, m1 = vT + 4, vT + 5
        a("v_mul_f32 v%d, 0x3b000000, v%d\nv_mul_f32 v%d, 0x3b000000, v%d" % (m0, s0, m1, s1))
        for k in range(8):
            a("v_sub_f32 v%d, v%d, v%d" % (U + k, U + k, m0))
            a("v_sub_f32 v%d, v%d, v%d" % (U + 8 + k, U + 8 + k, m1))
        a("v_mul_f32 v%d, v%d, v%d\nv_mul_f32 v%d, v%d, v%d" % (s0, U, U, s1, U + 8, U + 8))
        for k in range(1, 8):
            a("v_fmac_f32 v%d, v%d, v%d\nv_fmac_f32 v%d, v%d, v%d" % (s0, U + k, U + k, s1, U + 8 + k, U + 8 + k))
        a("s_nop 0")
        self.allreduce2(s0, s1, t0, t1)
        a("v_mul_f32 v%d, 0x3b000000, v%d\nv_mul_f32 v%d, 0x3b000000, v%d" % (s0, s0, s1, s1))
        a("v_cvt_pk_bf16_f32 v%d, v%d, v%d" % (t0, s0, s1))
        a("v_lshlrev_b32 v%d, 16, v%d\nv_and_b32 v%d, 0xffff0000, v%d" % (s0, t0, s1, t0))
        a("v_add_f32 v%d, 0x3727c5ac, v%d\nv_add_f32 v%d, 0x3727c5ac, v%d" % (s0, s0, s1, s1))
        a("v_cvt_pk_bf16_f32 v%d, v%d, v%d" % (t0, s0, s1))
        a("v_lshlrev_b32 v%d, 16, v%d\nv_and_b32 v%d, 0xffff0000, v%d" % (s0, t0, s1, t0))
        a("v_sqrt_f32 v%d, v%d\nv_sqrt_f32 v%d, v%d\ns_nop 0" % (s0, s0, s1, s1))
        a("v_cvt_pk_bf16_f32 v%d, v%d, v%d\nv_cvt_pk_bf16_f32 v%d, v%d, v%d" % (t0, m0, s0, t1, m1, s1))
        a("s_mov_b64 exec, 1")
        self.vmem("buffer_store_dwordx2 v[%d:%d], off, s[%d:%d], s%d sc1" % (t0, t1, SRD_WS, SRD_WS + 3, sT2), "pubA")
        a("s_mov_b64 exec, -1")

    def xt_part1(self):
        a = self.a
        a.c("---- x^T: transpose reads")
        t = vT
        D = vUL
        a("v_lshrrev_b32 v%d, 4, v1" % t)
        a("v_bfe_u32 v%d, v1, 2, 2" % (t + 1))
        a("v_and_b32 v%d, 3, v1" % (t + 2))
        a("s_and_b32 s%d, s%d, 1" % (sT3, sP))
        a("v_lshrrev_b32 v%d, 1, v%d" % (t + 3, t + 1))
        a("v_xor_b32 v%d, s%d, v%d" % (t + 3, sT3, t + 3))
        a("v_lshlrev_b32 v%d, 6, v%d" % (t + 3, t + 3))
        a("v_lshl_add_u32 v%d, v%d, 7, v%d" % (t + 3, t + 1, t + 3))
        a("v_lshl_add_u32 v%d, v%d, 3, v%d" % (t + 3, t + 2, t + 3))
        a("v_mul_u32_u24 v%d, 1040, v%d" % (t + 4, t))
        a("s_mul_i32 s%d, s%d, 4160" % (sT3, sWAVE))
        a("v_add3_u32 v%d, v%d, v%d, s%d" % (t + 5, t + 3, t + 4, sT3))
        self.dsop("ds_read_b64_tr_b16 v[%d:%d], v%d" % (D, D + 1, t + 5))
        self.dsop("ds_read_b64_tr_b16 v[%d:%d], v%d offset:512" % (D + 2, D + 3, t + 5))
        self.dsop("ds_read_b64_tr_b16 v[%d:%d], v%d offset:32" % (D + 4, D + 5, t + 5))
        self.dsop("ds_read_b64_tr_b16 v[%d:%d], v%d offset:544" % (D + 6, D + 7, t + 5), "xt")
        a("v_and_b32 v%d, 15, v1" % (t + 1))
        a("v_mul_u32_u24 v%d, 272, v%d" % (t + 1, t + 1))
        a("v_lshl_add_u32 v%d, v%d, 4, v%d" % (t + 1, t, t + 1))
        a("s_lshl_b32 s%d, s%d, 6" % (sT3, sWAVE))
        a("s_add_u32 s%d, s%d, %d" % (sT3, sT3, L_XTS))
        a("v_add_u32 v%d, s%d, v%d" % (t + 1, sT3, t + 1))
        self.wait_ds("xt")
        self.dsop("ds_write_b128 v%d, v[%d:%d]" % (t + 1, D, D + 3))
        self.dsop("ds_write_b128 v%d, v[%d:%d] offset:%d" % (t + 1, D + 4, D + 7, 16 * 272), "xtw")
    def xt_part2(self):
        a = self.a
        a.c("---- x^T: coalesced stores")
        t = vT
        D = vUL
        a("v_lshrrev_b32 v%d, 4, v1" % t)
        a("v_and_b32 v%d, 15, v1" % (t + 1))
        a("s_lshl_b32 s%d, s%d, 3" % (sT3, sWAVE))
        a("v_add_u32 v%d, s%d, v%d" % (t, sT3, t))
        a("v_mul_u32_u24 v%d, 272, v%d" % (t + 2, t))
        a("v_lshl_add_u32 v%d, v%d, 4, v%d" % (t + 2, t + 1, t + 2))
        a("v_add_u32 v%d, %d, v%d" % (t + 2, L_XTS, t + 2))
        self.dsop("ds_read_b128 v[%d:%d], v%d" % (D, D + 3, t + 2))
        self.dsop("ds_read_b128 v[%d:%d], v%d offset:%d" % (D + 4, D + 7, t + 2, 4 * 272), "xt2")
        a("v_lshlrev_b32 v%d, 12, v%d" % (t, t))
        a("v_lshl_add_u32 v%d, v%d, 4, v%d" % (t, t + 1, t))
        a("v_add_u32 v%d, 16384, v%d" % (t + 1, t))
        a("s_lshl_b32 s%d, s%d, 17" % (sT3, sP))
        a("s_lshl_b32 s%d, s%d, 8" % (sT2, sMT))
        a("s_add_u32 s%d, s%d, s%d" % (sT3, sT3, sT2))
        a("s_add_u32 s%d, s%d, 0x%x" % (sT2, sT3, WS_XT))
        self.wait_ds("xt2")
        self.vmem("buffer_store_dwordx4 v[%d:%d], v%d, s[%d:%d], s%d offen sc1" % (D, D + 3, t, SRD_WS, SRD_WS + 3, sT2), "pubA")
        self.vmem("buffer_store_dwordx4 v[%d:%d], v%d, s[%d:%d], s%d offen sc1" % (D + 4, D + 7, t + 1, SRD_WS, SRD_WS + 3, sT2), "pubA")
        self.vmem("buffer_load_dword v%d, off, s[%d:%d], 0 sc1" % (vNON, SRD_DBG, SRD_DBG + 3), "non")
    def publish_A(self):
        a = self.a
        L = a.newlabel("noA")
        a("s_cmp_lg_u32 s%d, 0" % sWAVE)
        a("s_cbranch_scc1 %s" % L)
        a("s_lshl_b32 s%d, s2, 2" % sT3)
        a("s_add_u32 s%d, s%d, 0x%x" % (sT3, sT3, WS_FA))
        save = list(self.vm)
        self.publish(sT3, vT)
        self.vm = save
        a.label(L)
    def load_flagsA(self, with_c):
        a = self.a
        a("v_lshlrev_b32 v%d, 4, v1" % vT)
        a("s_mov_b32 s%d, 0x%x" % (sT3, WS_FA))
        self.vmem("buffer_load_dwordx4 v[%d:%d], v%d, s[%d:%d], s%d offen sc1" % (vFLQ, vFLQ + 3, vT, SRD_WS, SRD_WS + 3, sT3), "poll")
        if with_c:
            a("s_lshl_b32 s%d, s%d, 3" % (sT3, sSL))
            a("s_add_u32 s%d, s%d, 0x%x" % (sT3, sT3, WS_FC))
            a("v_and_b32 v%d, 1, v1" % vT)
            a("v_lshlrev_b32 v%d, 2, v%d" % (vT, vT))
            self.vmem("buffer_load_dword v%d, v%d, s[%d:%d], s%d offen sc1" % (vFL, vT, SRD_WS, SRD_WS + 3, sT3), "poll")
    def load_u(self):
        a = self.a
        a("v_lshlrev_b32 v%d, 4, v0" % vT)
        a("v_lshlrev_b32 v%d, 5, v0" % (vT + 1))
        a("s_lshl_b32 s%d, s2, 13" % sT3)
        a("s_add_u32 s%d, s%d, 0x%x" % (sT3, sT3, WS_XT))
        a("s_add_u32 s%d, s%d, 4096" % (sT2, sT3))
        self.vmem("buffer_load_dwordx4 v[%d:%d], v%d, s[%d:%d], s%d offen sc1" % (vUL, vUL + 3, vT, SRD_WS, SRD_WS + 3, sT3), "u")
        self.vmem("buffer_load_dwordx4 v[%d:%d], v%d, s[%d:%d], s%d offen sc1" % (vUL + 4, vUL + 7, vT, SRD_WS, SRD_WS + 3, sT2), "u")
        a("s_mov_b32 s%d, 0x%x" % (sT3, WS_ST))
        self.vmem("buffer_load_dwordx4 v[%d:%d], v%d, s[%d:%d], s%d offen sc1" % (vUL + 8, vUL + 11, vT + 1, SRD_WS, SRD_WS + 3, sT3), "u")
        self.vmem("buffer_load_dwordx4 v[%d:%d], v%d, s[%d:%d], s%d offen offset:16 sc1" % (vUL + 12, vUL + 15, vT + 1, SRD_WS, SRD_WS + 3, sT3), "u")
    def w2_setup(self):
        a = self.a
        t = vT
        a("v_lshrrev_b32 v%d, 3, v1" % t)
        a("v_and_b32 v%d, 7, v1" % (t + 1))
        a("v_bfe_u32 v%d, v1, 4, 1" % (t + 2))
        a("v_lshlrev_b32 v%d, 2, v%d" % (t + 2, t + 2))
        a("v_xor_b32 v%d, v%d, v%d" % (t + 1, t + 1, t + 2))
        a("v_lshlrev_b32 v%d, 4, v%d" % (t + 1, t + 1))
        a("v_lshl_add_u32 v%d, v%d, 10, v%d" % (vD2, t, t + 1))
        for j in range(1, 4): a("v_add_u32 v%d, %d, v%d" % (vD2 + j, j * 7168, vD2))
        a("s_mul_i32 s%d, s%d, %d" % (sW2O, sWAVE, 448 * 1024))
        a("s_lshl_b32 s%d, s%d, 7" % (sT3, sDB))
        a("s_add_u32 s%d, s%d, s%d" % (sW2O, sW2O, sT3))
        a("v_bfe_u32 v%d, v1, 2, 2" % t)
        a("v_lshrrev_b32 v%d, 5, v1" % (t + 1))
        a("v_lshl_add_u32 v%d, v%d, 2, v%d" % (t + 1, t + 1, t))
        a("v_lshlrev_b32 v%d, 7, v%d" % (t + 1, t + 1))
        a("v_lshrrev_b32 v%d, 1, v%d" % (t, t))
        a("v_lshl_add_u32 v%d, v%d, 6, v%d" % (t + 1, t, t + 1))
        a("v_bfe_u32 v%d, v1, 4, 1" % t)
        a("v_lshl_add_u32 v%d, v%d, 5, v%d" % (t + 1, t, t + 1))
        a("v_and_b32 v%d, 3, v1" % t)
        a("v_lshl_add_u32 v%d, v%d, 3, v%d" % (t + 1, t, t + 1))
        a("s_lshl_b32 s%d, s%d, 13" % (sT3, sWAVE))
        a("v_add_u32 v%d, s%d, v%d" % (vA2, sT3, t + 1))
        a("v_xor_b32 v%d, 64, v%d" % (vA2 + 1, vA2))
        a("v_add_u32 v%d, 0x10000, v%d\nv_add_u32 v%d, 0x10000, v%d" % (vA2 + 2, vA2, vA2 + 3, vA2 + 1))

    def g1_addr(self):
        a = self.a
        t = vT
        a("v_lshrrev_b32 v%d, 5, v1" % (t + 1))
        a("v_bfe_u32 v%d, v1, 3, 2" % t)
        a("v_mul_u32_u24 v%d, 1040, v%d" % (t, t))
        a("v_and_b32 v%d, 7, v1" % (t + 2))
        a("v_lshl_add_u32 v%d, v%d, 7, v%d" % (t, t + 2, t))
        a("v_lshl_add_u32 v%d, v%d, 4, v%d" % (t, t + 1, t))
        a("s_and_b32 s%d, s%d, 1" % (sT3, sWAVE))
        a("s_mul_i32 s%d, s%d, 8320" % (sT3, sT3))
        a("v_bfe_u32 v%d, v1, 1, 1" % (t + 2))
        a("v_lshlrev_b32 v%d, 6, v%d" % (t + 2, t + 2))
        a("v_add3_u32 v%d, v%d, v%d, s%d" % (vAX, t, t + 2, sT3))
        a("v_xor_b32 v%d, 64, v%d" % (t + 2, t + 2))
        a("v_add3_u32 v%d, v%d, v%d, s%d" % (vAX + 1, t, t + 2, sT3))
        a("v_add_u32 v%d, %d, v%d\nv_add_u32 v%d, %d, v%d" % (vAX + 2, 2 * SLOT1, vAX, vAX + 3, 2 * SLOT1, vAX + 1))
        a("v_bfe_u32 v%d, v1, 2, 2" % t)
        a("v_lshl_add_u32 v%d, v%d, 3, v%d" % (t + 3, t + 1, t))
        a("v_lshlrev_b32 v%d, 8, v%d" % (t + 3, t + 3))
        a("s_and_b32 s%d, s%d, 2" % (sT3, sWAVE))
        a("v_xor_b32 v%d, s%d, v%d" % (t, sT3, t))
        a("v_lshl_add_u32 v%d, v%d, 6, v%d" % (t + 3, t, t + 3))
        a("v_bfe_u32 v%d, v1, 4, 1" % t)
        a("v_lshl_add_u32 v%d, v%d, 5, v%d" % (t + 3, t, t + 3))
        a("v_and_b32 v%d, 3, v1" % t)
        a("v_lshl_add_u32 v%d, v%d, 3, v%d" % (t + 3, t, t + 3))
        a("v_add_u32 v%d, %d, v%d" % (vAW, XPART, t + 3))
        a("v_xor_b32 v%d, 64, v%d" % (t + 3, t + 3))
        a("v_add_u32 v%d, %d, v%d" % (vAW + 1, XPART, t + 3))
        a("v_add_u32 v%d, %d, v%d\nv_add_u32 v%d, %d, v%d" % (vAW + 2, 2 * SLOT1, vAW, vAW + 3, 2 * SLOT1, vAW + 1))
    def g1_reads(self, g):
        c, ks = g >> 2, g & 3
        slot = c & 3
        hi, so = slot >> 1, (slot & 1) * SLOT1
        B = vFR + 16 * (g & 1)
        X0, X1, W0, W1 = B, B + 4, B + 8, B + 12
        ax = vAX + 2 * hi + (ks >> 1)
        xo = so + 32 * (ks & 1)
        aw = vAW + 2 * hi
        t = "g%d" % g
        if self.o["nords"]:
            for x in "abc": self.seen.add(t + x)
            return []
        return [
            ("ds_read_b128 v[%d:%d], v%d offset:%d" % (X0, X0 + 3, ax, xo), t + "a"),
            ("ds_read_b64_tr_b16 v[%d:%d], v%d offset:%d" % (W0, W0 + 1, aw, so + ks * 4096), t + "a"),
            ("ds_read_b64_tr_b16 v[%d:%d], v%d offset:%d" % (W0 + 2, W0 + 3, aw, so + ks * 4096 + 1024), t + "a"),
            ("ds_read_b128 v[%d:%d], v%d offset:%d" % (X1, X1 + 3, ax, xo + 4160), t + "b"),
            ("ds_read_b64_tr_b16 v[%d:%d], v%d offset:%d" % (W1, W1 + 1, aw + 1, so + ks * 4096), t + "c"),
            ("ds_read_b64_tr_b16 v[%d:%d], v%d offset:%d" % (W1 + 2, W1 + 3, aw + 1, so + ks * 4096 + 1024), t + "c"),
        ]
    def g1_mfma(self, g, i):
        B = vFR + 16 * (g & 1)
        ft, mt2 = i >> 1, i & 1
        D = vACC + 16 * (2 * ft + mt2)
        C = "0" if g == 0 else "v[%d:%d]" % (D, D + 15)
        if self.o["nomfma"]: return
        self.a("v_mfma_f32_32x32x16_bf16 v[%d:%d], v[%d:%d], v[%d:%d], %s" % (D, D + 15, B + 8 + 4 * ft, B + 11 + 4 * ft, B + 4 * mt2, B + 3 + 4 * mt2, C))
    def gemm1(self):
        a = self.a
        pc = self.o["poll_c"]
        a.c("==== GEMM1")
        self.wait_vm("c0"); a("s_barrier")
        self.ts()
        for r, tg in self.g1_reads(0): self.dsop(r, tg)
        self.xt_part1()
        for c in range(8):
            pre = []
            if c <= 5:
                dma = self.g1_dma_ops((c + 2) & 3, "c%d" % (c + 2)); pre = [self.chunk_soffsets]
            else:
                dma = self.w2_dma_ops(4 * (c - 6))
            if self.o["nodma"]:
                dma = []; self.seen.add("c%d" % (c + 2))
                for q in range(8): self.seen.add("w2_%d" % q)
            first = []
            if c == 1: first = [self.xt_part2]
            if c == 3: first = [lambda: self.get_nonce("non"), self.publish_A]
            last = []
            if c == pc: last = [lambda: self.load_flagsA(True)]
            if c == pc + 1:
                chk = [lambda: self.poll(lambda: self.load_flagsA(True), [vFLQ, vFLQ + 1, vFLQ + 2, vFLQ + 3, vFL], "poll"), self.g1_epi_loads, self.load_u]
                if c <= 5: last = chk
                else: first = chk
            if c == 2: last = last + [self.w2_setup]
            for f in first + pre: f()
            for ks in range(4):
                g = 4 * c + ks
                t = "g%d" % g
                nxt = self.g1_reads(g + 1) if g < 31 else []
                if ks == 3 and c < 7:
                    for f in last: f()
                    self.wait_ds()
                    if self.o["g1only"]: self.ts()
                    self.wait_vm("c%d" % (c + 1)); a("s_barrier")
                    if self.o["g1only"]: self.ts()
                    for i in range(4):
                        self.g1_mfma(g, i)
                        for r, tg in nxt[2 * i:2 * i + 2]: self.dsop(r, tg)
                else:
                    for i in range(4):
                        if i < 3: self.wait_ds(t + "abc"[i])
                        self.g1_mfma(g, i)
                        for r, tg in nxt[2 * i:2 * i + 2]: self.dsop(r, tg)
                        if ks < 3 and i < 3 and dma: dma.pop(0)()
            assert not dma
        self.ts()
    def g1_epi_loads(self):
        a = self.a
        t = vT
        a("v_and_b32 v%d, 31, v1" % t)
        a("v_lshlrev_b32 v%d, 2, v%d" % (t, t))
        a("s_lshl_b32 s%d, s%d, 1" % (sT3, sMT))
        a("s_and_b32 s%d, s%d, 1" % (sT2, sWAVE))
        a("s_add_u32 s%d, s%d, s%d" % (sT3, sT3, sT2))
        a("s_lshl_b32 s%d, s%d, 8" % (sT3, sT3))
        a("s_add_u32 s%d, s%d, 0x%x" % (sT3, sT3, WS_ST))
        self.vmem("buffer_load_dword v%d, v%d, s[%d:%d], s%d offen sc1" % (vMEAN, t, SRD_WS, SRD_WS + 3, sT3), "epi")
        self.vmem("buffer_load_dword v%d, v%d, s[%d:%d], s%d offen offset:128 sc1" % (vMEAN + 1, t, SRD_WS, SRD_WS + 3, sT3), "epi")
        a("v_lshrrev_b32 v%d, 5, v1" % (t + 1))
        a("v_lshlrev_b32 v%d, 4, v%d" % (t + 1, t + 1))
        a("s_lshl_b32 s%d, s%d, 1" % (sT3, sSL))
        a("s_lshr_b32 s%d, s%d, 1" % (sT2, sWAVE))
        a("s_add_u32 s%d, s%d, s%d" % (sT3, sT3, sT2))
        a("s_lshl_b32 s%d, s%d, 8" % (sT3, sT3))
        a("s_add_u32 s%d, s%d, 0x%x" % (sT3, sT3, WS_CS))
        for k in range(8):
            self.vmem("buffer_load_dwordx4 v[%d:%d], v%d, s[%d:%d], s%d offen offset:%d sc1" % (vCS + 4 * k, vCS + 4 * k + 3, t + 1, SRD_WS, SRD_WS + 3, sT3, 32 * k), "epi")
    def g1_epilogue(self):
        a = self.a
        a.c("==== GEMM1 epilogue: h = relu(acc - mean*colsum) -> fragment order")
        self.wait_vm("epi")
        a("v_lshlrev_b32 v%d, 16, v%d\nv_lshlrev_b32 v%d, 16, v%d" % (vMEAN, vMEAN, vMEAN + 2, vMEAN + 1))
        a("v_lshlrev_b32 v%d, 4, v1" % vT)
        a("s_lshl_b32 s%d, s%d, 1" % (sT3, sMT))
        a("s_and_b32 s%d, s%d, 1" % (sT2, sWAVE))
        a("s_add_u32 s%d, s%d, s%d" % (sT3, sT3, sT2))
        a("s_mul_i32 s%d, s%d, 224" % (sT0, sT3))
        a("s_lshl_b32 s%d, s%d, 1" % (sT1, sSL))
        a("s_lshr_b32 s%d, s%d, 1" % (sT2, sWAVE))
        a("s_add_u32 s%d, s%d, s%d" % (sT1, sT1, sT2))
        a("s_lshl_b32 s%d, s%d, 2" % (sT2, sT1))
        a("s_add_u32 s%d, s%d, s%d" % (sT0, sT0, sT2))
        a("s_lshl_b32 s%d, s%d, 10" % (sT0, sT0))
        a("s_lshl_b32 s%d, s%d, 5" % (sT3, sT3))
        a("s_add_u32 s%d, s%d, s%d" % (sT3, sT3, sT1))
        a("s_lshl_b32 s%d, s%d, 2" % (sT3, sT3))
        a("s_add_u32 s%d, s%d, 0x%x" % (sHO, sT3, WS_FH))
        a("s_add_u32 s%d, s%d, %d" % (sT1, sT0, 112 * 1024))
        a("s_nop 3")
        P = vFR
        n = 0
        for ft in range(2):
            for mt2 in range(2):
                D = vACC + 16 * (2 * ft + mt2)
                for sp in range(2):
                    Q = P + 4 * (n & 7); n += 1
                    for k in range(4):
                        r = 8 * sp + 2 * k
                        a("v_pk_fma_f32 v[%d:%d], v[%d:%d], v[%d:%d], v[%d:%d] op_sel_hi:[1,0,1] neg_lo:[0,1,0] neg_hi:[0,1,0]" %
                          (D + r, D + r + 1, vCS + 16 * ft + r, vCS + 16 * ft + r + 1, vMEAN + 2 * mt2, vMEAN + 2 * mt2 + 1, D + r, D + r + 1))
                    for k in range(4):
                        r = 8 * sp + 2 * k
                        a("v_cvt_pk_bf16_f32 v%d, v%d, v%d" % (Q + k, D + r, D + r + 1))
                    for k in range(4):
                        a("v_pk_max_i16 v%d, v%d, 0" % (Q + k, Q + k))
                    self.vmem("buffer_store_dwordx4 v[%d:%d], v%d, s[%d:%d], s%d offen offset:%d sc1" %
                              (Q, Q + 3, vT, SRD_WS, SRD_WS + 3, sT1 if mt2 else sT0, (2 * ft + sp) * 1024), "h")
    def publish_H(self):
        self.wait_vm("h")
        self.publish(sHO, vT)

    def spare_path(self):
        a = self.a
        a.c("==== spare workgroup: x^T piece, column sums of w1")
        self.chunk_soffsets()
        for f in self.g1_dma_ops(0, "c0", xonly=True): f()
        self.params_load()
        t = vT
        a("s_min_u32 s%d, s%d, 27" % (sT0, sSPARE))
        a("s_lshl_b32 s%d, s%d, 7" % (sT0, sT0))
        a("s_mul_i32 s%d, s%d, %d" % (sT1, sWAVE, 128 * 3584))
        a("s_add_u32 s%d, s%d, s%d" % (sT0, sT0, sT1))
        a("v_lshrrev_b32 v%d, 3, v1" % (vDW))
        a("v_mul_u32_u24 v%d, 3584, v%d" % (vDW, vDW))
        a("v_and_b32 v%d, 7, v1" % (vDW + 1))
        a("v_lshl_add_u32 v%d, v%d, 4, v%d" % (vDW, vDW + 1, vDW))
        for i in range(16):
            self.vmem("buffer_load_dwordx4 v[%d:%d], v%d, s[%d:%d], s%d offen" % (vACC + 4 * i, vACC + 4 * i + 3, vDW, SRD_W1, SRD_W1 + 3, sT0), "cs%d" % i)
            if i < 15: a("s_add_u32 s%d, s%d, %d" % (sT0, sT0, 8 * 3584))
        self.stats()
        self.wait_vm("c0")
        self.xt_part1()
        self.wait_ds()
        a("s_barrier")
        self.xt_part2()
        S = vFR + 8
        for i in range(16):
            self.wait_vm("cs%d" % i)
            for k in range(4):
                d = S + 2 * k if i == 0 else vFR
                a("v_lshlrev_b32 v%d, 16, v%d" % (d, vACC + 4 * i + k))
                a("v_and_b32 v%d, 0xffff0000, v%d" % (d + 1, vACC + 4 * i + k))
                if i: a("v_pk_add_f32 v[%d:%d], v[%d:%d], v[%d:%d]" % (S + 2 * k, S + 2 * k + 1, S + 2 * k, S + 2 * k + 1, vFR, vFR + 1))
        a("s_nop 0")
        for k in range(8):
            a("v_add_f32_dpp v%d, v%d, v%d row_ror:8 row_mask:0xf bank_mask:0xf" % (S + k, S + k, S + k))
        for op in ("v_permlane16_swap_b32", "v_permlane32_swap_b32"):
            for k in range(8): a("v_mov_b32 v%d, v%d" % (vFR + k, S + k))
            a("s_nop 0")
            for k in range(8): a("%s v%d, v%d" % (op, S + k, vFR + k))
            for k in range(8): a("v_add_f32 v%d, v%d, v%d" % (S + k, S + k, vFR + k))
        a("v_and_b32 v%d, 7, v1" % t)
        a("v_lshlrev_b32 v%d, 5, v%d" % (t, t))
        a("s_lshl_b32 s%d, s%d, 8" % (sT0, sWAVE))
        a("s_add_u32 s%d, s%d, %d" % (sT0, sT0, L_CSX))
        a("v_add_u32 v%d, s%d, v%d" % (t, sT0, t))
        self.dsop("ds_write_b128 v%d, v[%d:%d]" % (t, S, S + 3))
        self.dsop("ds_write_b128 v%d, v[%d:%d] offset:16" % (t, S + 4, S + 7))
        self.get_nonce("non")
        self.wait_vm(); self.wait_ds()
        a("s_barrier")
        self.publish_A()
        L = a.newlabel("nocs")
        a("s_cmp_lg_u32 s%d, 1" % sWAVE)
        a("s_cbranch_scc1 %s" % L)
        a("s_cmp_ge_u32 s%d, 28" % sSPARE)
        a("s_cbranch_scc1 %s" % L)
        a("v_and_b32 v%d, 15, v1" % t)
        a("v_lshlrev_b32 v%d, 4, v%d" % (t, t))
        a("v_add_u32 v%d, %d, v%d" % (t + 1, L_CSX, t))
        for k in range(4): a("ds_read_b128 v[%d:%d], v%d offset:%d" % (vFR + 4 * k, vFR + 4 * k + 3, t + 1, 256 * k))
        a("s_waitcnt lgkmcnt(0)")
        for k in range(1, 4):
            for q in range(0, 4, 2):
                a("v_pk_add_f32 v[%d:%d], v[%d:%d], v[%d:%d]" % (vFR + q, vFR + q + 1, vFR + q, vFR + q + 1, vFR + 4 * k + q, vFR + 4 * k + q + 1))
        a("s_lshl_b32 s%d, s%d, 8" % (sT0, sSPARE))
        a("s_add_u32 s%d, s%d, 0x%x" % (sT0, sT0, WS_CS))
        a("s_mov_b64 exec, 0xffff")
        a("buffer_store_dwordx4 v[%d:%d], v%d, s[%d:%d], s%d offen sc1" % (vFR, vFR + 3, t, SRD_WS, SRD_WS + 3, sT0))
        a("s_mov_b64 exec, -1")
        a("s_lshl_b32 s%d, s%d, 2" % (sT0, sSPARE))
        a("s_add_u32 s%d, s%d, 0x%x" % (sT0, sT0, WS_FC))
        a("s_waitcnt vmcnt(0)")
        self.publish(sT0, vT)
        a.label(L)
        self.w2_setup()
        for f in self.w2_dma_ops(0) + self.w2_dma_ops(4): f()
        self.poll(lambda: self.load_flagsA(False), [vFLQ, vFLQ + 1, vFLQ + 2, vFLQ + 3])
        self.load_u()
        self.wait_vm()

    def stage_u(self):
        a = self.a
        a.c("==== stage xn^T (two channels) into LDS")
        self.wait_vm("u")
        R = vFR
        M = vFR + 8
        W = vFR + 16
        for k in range(8):
            a("v_and_b32 v%d, 0xffff0000, v%d" % (R + k, vUL + 8 + k))
            a("v_rcp_f32 v%d, v%d" % (R + k, R + k))
            a("v_lshlrev_b32 v%d, 16, v%d" % (M + k, vUL + 8 + k))
        a("v_lshlrev_b32 v%d, 4, v0" % vT)
        a("v_add_u32 v%d, %d, v%d" % (vT, L_U, vT))
        for ch in range(2):
            for k in range(4):
                s = vUL + 4 * ch + k
                a("v_lshlrev_b32 v%d, 16, v%d\nv_and_b32 v%d, 0xffff0000, v%d" % (W, s, W + 1, s))
                a("v_pk_add_f32 v[%d:%d], v[%d:%d], v[%d:%d] neg_lo:[0,1] neg_hi:[0,1]" % (W, W + 1, W, W + 1, M + 2 * k, M + 2 * k + 1))
                a("v_cvt_pk_bf16_f32 v%d, v%d, v%d" % (s, W, W + 1))
                a("v_lshlrev_b32 v%d, 16, v%d\nv_and_b32 v%d, 0xffff0000, v%d" % (W, s, W + 1, s))
                a("v_pk_mul_f32 v[%d:%d], v[%d:%d], v[%d:%d]" % (W, W + 1, W, W + 1, R + 2 * k, R + 2 * k + 1))
                a("v_cvt_pk_bf16_f32 v%d, v%d, v%d" % (s, W, W + 1))
            self.dsop("ds_write_b128 v%d, v[%d:%d] offset:%d" % (vT, vUL + 4 * ch, vUL + 4 * ch + 3, 512 + 4608 * ch))
        for k in range(4): a("v_mov_b32 v%d, 0" % (W + k))
        a("v_and_b32 v%d, 31, v1" % (vT + 1))
        a("v_lshlrev_b32 v%d, 4, v%d" % (vT + 1, vT + 1))
        a("v_add_u32 v%d, %d, v%d" % (vT + 1, L_U, vT + 1))
        self.dsop("ds_write_b128 v%d, v[%d:%d]" % (vT + 1, W, W + 3))
        self.dsop("ds_write_b128 v%d, v[%d:%d] offset:4608" % (vT + 1, W, W + 3))
        a("v_min_u32 v%d, 8, v1" % (vT + 1))
        a("v_lshlrev_b32 v%d, 2, v%d" % (vT + 1, vT + 1))
        a("v_add_u32 v%d, %d, v%d" % (vT + 1, L_K, vT + 1))
        for ch in range(2):
            self.dsop("ds_write_b32 v%d, v%d offset:%d" % (vT + 1, W, 8320 * ch + 4096))
            self.dsop("ds_write_b32 v%d, v%d offset:%d" % (vT + 1, W, 8320 * ch + 4160 + 4092))
    def cmul(self, d, x, y):
        a = self.a
        a("v_pk_mul_f32 v[%d:%d], v[%d:%d], v[%d:%d] op_sel_hi:[0,1]" % (d, d + 1, x, x + 1, y, y + 1))
        a("v_pk_fma_f32 v[%d:%d], v[%d:%d], v[%d:%d], v[%d:%d] op_sel:[1,1,0] op_sel_hi:[1,0,1] neg_lo:[0,1,0]" % (d, d + 1, x, x + 1, y, y + 1, d, d + 1))
    def kgen(self, mid=None):
        a = self.a
        a.c("==== kernel generation: K[l] = Re sum_n CB_n z_n^bf16(l)")
        AD = 128
        Z1, Z16, Z256, CB = 144, 146, 148, 150
        WR = 152
        VV = 186
        PK = 190
        t = vT
        a("s_lshl_b32 s%d, s%d, 14" % (sT0, sWAVE))
        a("s_add_u32 s%d, s%d, %d" % (sT0, sT0, 2 * SLOT))
        a("v_lshl_add_u32 v%d, v1, 2, s%d" % (AD, sT0))
        for k in range(1, 16): a("v_xor_b32 v%d, %d, v%d" % (AD + k, 16 * k, AD))
        a("s_waitcnt lgkmcnt(0)"); self.ds = []
        a("s_lshr_b32 s%d, s%d, 1" % (sT1, sWAVE))
        a("s_lshl_b32 s%d, s%d, 4" % (sT1, sT1))
        a("s_lshr_b32 s%d, s%d, s%d" % (sT2, sLDT, sT1))
        a("s_lshl_b32 s%d, s%d, 16" % (sT2, sT2))
        a("s_lshr_b32 s%d, s%d, s%d" % (sDSK, sDSK, sT1))
        a("s_lshl_b32 s%d, s%d, 16" % (sDSK, sDSK))
        a("v_mov_b32 v%d, 0x3fb8aa3b" % t)
        a("v_mul_f32 v%d, s%d, v%d" % (t, sT2, t))
        a("v_exp_f32 v%d, v%d" % (t, t))
        a("s_nop 0")
        a("v_cvt_pk_bf16_f32 v%d, v%d, v%d" % (t, t, t))
        a("v_and_b32 v%d, 0xffff0000, v%d" % (t, t))
        for k in range(4): a("v_mul_f32 v%d, v%d, v%d" % (vPAR + k, t, vPAR + k))
        a("v_mul_f32 v%d, 0x3fb8aa3b, v%d" % (vPAR, vPAR))
        a("v_mul_f32 v%d, 0.15915494, v%d" % (vPAR + 1, vPAR + 1))
        for Z, sc in ((Z1, None), (Z16, "0x41800000"), (Z256, "0x43800000")):
            if sc:
                a("v_mul_f32 v%d, %s, v%d\nv_mul_f32 v%d, %s, v%d" % (t, sc, vPAR, t + 1, sc, vPAR + 1))
                e, p = t, t + 1
            else: e, p = vPAR, vPAR + 1
            a("v_fract_f32 v%d, v%d" % (t + 1, p))
            a("v_exp_f32 v%d, v%d" % (t, e))
            a("v_cos_f32 v%d, v%d" % (Z, t + 1))
            a("v_sin_f32 v%d, v%d" % (Z + 1, t + 1))
            a("s_nop 0")
            a("v_pk_mul_f32 v[%d:%d], v[%d:%d], v[%d:%d] op_sel_hi:[1,0]" % (Z, Z + 1, Z, Z + 1, t, t + 1))
        self.cmul(WR, vPAR + 4, vPAR + 2)
        npk = [0]
        def put(row, src, neg):
            p = PK + (npk[0] & 3); npk[0] += 1
            a("v_cvt_pk_bf16_f32 v%d, v%d, %sv%d" % (p, src, "-" if neg else "", src + 1))
            self.dsop("ds_write_b32 v%d, v%d offset:%d" % (AD + (row & 15), p, row * 256))
        a("v_mov_b32 v%d, 0x3f80" % PK); npk[0] = 1
        self.dsop("ds_write_b32 v%d, v%d" % (AD, PK))
        put(16, WR, False)
        put(1, Z16, True)
        prev = Z16
        for r in range(1, 17):
            self.cmul(WR + 2 * r, WR + 2 * (r - 1), Z1)
            if 2 <= r <= 15:
                cur = VV + 2 * (r & 1)
                self.cmul(cur, prev, Z16); prev = cur
            if r < 16: put(16 + r, WR + 2 * r, False)
            if 2 <= r <= 15: put(r, prev, True)
            if mid and r == 8:
                self.ts(); mid(); self.ts()
        base = {1: 32, 2: 41, 3: 46, 4: 51, 5: 54, 6: 57, 7: 60}
        loc = {r: WR + 2 * r for r in range(17)}
        for T in range(1, 8):
            k = [0, 1, 2, 2, 3, 3, 3, 3][T]
            for n, r in enumerate(range(0, 17, 1 << k)):
                alt = (WR + 2 * (r + 1)) if r < 16 else VV
                dst = alt if loc[r] == WR + 2 * r else WR + 2 * r
                self.cmul(dst, loc[r], Z256); loc[r] = dst
                put(base[T] + n, dst, False)
        self.ts()
        KA = 64
        BF = 144
        AF = 160
        a("v_and_b32 v%d, 15, v1" % t)
        a("v_lshrrev_b32 v%d, 4, v1" % (t + 1))
        def addr(dst, rowreg):
            a("v_and_b32 v%d, 15, v%d" % (t + 5, rowreg))
            a("v_xor_b32 v%d, v%d, v%d" % (t + 5, t + 5, t + 1))
            a("v_lshlrev_b32 v%d, 4, v%d" % (t + 5, t + 5))
            a("v_lshl_add_u32 v%d, v%d, 8, v%d" % (t + 5, rowreg, t + 5))
            a("v_add_u32 v%d, s%d, v%d" % (dst, sT0, t + 5))
        AA = 96
        addr(AA, t)
        a("v_add_u32 v%d, 4096, v%d" % (AA + 1, AA))
        rho = {}
        for k in (1, 2, 3):
            a("v_bfe_u32 v%d, v%d, %d, 1" % (t + 2, t, k))
            a("v_add3_u32 v%d, v%d, v%d, %d" % (t + 2, t + 2, t, (1 << (k - 1)) - 1))
            a("v_lshrrev_b32 v%d, %d, v%d" % (t + 2, k, t + 2))
            for T in range(1, 8):
                if [0, 1, 2, 2, 3, 3, 3, 3][T] != k: continue
                a("v_add_u32 v%d, %d, v%d" % (t + 3, base[T], t + 2))
                addr(AA + 1 + T, t + 3)
        self.wait_ds()
        for ks in range(4):
            if ks: a("v_xor_b32 v%d, %d, v%d" % (t + 2, 64 * ks, AA))
            self.dsop("ds_read_b128 v[%d:%d], v%d" % (BF + 4 * ks, BF + 4 * ks + 3, t + 2 if ks else AA), "kb")
        seq = [(T, ks) for ks in range(4) for T in range(8)]
        def rd(n):
            T, ks = seq[n]
            r = AA + 1 + T
            if ks:
                a("v_xor_b32 v%d, %d, v%d" % (r, 64 * (ks ^ (ks - 1)), r))
            self.dsop("ds_read_b128 v[%d:%d], v%d" % (AF + 4 * (n & 7), AF + 4 * (n & 7) + 3, r), "ka%d" % n)
        for n in range(8): rd(n)
        for n in range(32):
            T, ks = seq[n]
            self.wait_ds("ka%d" % n)
            D = KA + 4 * T
            a("v_mfma_f32_16x16x32_bf16 v[%d:%d], v[%d:%d], v[%d:%d], %s" % (D, D + 3, AF + 4 * (n & 7), AF + 4 * (n & 7) + 3, BF + 4 * ks, BF + 4 * ks + 3,
                                                                          "0" if ks == 0 else "v[%d:%d]" % (D, D + 3)))
            if n + 8 < 32: rd(n + 8)
        a("v_lshl_add_u32 v%d, v1, 4, s%d" % (t, sT0))
        a("v_xor_b32 v%d, 16384, v%d" % (t + 1, t))
        Lh, Lj = a.newlabel("khi"), a.newlabel("kj")
        a("s_and_b32 s%d, s%d, 1" % (sT1, sWAVE))
        a("s_cmp_lg_u32 s%d, 0" % sT1)
        a("s_nop 3")
        a("s_cbranch_scc1 %s" % Lh)
        for k in range(4): a("ds_write_b128 v%d, v[%d:%d] offset:%d" % (t, KA + 16 + 4 * k, KA + 19 + 4 * k, 1024 * k))
        a("s_branch %s" % Lj)
        a.label(Lh)
        for k in range(4): a("ds_write_b128 v%d, v[%d:%d] offset:%d" % (t, KA + 4 * k, KA + 3 + 4 * k, 1024 * k))
        a("s_nop 0")
        for k in range(16): a("v_mov_b32 v%d, v%d" % (KA + k, KA + 16 + k))
        a.label(Lj)
        a("s_waitcnt lgkmcnt(0)"); self.ds = []
        a("s_barrier")
        for k in range(4): self.dsop("ds_read_b128 v[%d:%d], v%d offset:%d" % (KA + 16 + 4 * k, KA + 19 + 4 * k, t + 1, 1024 * k), "kx%d" % k)
        a("s_lshr_b32 s%d, s%d, 1" % (sT2, sWAVE))
        a("s_mul_i32 s%d, s%d, 8320" % (sT2, sT2))
        a("s_lshl_b32 s%d, s%d, 11" % (sT1, sT1))
        a("s_sub_u32 s%d, s%d, s%d" % (sT2, sT2, sT1))
        a("s_add_u32 s%d, s%d, %d" % (sT2, sT2, L_K + 4088 - 1536))
        a("v_and_b32 v%d, 15, v1" % (t + 2))
        a("v_lshlrev_b32 v%d, 5, v%d" % (t + 2, t + 2))
        a("v_lshrrev_b32 v%d, 4, v1" % (t + 3))
        a("v_lshl_add_u32 v%d, v%d, 3, v%d" % (t + 2, t + 3, t + 2))
        a("v_sub_u32 v%d, s%d, v%d" % (t + 2, sT2, t + 2))
        for k in range(4):
            D = KA + 4 * k
            self.wait_ds("kx%d" % k)
            a("v_pk_add_f32 v[%d:%d], v[%d:%d], v[%d:%d]" % (D, D + 1, D, D + 1, D + 16, D + 17))
            a("v_pk_add_f32 v[%d:%d], v[%d:%d], v[%d:%d]" % (D + 2, D + 3, D + 2, D + 3, D + 18, D + 19))
            Q = AF + 4 * k
            a("v_cvt_pk_bf16_f32 v%d, v%d, v%d" % (Q, D + 3, D + 2))
            a("v_cvt_pk_bf16_f32 v%d, v%d, v%d" % (Q + 1, D + 1, D))
            a("v_cvt_pk_bf16_f32 v%d, v%d, v%d" % (Q + 2, D + 2, D + 1))
            o = 512 * (3 - k)
            self.dsop("ds_write_b64 v%d, v[%d:%d] offset:%d" % (t + 2, Q, Q + 1, o))
            self.dsop("ds_write_b32 v%d, v%d offset:%d" % (t + 2, Q + 2, o + 4160))
            self.dsop("ds_write_b16_d16_hi v%d, v%d offset:%d" % (t + 2, Q + 1, o + 4164))
            self.dsop("ds_write_b16 v%d, v%d offset:%d" % (t + 2, Q, o + 4158))
    def conv(self):
        a = self.a
        a.c("==== causal convolution, Hankel(K) x windows(u)")
        t = vT
        YA = 64
        AA = 96
        FA_, FB_ = 128, 160
        a("s_lshr_b32 s%d, s%d, 1" % (sT0, sWAVE))
        a("s_and_b32 s%d, s%d, 1" % (sT1, sWAVE))
        a("v_and_b32 v%d, 15, v1" % t)
        a("v_lshrrev_b32 v%d, 4, v1" % (t + 1))
        a("v_and_b32 v%d, 1, v1" % (t + 2))
        a("v_mul_u32_u24 v%d, %d, v%d" % (t + 2, 4160 - 2, t + 2))
        a("v_lshl_add_u32 v%d, v%d, 1, v%d" % (t + 2, t, t + 2))
        a("v_lshlrev_b32 v%d, 4, v%d" % (t + 3, t + 1))
        a("v_sub_u32 v%d, v%d, v%d" % (t + 2, t + 3, t + 2))
        a("s_mul_i32 s%d, s%d, 8320" % (sT2, sT0))
        a("s_lshl_b32 s%d, s%d, 8" % (sT3, sT1))
        a("s_sub_u32 s%d, s%d, s%d" % (sT2, sT2, sT3))
        a("s_add_u32 s%d, s%d, %d" % (sT2, sT2, L_K + 4160 + 4060 - 192 - 512))
        a("v_add_u32 v%d, s%d, v%d" % (AA, sT2, t + 2))
        for ap in range(1, 4): a("v_subrev_u32 v%d, %d, v%d" % (AA + ap, 1024 * ap, AA))
        a("v_lshl_add_u32 v%d, v%d, 5, v%d" % (t + 2, t, t + 3))
        a("s_mul_i32 s%d, s%d, 4608" % (sT2, sT0))
        a("s_sub_u32 s%d, s%d, s%d" % (sT2, sT2, sT3))
        a("s_add_u32 s%d, s%d, %d" % (sT2, sT2, L_U + 512 - 32 - 192))
        a("v_add_u32 v%d, s%d, v%d" % (AA + 4, sT2, t + 2))
        self.wait_ds()
        a("s_barrier")
        self.ts()
        w2 = self.w2_dma_ops(8) + self.w2_dma_ops(12)
        def rdA(it, aa):
            o = 16 * (3 - it) + 128 * (1 - (aa & 1))
            self.dsop("ds_read2_b32 v[%d:%d], v%d offset0:%d offset1:%d" % (FA_ + 4 * aa, FA_ + 4 * aa + 1, AA + (aa >> 1), o, o + 1))
            self.dsop("ds_read2_b32 v[%d:%d], v%d offset0:%d offset1:%d" % (FA_ + 4 * aa + 2, FA_ + 4 * aa + 3, AA + (aa >> 1), o + 2, o + 3), "A%d_%d" % (it, aa))
        def rdB(it, b):
            self.dsop("ds_read_b128 v[%d:%d], v%d offset:%d" % (FB_ + 4 * b, FB_ + 4 * b + 3, AA + 4, 512 * b + 64 * (3 - it)), "B%d_%d" % (it, b))
        rdA(0, 0)
        for b in range(7, -1, -1): rdB(0, b)
        rdA(0, 1)
        need = self.wait_ds
        for it in range(4):
            for aa in range(8):
                for b in range(7 - aa, -1, -1):
                    need("A%d_%d" % (it, aa)); need("B%d_%d" % (it, b))
                    D = YA + 4 * (aa + b)
                    a("v_mfma_f32_16x16x32_bf16 v[%d:%d], v[%d:%d], v[%d:%d], %s" % (D, D + 3, FA_ + 4 * aa, FA_ + 4 * aa + 3, FB_ + 4 * b, FB_ + 4 * b + 3,
                                                                                  "0" if (it == 0 and aa == 0) else "v[%d:%d]" % (D, D + 3)))
                    if b == 7 - aa:
                        if it == 0 and aa + 2 < 8: rdA(0, aa + 2)
                        if it < 3: rdB(it + 1, b)
                    if b == 0 and it < 3: rdA(it + 1, aa)
                    if b == 1 and w2 and aa < 4: w2.pop(0)()
        assert not w2
        self.ts()
        a("v_lshlrev_b32 v%d, 4, v1" % t)
        a("s_lshl_b32 s%d, s%d, 12" % (sT2, sWAVE))
        a("s_add_u32 s%d, s%d, %d" % (sT2, sT2, L_K))
        a("v_add_u32 v%d, s%d, v%d" % (t + 2, sT2, t))
        a("s_xor_b32 s%d, s%d, 1" % (sT2, sWAVE))
        a("s_lshl_b32 s%d, s%d, 12" % (sT2, sT2))
        a("s_add_u32 s%d, s%d, %d" % (sT2, sT2, L_K))
        a("v_add_u32 v%d, s%d, v%d" % (t + 3, sT2, t))
        a("v_and_b32 v%d, 15, v1" % (t + 4))
        a("v_lshlrev_b32 v%d, 5, v%d" % (t + 4, t + 4))
        a("v_lshl_add_u32 v%d, v%d, 3, v%d" % (t + 4, t + 1, t + 4))
        a("s_mul_i32 s%d, s%d, 4608" % (sT2, sT0))
        a("s_lshl_b32 s%d, s%d, 11" % (sT3, sT1))
        a("s_add_u32 s%d, s%d, s%d" % (sT2, sT2, sT3))
        a("s_add_u32 s%d, s%d, %d" % (sT2, sT2, L_U + 512))
        a("v_add_u32 v%d, s%d, v%d" % (t + 5, sT2, t + 4))
        for k in range(4): self.dsop("ds_read_b64 v[%d:%d], v%d offset:%d" % (FA_ + 2 * k, FA_ + 2 * k + 1, t + 5, 512 * k))
        a("s_barrier")
        Lh, Lj = a.newlabel("yhi"), a.newlabel("yj")
        a("s_cmp_lg_u32 s%d, 0" % sT1)
        a("s_cbranch_scc1 %s" % Lh)
        for k in range(4): a("ds_write_b128 v%d, v[%d:%d] offset:%d" % (t + 2, YA + 16 + 4 * k, YA + 19 + 4 * k, 1024 * k))
        a("s_branch %s" % Lj)
        a.label(Lh)
        for k in range(4): a("ds_write_b128 v%d, v[%d:%d] offset:%d" % (t + 2, YA + 4 * k, YA + 3 + 4 * k, 1024 * k))
        a("s_nop 0")
        for k in range(16): a("v_mov_b32 v%d, v%d" % (YA + k, YA + 16 + k))
        a.label(Lj)
        a("s_waitcnt lgkmcnt(0)"); self.ds = []
        a("s_barrier")
        for k in range(4): self.dsop("ds_read_b128 v[%d:%d], v%d offset:%d" % (YA + 16 + 4 * k, YA + 19 + 4 * k, t + 3, 1024 * k), "yx%d" % k)
        a("s_lshl_b32 s%d, s2, 1" % sT2)
        a("s_add_u32 s%d, s%d, s%d" % (sT2, sT2, sT0))
        a("s_lshl_b32 s%d, s%d, 9" % (sT0, sT1))
        a("s_add_u32 s%d, s%d, s%d" % (sT0, sT0, sT2))
        a("s_lshl_b32 s%d, s%d, 2" % (sT0, sT0))
        a("s_add_u32 s%d, s%d, 0x%x" % (sT0, sT0, WS_FY))
        a("s_lshl_b32 s%d, s%d, 12" % (sT2, sT2))
        a("s_add_u32 s%d, s%d, s%d" % (sT2, sT2, sT3))
        a("s_add_u32 s%d, s%d, 0x%x" % (sT2, sT2, WS_YT))
        W = FB_
        for k in range(4):
            D = YA + 4 * k
            for q in range(2):
                a("v_lshlrev_b32 v%d, 16, v%d\nv_and_b32 v%d, 0xffff0000, v%d" % (W + 2 * q, FA_ + 2 * k + q, W + 2 * q + 1, FA_ + 2 * k + q))
            for q in range(4): a("v_fmac_f32 v%d, s%d, v%d" % (D + q, sDSK, W + q))
            self.wait_ds("yx%d" % k)
            a("v_pk_add_f32 v[%d:%d], v[%d:%d], v[%d:%d]" % (D, D + 1, D, D + 1, D + 16, D + 17))
            a("v_pk_add_f32 v[%d:%d], v[%d:%d], v[%d:%d]" % (D + 2, D + 3, D + 2, D + 3, D + 18, D + 19))
            Q = W + 4 + 2 * k
            a("v_cvt_pk_bf16_f32 v%d, v%d, v%d\nv_cvt_pk_bf16_f32 v%d, v%d, v%d" % (Q, D, D + 1, Q + 1, D + 2, D + 3))
            self.vmem("buffer_store_dwordx2 v[%d:%d], v%d, s[%d:%d], s%d offen offset:%d sc1" % (Q, Q + 1, t + 4, SRD_WS, SRD_WS + 3, sT2, 512 * k), "y")
        a("s_mov_b32 s%d, s%d" % (sLDT, sT0))
    def gemm2(self):
        a = self.a
        a.c("==== GEMM2")
        t = vT
        HR, NH = 128, 10
        WF = 208
        EX, EY, ESD = 224, 232, 240
        def ld_flagsH():
            a("v_min_u32 v%d, 6, v1" % t)
            a("v_lshlrev_b32 v%d, 2, v%d" % (t, t))
            a("s_lshl_b32 s%d, s%d, 5" % (sT3, sMB))
            a("s_mul_i32 s%d, s%d, 7" % (sT2, sWAVE))
            a("s_add_u32 s%d, s%d, s%d" % (sT3, sT3, sT2))
            a("s_lshl_b32 s%d, s%d, 2" % (sT3, sT3))
            a("s_add_u32 s%d, s%d, 0x%x" % (sT3, sT3, WS_FH))
            self.vmem("buffer_load_dword v%d, v%d, s[%d:%d], s%d offen sc1" % (vFL, t, SRD_WS, SRD_WS + 3, sT3), "poll")
        self.ts()
        self.poll(ld_flagsH, [vFL])
        self.publish(sLDT, vT)
        self.ts()
        vH0, vH1 = vFLQ, vFLQ + 1
        a("v_lshlrev_b32 v%d, 4, v1" % vH0)
        a("v_add_u32 v%d, %d, v%d" % (vH1, 112 * 1024, vH0))
        a("s_mul_i32 s%d, s%d, 224" % (sHO, sMB))
        a("s_mul_i32 s%d, s%d, 28" % (sT2, sWAVE))
        a("s_add_u32 s%d, s%d, s%d" % (sHO, sHO, sT2))
        a("s_lshl_b32 s%d, s%d, 10" % (sHO, sHO))
        def ldH(s):
            R = HR + 8 * (s % NH)
            if s and s % 4 == 0: a("s_add_u32 s%d, s%d, 4096" % (sHO, sHO))
            self.vmem("buffer_load_dwordx4 v[%d:%d], v%d, s[%d:%d], s%d offen offset:%d sc1" % (R, R + 3, vH0, SRD_WS, SRD_WS + 3, sHO, 1024 * (s & 3)), "h%d" % s)
            self.vmem("buffer_load_dwordx4 v[%d:%d], v%d, s[%d:%d], s%d offen offset:%d sc1" % (R + 4, R + 7, vH1, SRD_WS, SRD_WS + 3, sHO, 1024 * (s & 3)), "h%d" % s)
        def rdW(s):
            slot = (s >> 2) & 3
            ad = vA2 + 2 * (slot >> 1)
            o = (slot & 1) * SLOT + (s & 3) * 2048
            R = WF + 8 * (s & 1)
            return [("ds_read_b64_tr_b16 v[%d:%d], v%d offset:%d" % (R + 4 * dt + 2 * tt, R + 4 * dt + 2 * tt + 1, ad + dt, o + 1024 * tt), "W%d_%d" % (s, dt))
                    for dt in range(2) for tt in range(2)]
        AH = NH - 1
        for s in range(AH): ldH(s)
        need = self.wait_vm
        need("w2_0")
        for r, tg in rdW(0): self.dsop(r, tg)
        def epi_prefetch1():
            a("v_and_b32 v%d, 15, v1" % t)
            a("v_lshrrev_b32 v%d, 4, v1" % (t + 1))
            a("s_lshl_b32 s%d, s%d, 2" % (sT3, sMB))
            a("s_add_u32 s%d, s%d, s%d" % (sT3, sT3, sWAVE))
            a("s_lshl_b32 s%d, s%d, 6" % (sT2, sT3))
            a("s_add_u32 s%d, s%d, 0x%x" % (sT2, sT2, WS_ST))
            a("v_lshlrev_b32 v%d, 2, v%d" % (t + 2, t))
            self.vmem("buffer_load_dword v%d, v%d, s[%d:%d], s%d offen sc1" % (ESD, t + 2, SRD_WS, SRD_WS + 3, sT2), "ex")
            a("v_lshlrev_b32 v%d, 10, v%d" % (t, t))
            a("v_lshl_add_u32 v%d, v%d, 4, v%d" % (ESD + 1, t + 1, t))
            a("s_lshl_b32 s%d, s%d, 14" % (sT3, sT3))
            a("s_lshl_b32 s%d, s%d, 7" % (sT2, sDB))
            a("s_add_u32 s%d, s%d, s%d" % (sSOX, sT3, sT2))
            self.vmem("buffer_load_dwordx4 v[%d:%d], v%d, s[%d:%d], s%d offen" % (EX, EX + 3, ESD + 1, SRD_X, SRD_X + 3, sSOX), "ex")
            self.vmem("buffer_load_dwordx4 v[%d:%d], v%d, s[%d:%d], s%d offen offset:64" % (EX + 4, EX + 7, ESD + 1, SRD_X, SRD_X + 3, sSOX), "ex")
            ld_flagsY()
        def ld_flagsY():
            a("v_lshlrev_b32 v%d, 2, v1" % t)
            a("s_lshr_b32 s%d, s%d, 4" % (sT3, sMB))
            a("s_lshl_b32 s%d, s%d, 3" % (sT3, sT3))
            a("s_add_u32 s%d, s%d, s%d" % (sT3, sT3, sDB))
            a("s_lshl_b32 s%d, s%d, 8" % (sT3, sT3))
            a("s_add_u32 s%d, s%d, 0x%x" % (sT3, sT3, WS_FY))
            self.vmem("buffer_load_dword v%d, v%d, s[%d:%d], s%d offen sc1" % (vFL, t, SRD_WS, SRD_WS + 3, sT3), "polly")
        def epi_prefetch2():
            self.poll(ld_flagsY, [vFL], "polly")
            a("v_lshrrev_b32 v%d, 2, v0" % t)
            a("v_and_b32 v%d, 3, v0" % (t + 1))
            a("v_lshlrev_b32 v%d, 4, v%d" % (t + 1, t + 1))
            a("v_lshl_add_u32 v%d, v%d, 12, v%d" % (t + 2, t, t + 1))
            a("v_mul_u32_u24 v%d, 144, v%d" % (t, t))
            a("v_add3_u32 v%d, v%d, v%d, s%d" % (ESD + 2, t, t + 1, sSOW))
            a("s_lshl_b32 s%d, s%d, 18" % (sT3, sDB))
            a("s_lshl_b32 s%d, s%d, 7" % (sT2, sMB))
            a("s_add_u32 s%d, s%d, s%d" % (sT3, sT3, sT2))
            a("s_add_u32 s%d, s%d, 0x%x" % (sT3, sT3, WS_YT))
            self.vmem("buffer_load_dwordx4 v[%d:%d], v%d, s[%d:%d], s%d offen sc1" % (EY, EY + 3, t + 2, SRD_WS, SRD_WS + 3, sT3), "ey")
            self.vmem("buffer_load_dwordx4 v[%d:%d], v%d, s[%d:%d], s%d offen offset:64 sc1" % (EY + 4, EY + 7, t + 2, SRD_WS, SRD_WS + 3, sT3), "ey")
        a("s_mov_b32 s%d, %d" % (sSOW, L_YS))
        for s in range(28):
            R = HR + 8 * (s % NH)
            Wr = WF + 8 * (s & 1)
            nxt = []
            if s + 1 < 28:
                need("w2_%d" % (s + 1))
                nxt = rdW(s + 1)
            need("h%d" % s)
            for i in range(4):
                dt, tt = i >> 1, i & 1
                if tt == 0: self.wait_ds("W%d_%d" % (s, dt))
                D = vACC + 16 * i
                a("v_mfma_f32_32x32x16_bf16 v[%d:%d], v[%d:%d], v[%d:%d], %s" % (D, D + 15, Wr + 4 * dt, Wr + 4 * dt + 3, R + 4 * tt, R + 4 * tt + 3,
                                                                              "0" if s == 0 else "v[%d:%d]" % (D, D + 15)))
                if i < 2:
                    for r, tg in nxt[2 * i:2 * i + 2]: self.dsop(r, tg)
            if s & 1 and s + 15 < 28:
                for f in self.w2_dma_ops(s + 15, 2): f()
            if s + AH < 28: ldH(s + AH)
            if s == 17: epi_prefetch1()
            if s == 21: epi_prefetch2()
        self.ts()
        a.c("==== reduction over the four k-quarters and output")
        need("ey")
        self.dsop("ds_write_b128 v%d, v[%d:%d]" % (ESD + 2, EY, EY + 3))
        self.dsop("ds_write_b128 v%d, v[%d:%d] offset:64" % (ESD + 2, EY + 4, EY + 7))
        a("v_and_b32 v%d, 31, v1" % t)
        a("v_lshrrev_b32 v%d, 5, v1" % (t + 1))
        a("v_and_b32 v%d, 15, v1" % (t + 2))
        a("v_xor_b32 v%d, v%d, v%d" % (t + 1, t + 1, t + 2))
        a("v_lshlrev_b32 v%d, 4, v%d" % (t + 1, t + 1))
        a("v_lshl_add_u32 v%d, v%d, 8, v%d" % (t + 1, t, t + 1))
        a("s_lshl_b32 s%d, s%d, 14" % (sT3, sWAVE))
        a("v_add_u32 v%d, s%d, v%d" % (HR, sT3, t + 1))
        for k in range(1, 8): a("v_xor_b32 v%d, %d, v%d" % (HR + k, 32 * k, HR))
        a("s_barrier")
        for i in range(4):
            dt, tt = i >> 1, i & 1
            for g in range(4):
                D = vACC + 16 * i + 4 * g
                self.dsop("ds_write_b128 v%d, v[%d:%d] offset:%d" % (HR + 4 * dt + g, D, D + 3, 8192 * tt))
        a("v_lshrrev_b32 v%d, 4, v1" % (t + 1))
        a("v_lshlrev_b32 v%d, 1, v%d" % (t + 3, t + 1))
        a("v_xor_b32 v%d, v%d, v%d" % (t + 3, t + 3, t + 2))
        a("v_lshlrev_b32 v%d, 4, v%d" % (t + 3, t + 3))
        a("v_lshl_add_u32 v%d, v%d, 8, v%d" % (t + 3, t + 2, t + 3))
        a("s_lshl_b32 s%d, s%d, 12" % (sT3, sWAVE))
        a("v_add_u32 v%d, s%d, v%d" % (HR + 8, sT3, t + 3))
        a("v_xor_b32 v%d, 16, v%d\nv_xor_b32 v%d, 128, v%d\nv_xor_b32 v%d, 144, v%d" % (HR + 9, HR + 8, HR + 10, HR + 8, HR + 11, HR + 8))
        a("v_bfe_u32 v%d, v1, 2, 2" % (t + 3))
        a("v_lshl_add_u32 v%d, v%d, 3, v%d" % (t + 3, t + 1, t + 3))
        a("v_mul_u32_u24 v%d, 144, v%d" % (t + 3, t + 3))
        a("v_and_b32 v%d, 3, v1" % (t + 4))
        a("v_lshl_add_u32 v%d, v%d, 3, v%d" % (t + 3, t + 4, t + 3))
        a("s_lshl_b32 s%d, s%d, 5" % (sT3, sWAVE))
        a("s_add_u32 s%d, s%d, %d" % (sT3, sT3, L_YS))
        a("v_add_u32 v%d, s%d, v%d" % (t + 3, sT3, t + 3))
        a("v_and_b32 v%d, 0xffff0000, v%d" % (ESD, ESD))
        a("v_rcp_f32 v%d, v%d" % (ESD, ESD))
        T1 = HR + 16
        for k in range(8):
            a("v_lshlrev_b32 v%d, 16, v%d\nv_and_b32 v%d, 0xffff0000, v%d" % (T1 + 2 * k, EX + k, T1 + 2 * k + 1, EX + k))
        self.wait_ds()
        a("s_barrier")
        for j in range(4):
            self.dsop("ds_read_b64_tr_b16 v[%d:%d], v%d offset:%d" % (EY + 2 * j, EY + 2 * j + 1, t + 3, ((j & 1) * 4 + (j >> 1) * 32) * 144), "yt")
        for P in range(4):
            for j in range(4):
                self.dsop("ds_read_b128 v[%d:%d], v%d offset:%d" % (vACC + 16 * P + 4 * j, vACC + 16 * P + 4 * j + 3, HR + 8 + j, 16384 * P), "p%d" % P)
        self.wait_ds("yt")
        W = HR + 32
        for k in range(8):
            a("v_lshlrev_b32 v%d, 16, v%d\nv_and_b32 v%d, 0xffff0000, v%d" % (W, EY + k, W + 1, EY + k))
            a("v_pk_add_f32 v[%d:%d], v[%d:%d], v[%d:%d]" % (T1 + 2 * k, T1 + 2 * k + 1, T1 + 2 * k, T1 + 2 * k + 1, W, W + 1))
        for P in range(1, 4):
            self.wait_ds("p%d" % P)
            for k in range(8):
                a("v_pk_add_f32 v[%d:%d], v[%d:%d], v[%d:%d]" % (vACC + 2 * k, vACC + 2 * k + 1, vACC + 2 * k, vACC + 2 * k + 1, vACC + 16 * P + 2 * k, vACC + 16 * P + 2 * k + 1))
        for k in range(8):
            a("v_pk_fma_f32 v[%d:%d], v[%d:%d], v[%d:%d], v[%d:%d] op_sel_hi:[1,0,1]" % (T1 + 2 * k, T1 + 2 * k + 1, vACC + 2 * k, vACC + 2 * k + 1, ESD, ESD + 1, T1 + 2 * k, T1 + 2 * k + 1))
            a("v_cvt_pk_bf16_f32 v%d, v%d, v%d" % (EX + k, T1 + 2 * k, T1 + 2 * k + 1))
        self.ts()
        self.vmem("buffer_store_dwordx4 v[%d:%d], v%d, s[%d:%d], s%d offen" % (EX, EX + 3, ESD + 1, SRD_OUT, SRD_OUT + 3, sSOX))
        self.vmem("buffer_store_dwordx4 v[%d:%d], v%d, s[%d:%d], s%d offen offset:64" % (EX + 4, EX + 7, ESD + 1, SRD_OUT, SRD_OUT + 3, sSOX))

    def finish(self):
        a = self.a
        if self.diag:
            a("s_waitcnt vmcnt(0)")
            self.ts()
            a("s_memrealtime s[%d:%d]" % (sM0, sM1)); a("s_waitcnt lgkmcnt(0)"); a("s_mov_b32 s98, s%d" % sM0)
            a("s_cmp_lg_u32 s%d, 0" % sWAVE); a("s_cbranch_scc1 L_END")
            if self.o["dbgts"]:
                a("s_cmp_lg_u32 s2, %d" % self.o["dbgts"]); a("s_cbranch_scc1 L_END")
                a("s_mov_b64 exec, 1")
                sel = [1, 3, 4, 5, 6, 7, 9, 10, 11, 12, 13, 14, 15, 16]
                for n, k in enumerate(sel):
                    a("s_sub_u32 s%d, s%d, s%d" % (sT0, sTS + k, sTS))
                    a("v_mov_b32 v2, s%d" % sT0)
                    a("buffer_store_dword v2, off, s[%d:%d], 0 offset:%d" % (SRD_DBG, SRD_DBG + 3, 4 * n + 4))
                a("s_sub_u32 s%d, s98, s99" % sT0)
                a("v_mov_b32 v2, s%d" % sT0)
                a("buffer_store_dword v2, off, s[%d:%d], 0 offset:60" % (SRD_DBG, SRD_DBG + 3))
                a("s_waitcnt vmcnt(0)")
                a("s_branch L_END")
            a("s_lshl_b32 s%d, s2, 7" % sT0); a("s_add_u32 s%d, s%d, 0x%x" % (sT0, sT0, WS_TS))
            a("s_mov_b64 exec, 1")
            for k in range(20):
                a("v_mov_b32 v2, s%d" % (sTS + k))
                a("buffer_store_dword v2, off, s[%d:%d], s%d offset:%d" % (SRD_WS, SRD_WS + 3, sT0, 4 * k))
            a("s_waitcnt vmcnt(0)")
        a.label("L_END")
        a("s_endpgm")

    def build(self):
        a = self.a
        if self.diag:
            for k in range(20): a("s_mov_b32 s%d, 0" % (sTS + k))
        self.setup()
        a("s_cmp_eq_u32 s%d, 7" % sDB)
        a("s_cbranch_scc1 L_SPARE")
        vm0, nts0 = list(self.vm), self.nts
        self.chunk_soffsets()
        for f in self.g1_dma_ops(0, "c0"): f()
        self.params_load()
        self.chunk_soffsets()
        for f in self.g1_dma_ops(1, "c1"): f()
        self.g1_addr()
        if not self.o["g1only"]: self.ts()
        self.stats()
        if not self.o["g1only"]: self.ts()
        self.gemm1()
        if self.o["g1only"]:
            a("s_branch L_FIN")
            self.diag_save = self.diag; self.diag = False
        self.g1_epilogue()
        self.ts()
        a("s_mov_b32 s%d, 1" % sSPARE)
        a.label("L_JOIN")
        a("s_barrier")
        self.stage_u()
        def mid():
            L = a.newlabel("noH")
            a("s_cmp_eq_u32 s%d, 7" % sDB)
            a("s_cbranch_scc1 %s" % L)
            save = list(self.vm)
            self.publish_H()
            self.vm = save
            a.label(L)
        self.ts()
        self.kgen(mid)
        self.conv()
        self.gemm2()
        a("s_branch L_FIN")
        vm1, ds1, nts1 = self.vm, self.ds, self.nts
        if self.o["g1only"]: self.diag = self.diag_save
        a.label("L_SPARE")
        self.vm, self.ds = vm0, []
        d = self.diag; self.diag = False
        self.spare_path()
        self.diag = d
        a("s_branch L_END" if self.o["g1only"] else "s_branch L_JOIN")
        a.label("L_FIN")
        self.vm, self.ds, self.nts = vm1, ds1, nts1
        self.finish()
        return a

HEADER = open("parallel_sum__ssm_conv_s4__dense_activation_relu__prompt.s.ref").read().split("; Override launch")[0] if __name__ == "__main__" else ""
def full_text(a, header=""):
    return header + """; @launch grid=(256,1,1) block=(256,1,1) lds=%d
.amdgcn_target "amdgcn-amd-amdhsa--gfx950"
.text
.globl %s
.p2align 8
.type %s,@function
%s:
""" % (LDS_BYTES, NAME, NAME, NAME) + a.text() + """.section .rodata,"a"
.p2align 6
.amdhsa_kernel %s
  .amdhsa_next_free_vgpr 256
  .amdhsa_next_free_sgpr 102
  .amdhsa_accum_offset 256
  .amdhsa_group_segment_fixed_size 0
  .amdhsa_kernarg_size 120
  .amdhsa_user_sgpr_count 2
  .amdhsa_user_sgpr_kernarg_segment_ptr 1
  .amdhsa_system_sgpr_workgroup_id_x 1
  .amdhsa_float_denorm_mode_32 3
.end_amdhsa_kernel
""" % NAME

if __name__ == "__main__":
    import argparse
    ap = argparse.ArgumentParser()
    ap.add_argument("-o", default="k.s")
    ap.add_argument("--diag", action="store_true")
    ap.add_argument("--opt", default="")
    args = ap.parse_args()
    opt = {}
    for kv in args.opt.split(","):
        if kv: k, v = kv.split("="); opt[k] = int(v)
    g = Gen(diag=args.diag, opt=opt)
    a = g.build()
    check_hazards(a.lines)
    open(args.o, "w").write(full_text(a, HEADER))
    print("wrote", args.o, "instructions:", sum(1 for l in a.lines if parse(l)))
```

```python
import sys
from asmlib import *

NAME = "parallel_sum__ssm_conv_s4__dense_activation_relu__prompt_kernel"
WS_H, WS_XT, WS_YT = 0, 0x700000, 0x900000
WS_ST, WS_CS = 0xB00000, 0xB02000
WS_FA, WS_FC, WS_FH, WS_FY, WS_TS = 0xB04000, 0xB04400, 0xB04800, 0xB06000, 0xB08000
WS_SIZE = 0xB10000
SLOT = 32768
XPART = 16 * 1040
SLOT1 = XPART + 16384
FREE = 4 * SLOT1
L_U = FREE
L_K = FREE + 9216
L_XTS = FREE
L_YS = FREE
L_CSX = FREE + 16384
LDS_BYTES = 163840
SRD_X, SRD_W1, SRD_W2, SRD_OUT, SRD_WS, SRD_DBG = 36, 40, 44, 48, 52, 56
sWAVE, sMT, sSL, sP, sC, sNONCE, sMB, sDB = 60, 61, 62, 63, 64, 65, 66, 67
sSOX, sSOW, sLDT, sDSK, sSPARE, sT0, sT1, sT2, sT3, sCNT = 68, 69, 70, 71, 72, 73, 74, 75, 76, 77
sW2O, sHO = 78, 79
sTS = 80
sM0, sM1 = 100, 101
vTID, vLANE = 0, 1
vT = 2
vPAR = 10
vDX, vDW = 16, 20
vAX, vAW = 24, 32
vD2, vA2 = 36, 40
vNON, vFL = 44, 45
vFLQ = 46
vUS = 50
vACC = 64
vFR = 128
vCS, vMEAN = 160, 192
vUL = 196

class Gen:
    def __init__(self, diag=False, stop_after=None, opt=None):
        self.a = Asm(); self.diag = diag; self.stop = stop_after
        self.vm = []
        self.ds = []
        self.nts = 0
        self.seen = set()
        self.o = dict(poll_c=4, rot=2, g1only=0, hold=0, dbgts=0, nodma=0, nomfma=0, nords=0)
        if opt: self.o.update(opt)
    def vmem(self, s, tag="x"):
        self.a(s); self.vm.append(tag); self.seen.add(tag)
    def dsop(self, s, tag="x"):
        self.a(s); self.ds.append(tag); self.seen.add(tag)
    def _n(self, lst, tag):
        idx = [i for i, t in enumerate(lst) if t == tag]
        assert idx, tag
        return len(lst) - 1 - idx[-1]
    def wait_vm(self, tag=None):
        if tag is not None:
            assert tag in self.seen, tag
            if tag not in self.vm: return
        n = 0 if tag is None else self._n(self.vm, tag)
        assert n <= 63, (tag, n)
        self.a("s_waitcnt vmcnt(%d)" % n)
        self.vm = self.vm[len(self.vm) - n:] if n else []
    def wait_ds(self, tag=None):
        if tag is not None:
            assert tag in self.seen, tag
            if tag not in self.ds: return
        n = 0 if tag is None else self._n(self.ds, tag)
        n = min(n, 15)
        self.a("s_waitcnt lgkmcnt(%d)" % n)
        self.ds = self.ds[len(self.ds) - n:] if n else []
    def ts(self):
        if not self.diag: return
        assert self.nts < 20
        self.a("s_memtime s[%d:%d]" % (sM0, sM1)); self.a("s_waitcnt lgkmcnt(0)"); self.ds = []
        self.a("s_mov_b32 s%d, s%d" % (sTS + self.nts, sM0)); self.nts += 1
    def srd(self, r, p, size):
        self.a("s_mov_b32 s%d, s%d\ns_mov_b32 s%d, s%d\ns_mov_b32 s%d, 0x%x\ns_mov_b32 s%d, 0x20000" % (r, p, r + 1, p + 1, r + 2, size, r + 3))
    def poll(self, load, regs, first_issued_tag=None):
        a = self.a
        Lr, Ld = a.newlabel("retry"), a.newlabel("ok")
        a("s_mov_b32 s%d, 0" % sCNT)
        if first_issued_tag is None:
            load(); self.wait_vm("poll")
        else:
            self.wait_vm(first_issued_tag)
        a.label(Lr)
        a("v_cmp_ne_u32 vcc, s%d, v%d" % (sNONCE, regs[0]))
        for r in regs[1:]:
            a("v_cmp_ne_u32 s[%d:%d], s%d, v%d" % (sM0, sM1, sNONCE, r))
            a("s_nop 1")
            a("s_or_b64 vcc, vcc, s[%d:%d]" % (sM0, sM1))
        a("s_nop 1")
        a("s_cmp_eq_u64 vcc, 0")
        a("s_cbranch_scc1 %s" % Ld)
        a("s_add_u32 s%d, s%d, 1" % (sCNT, sCNT))
        a("s_cmp_ge_u32 s%d, 20000" % sCNT)
        a("s_cbranch_scc1 %s" % Ld)
        save = list(self.vm)
        load()
        self.vm = save
        a("s_waitcnt vmcnt(0)")
        a("s_branch %s" % Lr)
        a.label(Ld)
    def get_nonce(self, tag):
        a = self.a
        Lr, Ld = a.newlabel("nretry"), a.newlabel("nok")
        a("s_mov_b32 s%d, 0" % sCNT)
        self.wait_vm(tag)
        a.label(Lr)
        a("v_readfirstlane_b32 s%d, v%d" % (sNONCE, vNON))
        a("s_nop 1")
        a("s_cmp_lg_u32 s%d, 0" % sNONCE)
        a("s_cbranch_scc1 %s" % Ld)
        a("s_add_u32 s%d, s%d, 1" % (sCNT, sCNT))
        a("s_cmp_ge_u32 s%d, 20000" % sCNT)
        a("s_cbranch_scc1 %s" % Ld)
        a("buffer_load_dword v%d, off, s[%d:%d], 0 sc1" % (vNON, SRD_DBG, SRD_DBG + 3))
        a("s_waitcnt vmcnt(0)")
        a("s_branch %s" % Lr)
        a.label(Ld)
    def publish(self, soff_reg, tmpv):
        a = self.a
        a("v_mov_b32 v%d, s%d" % (tmpv, sNONCE))
        a("s_mov_b64 exec, 1")
        self.vmem("buffer_store_dword v%d, off, s[%d:%d], s%d sc1" % (tmpv, SRD_WS, SRD_WS + 3, soff_reg), "flag")
        a("s_mov_b64 exec, -1")

    def setup(self):
        a = self.a
        a("s_cmp_ge_u32 s2, 256\ns_cbranch_scc1 L_END")
        if self.diag:
            a("s_memrealtime s[%d:%d]" % (sM0, sM1)); a("s_waitcnt lgkmcnt(0)"); a("s_mov_b32 s99, s%d" % sM0)
            self.ts()
        a("""s_load_dwordx16 s[4:19], s[0:1], 0
             s_load_dwordx8 s[20:27], s[0:1], 64
             s_load_dwordx4 s[28:31], s[0:1], 96
             s_load_dwordx2 s[32:33], s[0:1], 112
             v_and_b32 v1, 63, v0
             v_lshrrev_b32 v2, 6, v0
             s_and_b32 s%d, s2, 7""" % sT0)
        a("v_readfirstlane_b32 s%d, v2" % sWAVE)
        a("s_lshr_b32 s%d, s2, 3" % sT1)
        a("s_lshr_b32 s%d, s%d, 3" % (sT2, sT1))
        a("s_and_b32 s%d, s%d, 7" % (sDB, sT1))
        a("s_lshl_b32 s%d, s%d, 2" % (sMB, sT0))
        a("s_add_u32 s%d, s%d, s%d" % (sMB, sMB, sT2))
        a("s_lshr_b32 s%d, s%d, 1" % (sMT, sT0))
        a("s_lshl_b32 s%d, s%d, 2" % (sMT, sMT))
        a("s_add_u32 s%d, s%d, s%d" % (sMT, sMT, sT2))
        a("s_and_b32 s%d, s%d, 1" % (sT0, sT0))
        a("s_mul_i32 s%d, s%d, 7" % (sSL, sT0))
        a("s_add_u32 s%d, s%d, s%d" % (sSL, sSL, sDB))
        a("s_lshl_b32 s%d, s%d, 3" % (sP, sT0))
        a("s_add_u32 s%d, s%d, s%d" % (sP, sP, sDB))
        a("s_mul_i32 s%d, s%d, %d" % (sT3, sMT, self.o["rot"]))
        a("s_add_u32 s%d, s%d, s%d" % (sP, sP, sT3))
        a("s_and_b32 s%d, s%d, 15" % (sP, sP))
        a("s_lshr_b32 s%d, s%d, 1" % (sC, sP))
        a("s_lshl_b32 s%d, s%d, 1" % (sSPARE, sMT))
        a("s_add_u32 s%d, s%d, s%d" % (sSPARE, sSPARE, sT0))
        t = vT
        a("v_lshrrev_b32 v%d, 3, v1" % t)
        a("v_lshrrev_b32 v%d, 4, v1" % (t + 1))
        a("v_and_b32 v%d, 7, v1" % (t + 2))
        a("s_lshl_b32 s%d, s%d, 15" % (sT0, sWAVE))
        a("v_lshl_add_u32 v%d, v%d, 10, s%d" % (t + 3, t, sT0))
        a("v_bfe_u32 v%d, v1, 4, 1" % (t + 4))
        a("v_lshlrev_b32 v%d, 2, v%d" % (t + 4, t + 4))
        a("v_xor_b32 v%d, v%d, v%d" % (t + 4, t + 2, t + 4))
        a("v_lshl_add_u32 v%d, v%d, 4, v%d" % (vDX, t + 4, t + 3))
        for i in range(1, 4): a("v_add_u32 v%d, %d, v%d" % (vDX + i, i * (8192 - 1040), vDX))
        a("s_lshl_b32 s%d, s%d, 4" % (sT0, sWAVE))
        a("v_add_u32 v%d, s%d, v%d" % (t + 3, sT0, t + 1))
        a("v_mul_u32_u24 v%d, 3584, v%d" % (t + 3, t + 3))
        a("v_and_b32 v%d, 15, v1" % (t + 4))
        a("v_lshlrev_b32 v%d, 2, v%d" % (t + 5, t + 1))
        a("v_xor_b32 v%d, v%d, v%d" % (t + 4, t + 4, t + 5))
        a("v_lshl_add_u32 v%d, v%d, 4, v%d" % (vDW, t + 4, t + 3))
        for i in range(1, 4): a("v_add_u32 v%d, %d, v%d" % (vDW + i, i * (14336 - 1024), vDW))
        a("s_lshl_b32 s%d, s%d, 4" % (sT0, sMT))
        a("s_add_u32 s%d, s%d, s%d" % (sT0, sT0, sP))
        a("s_lshl_b32 s%d, s%d, 2" % (sT0, sT0))
        a("s_add_u32 s%d, s%d, s%d" % (sT0, sT0, sWAVE))
        a("s_lshl_b32 s%d, s%d, 11" % (sT1, sT0))
        a("s_lshl_b32 s%d, s%d, 3" % (sT2, sT0))
        a("s_add_u32 s%d, s%d, 0x%x" % (sT2, sT2, WS_ST))
        a("v_lshlrev_b32 v%d, 4, v1" % (t + 6))
        a("s_lshl_b32 s%d, s%d, 17" % (sSOX, sMT))
        a("s_lshl_b32 s%d, s%d, 8" % (sSOW, sSL))
        for k in range(6): a("v_mov_b32 v%d, 0" % (vPAR + k))
        a("s_lshl_b32 s%d, s2, 9" % sT0)
        a("v_lshl_add_u32 v%d, v0, 1, s%d" % (t + 7, sT0))
        a("s_waitcnt lgkmcnt(0)")
        self.srd(SRD_X, 4, 2097152)
        self.vmem("buffer_load_dwordx4 v[%d:%d], v%d, s[%d:%d], s%d offen" % (vFR, vFR + 3, t + 6, SRD_X, SRD_X + 3, sT1), "st")
        self.vmem("buffer_load_dwordx4 v[%d:%d], v%d, s[%d:%d], s%d offen offset:1024" % (vFR + 4, vFR + 7, t + 6, SRD_X, SRD_X + 3, sT1), "st")
        self.srd(SRD_W1, 24, 1835008)
        self.srd(SRD_WS, 32, WS_SIZE)
        self.srd(SRD_DBG, 30, 256)
        self.srd(SRD_W2, 26, 1835008)
        self.srd(SRD_OUT, 28, 2097152)
        a("s_lshl_b32 s%d, s2, 2" % sT0)
        a("s_load_dword s%d, s[18:19], s%d" % (sLDT, sT0))
        a("s_load_dword s%d, s[20:21], s%d" % (sDSK, sT0))
        L = a.newlabel("nononce")
        a("s_or_b32 s%d, s2, s%d" % (sT0, sWAVE))
        a("s_cmp_lg_u32 s%d, 0" % sT0)
        a("s_cbranch_scc1 %s" % L)
        a("s_memrealtime s[%d:%d]" % (sM0, sM1))
        a("s_waitcnt lgkmcnt(0)")
        a("s_or_b32 s%d, s%d, 1" % (sT0, sM0))
        a("v_mov_b32 v%d, s%d" % (vNON, sT0))
        a("s_mov_b64 exec, 1")
        a("buffer_store_dword v%d, off, s[%d:%d], 0 sc1" % (vNON, SRD_DBG, SRD_DBG + 3))
        a("s_mov_b64 exec, -1")
        a.label(L)
    def params_load(self):
        for k in range(6):
            self.vmem("global_load_short_d16_hi v%d, v%d, s[%d:%d]" % (vPAR + k, vT + 7, 6 + 2 * k, 7 + 2 * k), "par")
    def chunk_soffsets(self):
        a = self.a
        a("s_lshl_b32 s%d, s%d, 7" % (sT0, sC))
        a("s_add_u32 s%d, s%d, s%d" % (sT0, sT0, sSOX))
        a("s_mul_i32 s%d, s%d, %d" % (sT1, sC, 64 * 3584))
        a("s_add_u32 s%d, s%d, s%d" % (sT1, sT1, sSOW))
        a("s_add_u32 s%d, s%d, 1" % (sC, sC))
        a("s_and_b32 s%d, s%d, 7" % (sC, sC))
    def g1_dma_ops(self, slot, tag, xonly=False):
        ops = []
        def mk(kind, i):
            def f():
                a = self.a
                if i == 0:
                    a("s_mul_i32 s%d, s%d, %d" % (sT3, sWAVE, 4096 if kind else 4160))
                    a("s_add_u32 m0, s%d, %d" % (sT3, slot * SLOT1 + (XPART if kind else 0)))
                    a("s_nop 0")
                if kind == 0:
                    self.vmem("buffer_load_dwordx4 v%d, s[%d:%d], s%d offen offset:%d lds" % (vDX + i, SRD_X, SRD_X + 3, sT0, 1040 * i), tag)
                else:
                    self.vmem("buffer_load_dwordx4 v%d, s[%d:%d], s%d offen offset:%d lds" % (vDW + i, SRD_W1, SRD_W1 + 3, sT1, 1024 * i), tag)
            return f
        for kind in ((0,) if xonly else (0, 1)):
            for i in range(4): ops.append(mk(kind, i))
        return ops
    def w2_dma_ops(self, ks0, nks=4):
        ops = []
        def mk(ks, j):
            def f():
                a = self.a
                if j == 0:
                    a("s_lshl_b32 s%d, s%d, 13" % (sT3, sWAVE))
                    a("s_add_u32 m0, s%d, %d" % (sT3, ((ks >> 2) & 3) * SLOT + (ks & 3) * 2048))
                    a("s_add_u32 s%d, s%d, %d" % (sT2, sW2O, ks * 16384))
                self.vmem("buffer_load_dwordx4 v%d, s[%d:%d], s%d offen offset:%d lds" % (vD2 + j, SRD_W2, SRD_W2 + 3, sT2, 1024 * j), "w2_%d" % (ks + (j >> 1)))
            return f
        for ks in range(ks0, ks0 + nks, 2):
            for j in range(4): ops.append(mk(ks, j))
        return ops

    def allreduce2(self, r0, r1, t0, t1):
        a = self.a
        for sh in (8, 4, 2, 1):
            a("s_nop 0")
            a("v_add_f32_dpp v%d, v%d, v%d row_ror:%d row_mask:0xf bank_mask:0xf" % (r0, r0, r0, sh))
            a("v_add_f32_dpp v%d, v%d, v%d row_ror:%d row_mask:0xf bank_mask:0xf" % (r1, r1, r1, sh))
        for op in ("v_permlane16_swap_b32", "v_permlane32_swap_b32"):
            a("v_mov_b32 v%d, v%d\nv_mov_b32 v%d, v%d\ns_nop 0" % (t0, r0, t1, r1))
            a("%s v%d, v%d" % (op, r0, t0))
            a("%s v%d, v%d" % (op, r1, t1))
            a("v_add_f32 v%d, v%d, v%d\nv_add_f32 v%d, v%d, v%d" % (r0, r0, t0, r1, r1, t1))
    def stats(self):
        a = self.a
        a.c("---- row statistics")
        U = vFR + 8
        s0, s1, t0, t1 = vT, vT + 1, vT + 2, vT + 3
        a("s_waitcnt lgkmcnt(0)")
        self.wait_vm("st")
        for r in range(2):
            for k in range(4):
                a("v_lshlrev_b32 v%d, 16, v%d" % (U + 8 * r + 2 * k, vFR + 4 * r + k))
                a("v_and_b32 v%d, 0xffff0000, v%d" % (U + 8 * r + 2 * k + 1, vFR + 4 * r + k))
        for r, s in ((0, s0), (1, s1)):
            a("v_add_f32 v%d, v%d, v%d" % (s, U + 8 * r, U + 8 * r + 1))
        for k in range(2, 8):
            for r, s in ((0, s0), (1, s1)):
                a("v_add_f32 v%d, v%d, v%d" % (s, s, U + 8 * r + k))
        a("s_nop 0")
        self.allreduce2(s0, s1, t0, t1)
        m0, m1 = vT + 4, vT + 5
        a("v_mul_f32 v%d, 0x3b000000, v%d\nv_mul_f32 v%d, 0x3b000000, v%d" % (m0, s0, m1, s1))
        for k in range(8):
            a("v_sub_f32 v%d, v%d, v%d" % (U + k, U + k, m0))
            a("v_sub_f32 v%d, v%d, v%d" % (U + 8 + k, U + 8 + k, m1))
        a("v_mul_f32 v%d, v%d, v%d\nv_mul_f32 v%d, v%d, v%d" % (s0, U, U, s1, U + 8, U + 8))
        for k in range(1, 8):
            a("v_fmac_f32 v%d, v%d, v%d\nv_fmac_f32 v%d, v%d, v%d" % (s0, U + k, U + k, s1, U + 8 + k, U + 8 + k))
        a("s_nop 0")
        self.allreduce2(s0, s1, t0, t1)
        a("v_mul_f32 v%d, 0x3b000000, v%d\nv_mul_f32 v%d, 0x3b000000, v%d" % (s0, s0, s1, s1))
        a("v_cvt_pk_bf16_f32 v%d, v%d, v%d" % (t0, s0, s1))
        a("v_lshlrev_b32 v%d, 16, v%d\nv_and_b32 v%d, 0xffff0000, v%d" % (s0, t0, s1, t0))
        a("v_add_f32 v%d, 0x3727c5ac, v%d\nv_add_f32 v%d, 0x3727c5ac, v%d" % (s0, s0, s1, s1))
        a("v_cvt_pk_bf16_f32 v%d, v%d, v%d" % (t0, s0, s1))
        a("v_lshlrev_b32 v%d, 16, v%d\nv_and_b32 v%d, 0xffff0000, v%d" % (s0, t0, s1, t0))
        a("v_sqrt_f32 v%d, v%d\nv_sqrt_f32 v%d, v%d\ns_nop 0" % (s0, s0, s1, s1))
        a("v_cvt_pk_bf16_f32 v%d, v%d, v%d\nv_cvt_pk_bf16_f32 v%d, v%d, v%d" % (t0, m0, s0, t1, m1, s1))
        a("s_mov_b64 exec, 1")
        self.vmem("buffer_store_dwordx2 v[%d:%d], off, s[%d:%d], s%d sc1" % (t0, t1, SRD_WS, SRD_WS + 3, sT2), "pubA")
        a("s_mov_b64 exec, -1")

    def xt_part1(self):
        a = self.a
        a.c("---- x^T: transpose reads")
        t = vT
        D = vUL
        a("v_lshrrev_b32 v%d, 4, v1" % t)
        a("v_bfe_u32 v%d, v1, 2, 2" % (t + 1))
        a("v_and_b32 v%d, 3, v1" % (t + 2))
        a("s_and_b32 s%d, s%d, 1" % (sT3, sP))
        a("v_lshrrev_b32 v%d, 1, v%d" % (t + 3, t + 1))
        a("v_xor_b32 v%d, s%d, v%d" % (t + 3, sT3, t + 3))
        a("v_lshlrev_b32 v%d, 6, v%d" % (t + 3, t + 3))
        a("v_lshl_add_u32 v%d, v%d, 7, v%d" % (t + 3, t + 1, t + 3))
        a("v_lshl_add_u32 v%d, v%d, 3, v%d" % (t + 3, t + 2, t + 3))
        a("v_mul_u32_u24 v%d, 1040, v%d" % (t + 4, t))
        a("s_mul_i32 s%d, s%d, 4160" % (sT3, sWAVE))
        a("v_add3_u32 v%d, v%d, v%d, s%d" % (t + 5, t + 3, t + 4, sT3))
        self.dsop("ds_read_b64_tr_b16 v[%d:%d], v%d" % (D, D + 1, t + 5))
        self.dsop("ds_read_b64_tr_b16 v[%d:%d], v%d offset:512" % (D + 2, D + 3, t + 5))
        self.dsop("ds_read_b64_tr_b16 v[%d:%d], v%d offset:32" % (D + 4, D + 5, t + 5))
        self.dsop("ds_read_b64_tr_b16 v[%d:%d], v%d offset:544" % (D + 6, D + 7, t + 5), "xt")
        a("v_and_b32 v%d, 15, v1" % (t + 1))
        a("v_mul_u32_u24 v%d, 272, v%d" % (t + 1, t + 1))
        a("v_lshl_add_u32 v%d, v%d, 4, v%d" % (t + 1, t, t + 1))
        a("s_lshl_b32 s%d, s%d, 6" % (sT3, sWAVE))
        a("s_add_u32 s%d, s%d, %d" % (sT3, sT3, L_XTS))
        a("v_add_u32 v%d, s%d, v%d" % (t + 1, sT3, t + 1))
        self.wait_ds("xt")
        self.dsop("ds_write_b128 v%d, v[%d:%d]" % (t + 1, D, D + 3))
        self.dsop("ds_write_b128 v%d, v[%d:%d] offset:%d" % (t + 1, D + 4, D + 7, 16 * 272), "xtw")
    def xt_part2(self):
        a = self.a
        a.c("---- x^T: coalesced stores")
        t = vT
        D = vUL
        a("v_lshrrev_b32 v%d, 4, v1" % t)
        a("v_and_b32 v%d, 15, v1" % (t + 1))
        a("s_lshl_b32 s%d, s%d, 3" % (sT3, sWAVE))
        a("v_add_u32 v%d, s%d, v%d" % (t, sT3, t))
        a("v_mul_u32_u24 v%d, 272, v%d" % (t + 2, t))
        a("v_lshl_add_u32 v%d, v%d, 4, v%d" % (t + 2, t + 1, t + 2))
        a("v_add_u32 v%d, %d, v%d" % (t + 2, L_XTS, t + 2))
        self.dsop("ds_read_b128 v[%d:%d], v%d" % (D, D + 3, t + 2))
        self.dsop("ds_read_b128 v[%d:%d], v%d offset:%d" % (D + 4, D + 7, t + 2, 4 * 272), "xt2")
        a("v_lshlrev_b32 v%d, 12, v%d" % (t, t))
        a("v_lshl_add_u32 v%d, v%d, 4, v%d" % (t, t + 1, t))
        a("v_add_u32 v%d, 16384, v%d" % (t + 1, t))
        a("s_lshl_b32 s%d, s%d, 17" % (sT3, sP))
        a("s_lshl_b32 s%d, s%d, 8" % (sT2, sMT))
        a("s_add_u32 s%d, s%d, s%d" % (sT3, sT3, sT2))
        a("s_add_u32 s%d, s%d, 0x%x" % (sT2, sT3, WS_XT))
        self.wait_ds("xt2")
        self.vmem("buffer_store_dwordx4 v[%d:%d], v%d, s[%d:%d], s%d offen sc1" % (D, D + 3, t, SRD_WS, SRD_WS + 3, sT2), "pubA")
        self.vmem("buffer_store_dwordx4 v[%d:%d], v%d, s[%d:%d], s%d offen sc1" % (D + 4, D + 7, t + 1, SRD_WS, SRD_WS + 3, sT2), "pubA")
        self.vmem("buffer_load_dword v%d, off, s[%d:%d], 0 sc1" % (vNON, SRD_DBG, SRD_DBG + 3), "non")
    def publish_A(self):
        a = self.a
        L = a.newlabel("noA")
        a("s_cmp_lg_u32 s%d, 0" % sWAVE)
        a("s_cbranch_scc1 %s" % L)
        a("s_lshl_b32 s%d, s2, 2" % sT3)
        a("s_add_u32 s%d, s%d, 0x%x" % (sT3, sT3, WS_FA))
        save = list(self.vm)
        self.publish(sT3, vT)
        self.vm = save
        a.label(L)
    def load_flagsA(self, with_c):
        a = self.a
        a("v_lshlrev_b32 v%d, 4, v1" % vT)
        a("s_mov_b32 s%d, 0x%x" % (sT3, WS_FA))
        self.vmem("buffer_load_dwordx4 v[%d:%d], v%d, s[%d:%d], s%d offen sc1" % (vFLQ, vFLQ + 3, vT, SRD_WS, SRD_WS + 3, sT3), "poll")
        if with_c:
            a("s_lshl_b32 s%d, s%d, 3" % (sT3, sSL))
            a("s_add_u32 s%d, s%d, 0x%x" % (sT3, sT3, WS_FC))
            a("v_and_b32 v%d, 1, v1" % vT)
            a("v_lshlrev_b32 v%d, 2, v%d" % (vT, vT))
            self.vmem("buffer_load_dword v%d, v%d, s[%d:%d], s%d offen sc1" % (vFL, vT, SRD_WS, SRD_WS + 3, sT3), "poll")
    def load_u(self):
        a = self.a
        a("v_lshlrev_b32 v%d, 4, v0" % vT)
        a("v_lshlrev_b32 v%d, 5, v0" % (vT + 1))
        a("s_lshl_b32 s%d, s2, 13" % sT3)
        a("s_add_u32 s%d, s%d, 0x%x" % (sT3, sT3, WS_XT))
        a("s_add_u32 s%d, s%d, 4096" % (sT2, sT3))
        self.vmem("buffer_load_dwordx4 v[%d:%d], v%d, s[%d:%d], s%d offen sc1" % (vUL, vUL + 3, vT, SRD_WS, SRD_WS + 3, sT3), "u")
        self.vmem("buffer_load_dwordx4 v[%d:%d], v%d, s[%d:%d], s%d offen sc1" % (vUL + 4, vUL + 7, vT, SRD_WS, SRD_WS + 3, sT2), "u")
        a("s_mov_b32 s%d, 0x%x" % (sT3, WS_ST))
        self.vmem("buffer_load_dwordx4 v[%d:%d], v%d, s[%d:%d], s%d offen sc1" % (vUL + 8, vUL + 11, vT + 1, SRD_WS, SRD_WS + 3, sT3), "u")
        self.vmem("buffer_load_dwordx4 v[%d:%d], v%d, s[%d:%d], s%d offen offset:16 sc1" % (vUL + 12, vUL + 15, vT + 1, SRD_WS, SRD_WS + 3, sT3), "u")
    def w2_setup(self):
        a = self.a
        t = vT
        a("v_lshrrev_b32 v%d, 3, v1" % t)
        a("v_and_b32 v%d, 7, v1" % (t + 1))
        a("v_bfe_u32 v%d, v1, 4, 1" % (t + 2))
        a("v_lshlrev_b32 v%d, 2, v%d" % (t + 2, t + 2))
        a("v_xor_b32 v%d, v%d, v%d" % (t + 1, t + 1, t + 2))
        a("v_lshlrev_b32 v%d, 4, v%d" % (t + 1, t + 1))
        a("v_lshl_add_u32 v%d, v%d, 10, v%d" % (vD2, t, t + 1))
        for j in range(1, 4): a("v_add_u32 v%d, %d, v%d" % (vD2 + j, j * 7168, vD2))
        a("s_mul_i32 s%d, s%d, %d" % (sW2O, sWAVE, 448 * 1024))
        a("s_lshl_b32 s%d, s%d, 7" % (sT3, sDB))
        a("s_add_u32 s%d, s%d, s%d" % (sW2O, sW2O, sT3))
        a("v_bfe_u32 v%d, v1, 2, 2" % t)
        a("v_lshrrev_b32 v%d, 5, v1" % (t + 1))
        a("v_lshl_add_u32 v%d, v%d, 2, v%d" % (t + 1, t + 1, t))
        a("v_lshlrev_b32 v%d, 7, v%d" % (t + 1, t + 1))
        a("v_lshrrev_b32 v%d, 1, v%d" % (t, t))
        a("v_lshl_add_u32 v%d, v%d, 6, v%d" % (t + 1, t, t + 1))
        a("v_bfe_u32 v%d, v1, 4, 1" % t)
        a("v_lshl_add_u32 v%d, v%d, 5, v%d" % (t + 1, t, t + 1))
        a("v_and_b32 v%d, 3, v1" % t)
        a("v_lshl_add_u32 v%d, v%d, 3, v%d" % (t + 1, t, t + 1))
        a("s_lshl_b32 s%d, s%d, 13" % (sT3, sWAVE))
        a("v_add_u32 v%d, s%d, v%d" % (vA2, sT3, t + 1))
        a("v_xor_b32 v%d, 64, v%d" % (vA2 + 1, vA2))
        a("v_add_u32 v%d, 0x10000, v%d\nv_add_u32 v%d, 0x10000, v%d" % (vA2 + 2, vA2, vA2 + 3, vA2 + 1))

    def g1_addr(self):
        a = self.a
        t = vT
        a("v_lshrrev_b32 v%d, 5, v1" % (t + 1))
        a("v_bfe_u32 v%d, v1, 3, 2" % t)
        a("v_mul_u32_u24 v%d, 1040, v%d" % (t, t))
        a("v_and_b32 v%d, 7, v1" % (t + 2))
        a("v_lshl_add_u32 v%d, v%d, 7, v%d" % (t, t + 2, t))
        a("v_lshl_add_u32 v%d, v%d, 4, v%d" % (t, t + 1, t))
        a("s_and_b32 s%d, s%d, 1" % (sT3, sWAVE))
        a("s_mul_i32 s%d, s%d, 8320" % (sT3, sT3))
        a("v_bfe_u32 v%d, v1, 1, 1" % (t + 2))
        a("v_lshlrev_b32 v%d, 6, v%d" % (t + 2, t + 2))
        a("v_add3_u32 v%d, v%d, v%d, s%d" % (vAX, t, t + 2, sT3))
        a("v_xor_b32 v%d, 64, v%d" % (t + 2, t + 2))
        a("v_add3_u32 v%d, v%d, v%d, s%d" % (vAX + 1, t, t + 2, sT3))
        a("v_add_u32 v%d, %d, v%d\nv_add_u32 v%d, %d, v%d" % (vAX + 2, 2 * SLOT1, vAX, vAX + 3, 2 * SLOT1, vAX + 1))
        a("v_bfe_u32 v%d, v1, 2, 2" % t)
        a("v_lshl_add_u32 v%d, v%d, 3, v%d" % (t + 3, t + 1, t))
        a("v_lshlrev_b32 v%d, 8, v%d" % (t + 3, t + 3))
        a("s_and_b32 s%d, s%d, 2" % (sT3, sWAVE))
        a("v_xor_b32 v%d, s%d, v%d" % (t, sT3, t))
        a("v_lshl_add_u32 v%d, v%d, 6, v%d" % (t + 3, t, t + 3))
        a("v_bfe_u32 v%d, v1, 4, 1" % t)
        a("v_lshl_add_u32 v%d, v%d, 5, v%d" % (t + 3, t, t + 3))
        a("v_and_b32 v%d, 3, v1" % t)
        a("v_lshl_add_u32 v%d, v%d, 3, v%d" % (t + 3, t, t + 3))
        a("v_add_u32 v%d, %d, v%d" % (vAW, XPART, t + 3))
        a("v_xor_b32 v%d, 64, v%d" % (t + 3, t + 3))
        a("v_add_u32 v%d, %d, v%d" % (vAW + 1, XPART, t + 3))
        a("v_add_u32 v%d, %d, v%d\nv_add_u32 v%d, %d, v%d" % (vAW + 2, 2 * SLOT1, vAW, vAW + 3, 2 * SLOT1, vAW + 1))
    def g1_reads(self, g):
        c, ks = g >> 2, g & 3
        slot = c & 3
        hi, so = slot >> 1, (slot & 1) * SLOT1
        B = vFR + 16 * (g & 1)
        X0, X1, W0, W1 = B, B + 4, B + 8, B + 12
        ax = vAX + 2 * hi + (ks >> 1)
        xo = so + 32 * (ks & 1)
        aw = vAW + 2 * hi
        t = "g%d" % g
        if self.o["nords"]:
            for x in "abc": self.seen.add(t + x)
            return []
        return [
            ("ds_read_b128 v[%d:%d], v%d offset:%d" % (X0, X0 + 3, ax, xo), t + "a"),
            ("ds_read_b64_tr_b16 v[%d:%d], v%d offset:%d" % (W0, W0 + 1, aw, so + ks * 4096), t + "a"),
            ("ds_read_b64_tr_b16 v[%d:%d], v%d offset:%d" % (W0 + 2, W0 + 3, aw, so + ks * 4096 + 1024), t + "a"),
            ("ds_read_b128 v[%d:%d], v%d offset:%d" % (X1, X1 + 3, ax, xo + 4160), t + "b"),
            ("ds_read_b64_tr_b16 v[%d:%d], v%d offset:%d" % (W1, W1 + 1, aw + 1, so + ks * 4096), t + "c"),
            ("ds_read_b64_tr_b16 v[%d:%d], v%d offset:%d" % (W1 + 2, W1 + 3, aw + 1, so + ks * 4096 + 1024), t + "c"),
        ]
    def g1_mfma(self, g, i):
        B = vFR + 16 * (g & 1)
        ft, mt2 = i >> 1, i & 1
        D = vACC + 16 * (2 * ft + mt2)
        C = "0" if g == 0 else "v[%d:%d]" % (D, D + 15)
        if self.o["nomfma"]: return
        self.a("v_mfma_f32_32x32x16_bf16 v[%d:%d], v[%d:%d], v[%d:%d], %s" % (D, D + 15, B + 8 + 4 * ft, B + 11 + 4 * ft, B + 4 * mt2, B + 3 + 4 * mt2, C))
    def gemm1(self):
        a = self.a
        pc = self.o["poll_c"]
        a.c("==== GEMM1")
        self.wait_vm("c0"); a("s_barrier")
        self.ts()
        for r, tg in self.g1_reads(0): self.dsop(r, tg)
        self.xt_part1()
        for c in range(8):
            pre = []
            if c <= 5:
                dma = self.g1_dma_ops((c + 2) & 3, "c%d" % (c + 2)); pre = [self.chunk_soffsets]
            else:
                dma = self.w2_dma_ops(4 * (c - 6))
            if self.o["nodma"]:
                dma = []; self.seen.add("c%d" % (c + 2))
                for q in range(8): self.seen.add("w2_%d" % q)
            first = []
            if c == 1: first = [self.xt_part2]
            if c == 3: first = [lambda: self.get_nonce("non"), self.publish_A]
            last = []
            if c == pc: last = [lambda: self.load_flagsA(True)]
            if c == pc + 1:
                chk = [lambda: self.poll(lambda: self.load_flagsA(True), [vFLQ, vFLQ + 1, vFLQ + 2, vFLQ + 3, vFL], "poll"), self.g1_epi_loads, self.load_u]
                if c <= 5: last = chk
                else: first = chk
            if c == 2: last = last + [self.w2_setup]
            for f in first + pre: f()
            for ks in range(4):
                g = 4 * c + ks
                t = "g%d" % g
                nxt = self.g1_reads(g + 1) if g < 31 else []
                if ks == 3 and c < 7:
                    for f in last: f()
                    self.wait_ds()
                    if self.o["g1only"]: self.ts()
                    self.wait_vm("c%d" % (c + 1)); a("s_barrier")
                    if self.o["g1only"]: self.ts()
                    for i in range(4):
                        self.g1_mfma(g, i)
                        for r, tg in nxt[2 * i:2 * i + 2]: self.dsop(r, tg)
                else:
                    for i in range(4):
                        if i < 3: self.wait_ds(t + "abc"[i])
                        self.g1_mfma(g, i)
                        for r, tg in nxt[2 * i:2 * i + 2]: self.dsop(r, tg)
                        if ks < 3 and i < 3 and dma: dma.pop(0)()
            assert not dma
        self.ts()
    def g1_epi_loads(self):
        a = self.a
        t = vT
        a("v_and_b32 v%d, 31, v1" % t)
        a("v_lshlrev_b32 v%d, 2, v%d" % (t, t))
        a("s_lshl_b32 s%d, s%d, 1" % (sT3, sMT))
        a("s_and_b32 s%d, s%d, 1" % (sT2, sWAVE))
        a("s_add_u32 s%d, s%d, s%d" % (sT3, sT3, sT2))
        a("s_lshl_b32 s%d, s%d, 8" % (sT3, sT3))
        a("s_add_u32 s%d, s%d, 0x%x" % (sT3, sT3, WS_ST))
        self.vmem("buffer_load_dword v%d, v%d, s[%d:%d], s%d offen sc1" % (vMEAN, t, SRD_WS, SRD_WS + 3, sT3), "epi")
        self.vmem("buffer_load_dword v%d, v%d, s[%d:%d], s%d offen offset:128 sc1" % (vMEAN + 1, t, SRD_WS, SRD_WS + 3, sT3), "epi")
        a("v_lshrrev_b32 v%d, 5, v1" % (t + 1))
        a("v_lshlrev_b32 v%d, 4, v%d" % (t + 1, t + 1))
        a("s_lshl_b32 s%d, s%d, 1" % (sT3, sSL))
        a("s_lshr_b32 s%d, s%d, 1" % (sT2, sWAVE))
        a("s_add_u32 s%d, s%d, s%d" % (sT3, sT3, sT2))
        a("s_lshl_b32 s%d, s%d, 8" % (sT3, sT3))
        a("s_add_u32 s%d, s%d, 0x%x" % (sT3, sT3, WS_CS))
        for k in range(8):
            self.vmem("buffer_load_dwordx4 v[%d:%d], v%d, s[%d:%d], s%d offen offset:%d sc1" % (vCS + 4 * k, vCS + 4 * k + 3, t + 1, SRD_WS, SRD_WS + 3, sT3, 32 * k), "epi")
    def g1_epilogue(self):
        a = self.a
        a.c("==== GEMM1 epilogue: h = relu(acc - mean*colsum) -> fragment order")
        self.wait_vm("epi")
        a("v_lshlrev_b32 v%d, 16, v%d\nv_lshlrev_b32 v%d, 16, v%d" % (vMEAN, vMEAN, vMEAN + 2, vMEAN + 1))
        a("v_lshlrev_b32 v%d, 4, v1" % vT)
        a("s_lshl_b32 s%d, s%d, 1" % (sT3, sMT))
        a("s_and_b32 s%d, s%d, 1" % (sT2, sWAVE))
        a("s_add_u32 s%d, s%d, s%d" % (sT3, sT3, sT2))
        a("s_mul_i32 s%d, s%d, 224" % (sT0, sT3))
        a("s_lshl_b32 s%d, s%d, 1" % (sT1, sSL))
        a("s_lshr_b32 s%d, s%d, 1" % (sT2, sWAVE))
        a("s_add_u32 s%d, s%d, s%d" % (sT1, sT1, sT2))
        a("s_lshl_b32 s%d, s%d, 2" % (sT2, sT1))
        a("s_add_u32 s%d, s%d, s%d" % (sT0, sT0, sT2))
        a("s_lshl_b32 s%d, s%d, 10" % (sT0, sT0))
        a("s_lshl_b32 s%d, s%d, 5" % (sT3, sT3))
        a("s_add_u32 s%d, s%d, s%d" % (sT3, sT3, sT1))
        a("s_lshl_b32 s%d, s%d, 2" % (sT3, sT3))
        a("s_add_u32 s%d, s%d, 0x%x" % (sHO, sT3, WS_FH))
        a("s_add_u32 s%d, s%d, %d" % (sT1, sT0, 112 * 1024))
        a("s_nop 3")
        P = vFR
        n = 0
        for ft in range(2):
            for mt2 in range(2):
                D = vACC + 16 * (2 * ft + mt2)
                for sp in range(2):
                    Q = P + 4 * (n & 7); n += 1
                    for k in range(4):
                        r = 8 * sp + 2 * k
                        a("v_pk_fma_f32 v[%d:%d], v[%d:%d], v[%d:%d], v[%d:%d] op_sel_hi:[1,0,1] neg_lo:[0,1,0] neg_hi:[0,1,0]" %
                          (D + r, D + r + 1, vCS + 16 * ft + r, vCS + 16 * ft + r + 1, vMEAN + 2 * mt2, vMEAN + 2 * mt2 + 1, D + r, D + r + 1))
                    for k in range(4):
                        r = 8 * sp + 2 * k
                        a("v_cvt_pk_bf16_f32 v%d, v%d, v%d" % (Q + k, D + r, D + r + 1))
                    for k in range(4):
                        a("v_pk_max_i16 v%d, v%d, 0" % (Q + k, Q + k))
                    self.vmem("buffer_store_dwordx4 v[%d:%d], v%d, s[%d:%d], s%d offen offset:%d sc1" %
                              (Q, Q + 3, vT, SRD_WS, SRD_WS + 3, sT1 if mt2 else sT0, (2 * ft + sp) * 1024), "h")
    def publish_H(self):
        self.wait_vm("h")
        self.publish(sHO, vT)

    def spare_path(self):
        a = self.a
        a.c("==== spare workgroup: x^T piece, column sums of w1")
        self.chunk_soffsets()
        for f in self.g1_dma_ops(0, "c0", xonly=True): f()
        self.params_load()
        t = vT
        a("s_min_u32 s%d, s%d, 27" % (sT0, sSPARE))
        a("s_lshl_b32 s%d, s%d, 7" % (sT0, sT0))
        a("s_mul_i32 s%d, s%d, %d" % (sT1, sWAVE, 128 * 3584))
        a("s_add_u32 s%d, s%d, s%d" % (sT0, sT0, sT1))
        a("v_lshrrev_b32 v%d, 3, v1" % (vDW))
        a("v_mul_u32_u24 v%d, 3584, v%d" % (vDW, vDW))
        a("v_and_b32 v%d, 7, v1" % (vDW + 1))
        a("v_lshl_add_u32 v%d, v%d, 4, v%d" % (vDW, vDW + 1, vDW))
        for i in range(16):
            self.vmem("buffer_load_dwordx4 v[%d:%d], v%d, s[%d:%d], s%d offen" % (vACC + 4 * i, vACC + 4 * i + 3, vDW, SRD_W1, SRD_W1 + 3, sT0), "cs%d" % i)
            if i < 15: a("s_add_u32 s%d, s%d, %d" % (sT0, sT0, 8 * 3584))
        self.stats()
        self.wait_vm("c0")
        self.xt_part1()
        self.wait_ds()
        a("s_barrier")
        self.xt_part2()
        S = vFR + 8
        for i in range(16):
            self.wait_vm("cs%d" % i)
            for k in range(4):
                d = S + 2 * k if i == 0 else vFR
                a("v_lshlrev_b32 v%d, 16, v%d" % (d, vACC + 4 * i + k))
                a("v_and_b32 v%d, 0xffff0000, v%d" % (d + 1, vACC + 4 * i + k))
                if i: a("v_pk_add_f32 v[%d:%d], v[%d:%d], v[%d:%d]" % (S + 2 * k, S + 2 * k + 1, S + 2 * k, S + 2 * k + 1, vFR, vFR + 1))
        a("s_nop 0")
        for k in range(8):
            a("v_add_f32_dpp v%d, v%d, v%d row_ror:8 row_mask:0xf bank_mask:0xf" % (S + k, S + k, S + k))
        for op in ("v_permlane16_swap_b32", "v_permlane32_swap_b32"):
            for k in range(8): a("v_mov_b32 v%d, v%d" % (vFR + k, S + k))
            a("s_nop 0")
            for k in range(8): a("%s v%d, v%d" % (op, S + k, vFR + k))
            for k in range(8): a("v_add_f32 v%d, v%d, v%d" % (S + k, S + k, vFR + k))
        a("v_and_b32 v%d, 7, v1" % t)
        a("v_lshlrev_b32 v%d, 5, v%d" % (t, t))
        a("s_lshl_b32 s%d, s%d, 8" % (sT0, sWAVE))
        a("s_add_u32 s%d, s%d, %d" % (sT0, sT0, L_CSX))
        a("v_add_u32 v%d, s%d, v%d" % (t, sT0, t))
        self.dsop("ds_write_b128 v%d, v[%d:%d]" % (t, S, S + 3))
        self.dsop("ds_write_b128 v%d, v[%d:%d] offset:16" % (t, S + 4, S + 7))
        self.get_nonce("non")
        self.wait_vm(); self.wait_ds()
        a("s_barrier")
        self.publish_A()
        L = a.newlabel("nocs")
        a("s_cmp_lg_u32 s%d, 1" % sWAVE)
        a("s_cbranch_scc1 %s" % L)
        a("s_cmp_ge_u32 s%d, 28" % sSPARE)
        a("s_cbranch_scc1 %s" % L)
        a("v_and_b32 v%d, 15, v1" % t)
        a("v_lshlrev_b32 v%d, 4, v%d" % (t, t))
        a("v_add_u32 v%d, %d, v%d" % (t + 1, L_CSX, t))
        for k in range(4): a("ds_read_b128 v[%d:%d], v%d offset:%d" % (vFR + 4 * k, vFR + 4 * k + 3, t + 1, 256 * k))
        a("s_waitcnt lgkmcnt(0)")
        for k in range(1, 4):
            for q in range(0, 4, 2):
                a("v_pk_add_f32 v[%d:%d], v[%d:%d], v[%d:%d]" % (vFR + q, vFR + q + 1, vFR + q, vFR + q + 1, vFR + 4 * k + q, vFR + 4 * k + q + 1))
        a("s_lshl_b32 s%d, s%d, 8" % (sT0, sSPARE))
        a("s_add_u32 s%d, s%d, 0x%x" % (sT0, sT0, WS_CS))
        a("s_mov_b64 exec, 0xffff")
        a("buffer_store_dwordx4 v[%d:%d], v%d, s[%d:%d], s%d offen sc1" % (vFR, vFR + 3, t, SRD_WS, SRD_WS + 3, sT0))
        a("s_mov_b64 exec, -1")
        a("s_lshl_b32 s%d, s%d, 2" % (sT0, sSPARE))
        a("s_add_u32 s%d, s%d, 0x%x" % (sT0, sT0, WS_FC))
        a("s_waitcnt vmcnt(0)")
        self.publish(sT0, vT)
        a.label(L)
        self.w2_setup()
        for f in self.w2_dma_ops(0) + self.w2_dma_ops(4): f()
        self.poll(lambda: self.load_flagsA(False), [vFLQ, vFLQ + 1, vFLQ + 2, vFLQ + 3])
        self.load_u()
        self.wait_vm()

    def stage_u(self):
        a = self.a
        a.c("==== stage xn^T (two channels) into LDS")
        self.wait_vm("u")
        R = vFR
        M = vFR + 8
        W = vFR + 16
        for k in range(8):
            a("v_and_b32 v%d, 0xffff0000, v%d" % (R + k, vUL + 8 + k))
            a("v_rcp_f32 v%d, v%d" % (R + k, R + k))
            a("v_lshlrev_b32 v%d, 16, v%d" % (M + k, vUL + 8 + k))
        a("v_lshlrev_b32 v%d, 4, v0" % vT)
        a("v_add_u32 v%d, %d, v%d" % (vT, L_U, vT))
        for ch in range(2):
            for k in range(4):
                s = vUL + 4 * ch + k
                a("v_lshlrev_b32 v%d, 16, v%d\nv_and_b32 v%d, 0xffff0000, v%d" % (W, s, W + 1, s))
                a("v_pk_add_f32 v[%d:%d], v[%d:%d], v[%d:%d] neg_lo:[0,1] neg_hi:[0,1]" % (W, W + 1, W, W + 1, M + 2 * k, M + 2 * k + 1))
                a("v_cvt_pk_bf16_f32 v%d, v%d, v%d" % (s, W, W + 1))
                a("v_lshlrev_b32 v%d, 16, v%d\nv_and_b32 v%d, 0xffff0000, v%d" % (W, s, W + 1, s))
                a("v_pk_mul_f32 v[%d:%d], v[%d:%d], v[%d:%d]" % (W, W + 1, W, W + 1, R + 2 * k, R + 2 * k + 1))
                a("v_cvt_pk_bf16_f32 v%d, v%d, v%d" % (s, W, W + 1))
            self.dsop("ds_write_b128 v%d, v[%d:%d] offset:%d" % (vT, vUL + 4 * ch, vUL + 4 * ch + 3, 512 + 4608 * ch))
        for k in range(4): a("v_mov_b32 v%d, 0" % (W + k))
        a("v_and_b32 v%d, 31, v1" % (vT + 1))
        a("v_lshlrev_b32 v%d, 4, v%d" % (vT + 1, vT + 1))
        a("v_add_u32 v%d, %d, v%d" % (vT + 1, L_U, vT + 1))
        self.dsop("ds_write_b128 v%d, v[%d:%d]" % (vT + 1, W, W + 3))
        self.dsop("ds_write_b128 v%d, v[%d:%d] offset:4608" % (vT + 1, W, W + 3))
        a("v_min_u32 v%d, 8, v1" % (vT + 1))
        a("v_lshlrev_b32 v%d, 2, v%d" % (vT + 1, vT + 1))
        a("v_add_u32 v%d, %d, v%d" % (vT + 1, L_K, vT + 1))
        for ch in range(2):
            self.dsop("ds_write_b32 v%d, v%d offset:%d" % (vT + 1, W, 8320 * ch + 4096))
            self.dsop("ds_write_b32 v%d, v%d offset:%d" % (vT + 1, W, 8320 * ch + 4160 + 4092))
    def cmul(self, d, x, y):
        a = self.a
        a("v_pk_mul_f32 v[%d:%d], v[%d:%d], v[%d:%d] op_sel_hi:[0,1]" % (d, d + 1, x, x + 1, y, y + 1))
        a("v_pk_fma_f32 v[%d:%d], v[%d:%d], v[%d:%d], v[%d:%d] op_sel:[1,1,0] op_sel_hi:[1,0,1] neg_lo:[0,1,0]" % (d, d + 1, x, x + 1, y, y + 1, d, d + 1))
    def kgen(self, mid=None):
        a = self.a
        a.c("==== kernel generation: K[l] = Re sum_n CB_n z_n^bf16(l)")
        AD = 128
        Z1, Z16, Z256, CB = 144, 146, 148, 150
        WR = 152
        VV = 186
        PK = 190
        t = vT
        a("s_lshl_b32 s%d, s%d, 14" % (sT0, sWAVE))
        a("s_add_u32 s%d, s%d, %d" % (sT0, sT0, 2 * SLOT))
        a("v_lshl_add_u32 v%d, v1, 2, s%d" % (AD, sT0))
        for k in range(1, 16): a("v_xor_b32 v%d, %d, v%d" % (AD + k, 16 * k, AD))
        a("s_waitcnt lgkmcnt(0)"); self.ds = []
        a("s_lshr_b32 s%d, s%d, 1" % (sT1, sWAVE))
        a("s_lshl_b32 s%d, s%d, 4" % (sT1, sT1))
        a("s_lshr_b32 s%d, s%d, s%d" % (sT2, sLDT, sT1))
        a("s_lshl_b32 s%d, s%d, 16" % (sT2, sT2))
        a("s_lshr_b32 s%d, s%d, s%d" % (sDSK, sDSK, sT1))
        a("s_lshl_b32 s%d, s%d, 16" % (sDSK, sDSK))
        a("v_mov_b32 v%d, 0x3fb8aa3b" % t)
        a("v_mul_f32 v%d, s%d, v%d" % (t, sT2, t))
        a("v_exp_f32 v%d, v%d" % (t, t))
        a("s_nop 0")
        a("v_cvt_pk_bf16_f32 v%d, v%d, v%d" % (t, t, t))
        a("v_and_b32 v%d, 0xffff0000, v%d" % (t, t))
        for k in range(4): a("v_mul_f32 v%d, v%d, v%d" % (vPAR + k, t, vPAR + k))
        a("v_mul_f32 v%d, 0x3fb8aa3b, v%d" % (vPAR, vPAR))
        a("v_mul_f32 v%d, 0.15915494, v%d" % (vPAR + 1, vPAR + 1))
        for Z, sc in ((Z1, None), (Z16, "0x41800000"), (Z256, "0x43800000")):
            if sc:
                a("v_mul_f32 v%d, %s, v%d\nv_mul_f32 v%d, %s, v%d" % (t, sc, vPAR, t + 1, sc, vPAR + 1))
                e, p = t, t + 1
            else: e, p = vPAR, vPAR + 1
            a("v_fract_f32 v%d, v%d" % (t + 1, p))
            a("v_exp_f32 v%d, v%d" % (t, e))
            a("v_cos_f32 v%d, v%d" % (Z, t + 1))
            a("v_sin_f32 v%d, v%d" % (Z + 1, t + 1))
            a("s_nop 0")
            a("v_pk_mul_f32 v[%d:%d], v[%d:%d], v[%d:%d] op_sel_hi:[1,0]" % (Z, Z + 1, Z, Z + 1, t, t + 1))
        self.cmul(WR, vPAR + 4, vPAR + 2)
        npk = [0]
        def put(row, src, neg):
            p = PK + (npk[0] & 3); npk[0] += 1
            a("v_cvt_pk_bf16_f32 v%d, v%d, %sv%d" % (p, src, "-" if neg else "", src + 1))
            self.dsop("ds_write_b32 v%d, v%d offset:%d" % (AD + (row & 15), p, row * 256))
        a("v_mov_b32 v%d, 0x3f80" % PK); npk[0] = 1
        self.dsop("ds_write_b32 v%d, v%d" % (AD, PK))
        put(16, WR, False)
        put(1, Z16, True)
        prev = Z16
        for r in range(1, 17):
            self.cmul(WR + 2 * r, WR + 2 * (r - 1), Z1)
            if 2 <= r <= 15:
                cur = VV + 2 * (r & 1)
                self.cmul(cur, prev, Z16); prev = cur
            if r < 16: put(16 + r, WR + 2 * r, False)
            if 2 <= r <= 15: put(r, prev, True)
            if mid and r == 8:
                self.ts(); mid(); self.ts()
        base = {1: 32, 2: 41, 3: 46, 4: 51, 5: 54, 6: 57, 7: 60}
        loc = {r: WR + 2 * r for r in range(17)}
        for T in range(1, 8):
            k = [0, 1, 2, 2, 3, 3, 3, 3][T]
            for n, r in enumerate(range(0, 17, 1 << k)):
                alt = (WR + 2 * (r + 1)) if r < 16 else VV
                dst = alt if loc[r] == WR + 2 * r else WR + 2 * r
                self.cmul(dst, loc[r], Z256); loc[r] = dst
                put(base[T] + n, dst, False)
        self.ts()
        KA = 64
        BF = 144
        AF = 160
        a("v_and_b32 v%d, 15, v1" % t)
        a("v_lshrrev_b32 v%d, 4, v1" % (t + 1))
        def addr(dst, rowreg):
            a("v_and_b32 v%d, 15, v%d" % (t + 5, rowreg))
            a("v_xor_b32 v%d, v%d, v%d" % (t + 5, t + 5, t + 1))
            a("v_lshlrev_b32 v%d, 4, v%d" % (t + 5, t + 5))
            a("v_lshl_add_u32 v%d, v%d, 8, v%d" % (t + 5, rowreg, t + 5))
            a("v_add_u32 v%d, s%d, v%d" % (dst, sT0, t + 5))
        AA = 96
        addr(AA, t)
        a("v_add_u32 v%d, 4096, v%d" % (AA + 1, AA))
        rho = {}
        for k in (1, 2, 3):
            a("v_bfe_u32 v%d, v%d, %d, 1" % (t + 2, t, k))
            a("v_add3_u32 v%d, v%d, v%d, %d" % (t + 2, t + 2, t, (1 << (k - 1)) - 1))
            a("v_lshrrev_b32 v%d, %d, v%d" % (t + 2, k, t + 2))
            for T in range(1, 8):
                if [0, 1, 2, 2, 3, 3, 3, 3][T] != k: continue
                a("v_add_u32 v%d, %d, v%d" % (t + 3, base[T], t + 2))
                addr(AA + 1 + T, t + 3)
        self.wait_ds()
        for ks in range(4):
            if ks: a("v_xor_b32 v%d, %d, v%d" % (t + 2, 64 * ks, AA))
            self.dsop("ds_read_b128 v[%d:%d], v%d" % (BF + 4 * ks, BF + 4 * ks + 3, t + 2 if ks else AA), "kb")
        seq = [(T, ks) for ks in range(4) for T in range(8)]
        def rd(n):
            T, ks = seq[n]
            r = AA + 1 + T
            if ks:
                a("v_xor_b32 v%d, %d, v%d" % (r, 64 * (ks ^ (ks - 1)), r))
            self.dsop("ds_read_b128 v[%d:%d], v%d" % (AF + 4 * (n & 7), AF + 4 * (n & 7) + 3, r), "ka%d" % n)
        for n in range(8): rd(n)
        for n in range(32):
            T, ks = seq[n]
            self.wait_ds("ka%d" % n)
            D = KA + 4 * T
            a("v_mfma_f32_16x16x32_bf16 v[%d:%d], v[%d:%d], v[%d:%d], %s" % (D, D + 3, AF + 4 * (n & 7), AF + 4 * (n & 7) + 3, BF + 4 * ks, BF + 4 * ks + 3,
                                                                          "0" if ks == 0 else "v[%d:%d]" % (D, D + 3)))
            if n + 8 < 32: rd(n + 8)
        a("v_lshl_add_u32 v%d, v1, 4, s%d" % (t, sT0))
        a("v_xor_b32 v%d, 16384, v%d" % (t + 1, t))
        Lh, Lj = a.newlabel("khi"), a.newlabel("kj")
        a("s_and_b32 s%d, s%d, 1" % (sT1, sWAVE))
        a("s_cmp_lg_u32 s%d, 0" % sT1)
        a("s_nop 3")
        a("s_cbranch_scc1 %s" % Lh)
        for k in range(4): a("ds_write_b128 v%d, v[%d:%d] offset:%d" % (t, KA + 16 + 4 * k, KA + 19 + 4 * k, 1024 * k))
        a("s_branch %s" % Lj)
        a.label(Lh)
        for k in range(4): a("ds_write_b128 v%d, v[%d:%d] offset:%d" % (t, KA + 4 * k, KA + 3 + 4 * k, 1024 * k))
        a("s_nop 0")
        for k in range(16): a("v_mov_b32 v%d, v%d" % (KA + k, KA + 16 + k))
        a.label(Lj)
        a("s_waitcnt lgkmcnt(0)"); self.ds = []
        a("s_barrier")
        for k in range(4): self.dsop("ds_read_b128 v[%d:%d], v%d offset:%d" % (KA + 16 + 4 * k, KA + 19 + 4 * k, t + 1, 1024 * k), "kx%d" % k)
        a("s_lshr_b32 s%d, s%d, 1" % (sT2, sWAVE))
        a("s_mul_i32 s%d, s%d, 8320" % (sT2, sT2))
        a("s_lshl_b32 s%d, s%d, 11" % (sT1, sT1))
        a("s_sub_u32 s%d, s%d, s%d" % (sT2, sT2, sT1))
        a("s_add_u32 s%d, s%d, %d" % (sT2, sT2, L_K + 4088 - 1536))
        a("v_and_b32 v%d, 15, v1" % (t + 2))
        a("v_lshlrev_b32 v%d, 5, v%d" % (t + 2, t + 2))
        a("v_lshrrev_b32 v%d, 4, v1" % (t + 3))
        a("v_lshl_add_u32 v%d, v%d, 3, v%d" % (t + 2, t + 3, t + 2))
        a("v_sub_u32 v%d, s%d, v%d" % (t + 2, sT2, t + 2))
        for k in range(4):
            D = KA + 4 * k
            self.wait_ds("kx%d" % k)
            a("v_pk_add_f32 v[%d:%d], v[%d:%d], v[%d:%d]" % (D, D + 1, D, D + 1, D + 16, D + 17))
            a("v_pk_add_f32 v[%d:%d], v[%d:%d], v[%d:%d]" % (D + 2, D + 3, D + 2, D + 3, D + 18, D + 19))
            Q = AF + 4 * k
            a("v_cvt_pk_bf16_f32 v%d, v%d, v%d" % (Q, D + 3, D + 2))
            a("v_cvt_pk_bf16_f32 v%d, v%d, v%d" % (Q + 1, D + 1, D))
            a("v_cvt_pk_bf16_f32 v%d, v%d, v%d" % (Q + 2, D + 2, D + 1))
            o = 512 * (3 - k)
            self.dsop("ds_write_b64 v%d, v[%d:%d] offset:%d" % (t + 2, Q, Q + 1, o))
            self.dsop("ds_write_b32 v%d, v%d offset:%d" % (t + 2, Q + 2, o + 4160))
            self.dsop("ds_write_b16_d16_hi v%d, v%d offset:%d" % (t + 2, Q + 1, o + 4164))
            self.dsop("ds_write_b16 v%d, v%d offset:%d" % (t + 2, Q, o + 4158))
    def conv(self):
        a = self.a
        a.c("==== causal convolution, Hankel(K) x windows(u)")
        t = vT
        YA = 64
        AA = 96
        FA_, FB_ = 128, 160
        a("s_lshr_b32 s%d, s%d, 1" % (sT0, sWAVE))
        a("s_and_b32 s%d, s%d, 1" % (sT1, sWAVE))
        a("v_and_b32 v%d, 15, v1" % t)
        a("v_lshrrev_b32 v%d, 4, v1" % (t + 1))
        a("v_and_b32 v%d, 1, v1" % (t + 2))
        a("v_mul_u32_u24 v%d, %d, v%d" % (t + 2, 4160 - 2, t + 2))
        a("v_lshl_add_u32 v%d, v%d, 1, v%d" % (t + 2, t, t + 2))
        a("v_lshlrev_b32 v%d, 4, v%d" % (t + 3, t + 1))
        a("v_sub_u32 v%d, v%d, v%d" % (t + 2, t + 3, t + 2))
        a("s_mul_i32 s%d, s%d, 8320" % (sT2, sT0))
        a("s_lshl_b32 s%d, s%d, 8" % (sT3, sT1))
        a("s_sub_u32 s%d, s%d, s%d" % (sT2, sT2, sT3))
        a("s_add_u32 s%d, s%d, %d" % (sT2, sT2, L_K + 4160 + 4060 - 192 - 512))
        a("v_add_u32 v%d, s%d, v%d" % (AA, sT2, t + 2))
        for ap in range(1, 4): a("v_subrev_u32 v%d, %d, v%d" % (AA + ap, 1024 * ap, AA))
        a("v_lshl_add_u32 v%d, v%d, 5, v%d" % (t + 2, t, t + 3))
        a("s_mul_i32 s%d, s%d, 4608" % (sT2, sT0))
        a("s_sub_u32 s%d, s%d, s%d" % (sT2, sT2, sT3))
        a("s_add_u32 s%d, s%d, %d" % (sT2, sT2, L_U + 512 - 32 - 192))
        a("v_add_u32 v%d, s%d, v%d" % (AA + 4, sT2, t + 2))
        self.wait_ds()
        a("s_barrier")
        self.ts()
        w2 = self.w2_dma_ops(8) + self.w2_dma_ops(12)
        def rdA(it, aa):
            o = 16 * (3 - it) + 128 * (1 - (aa & 1))
            self.dsop("ds_read2_b32 v[%d:%d], v%d offset0:%d offset1:%d" % (FA_ + 4 * aa, FA_ + 4 * aa + 1, AA + (aa >> 1), o, o + 1))
            self.dsop("ds_read2_b32 v[%d:%d], v%d offset0:%d offset1:%d" % (FA_ + 4 * aa + 2, FA_ + 4 * aa + 3, AA + (aa >> 1), o + 2, o + 3), "A%d_%d" % (it, aa))
        def rdB(it, b):
            self.dsop("ds_read_b128 v[%d:%d], v%d offset:%d" % (FB_ + 4 * b, FB_ + 4 * b + 3, AA + 4, 512 * b + 64 * (3 - it)), "B%d_%d" % (it, b))
        rdA(0, 0)
        for b in range(7, -1, -1): rdB(0, b)
        rdA(0, 1)
        need = self.wait_ds
        for it in range(4):
            for aa in range(8):
                for b in range(7 - aa, -1, -1):
                    need("A%d_%d" % (it, aa)); need("B%d_%d" % (it, b))
                    D = YA + 4 * (aa + b)
                    a("v_mfma_f32_16x16x32_bf16 v[%d:%d], v[%d:%d], v[%d:%d], %s" % (D, D + 3, FA_ + 4 * aa, FA_ + 4 * aa + 3, FB_ + 4 * b, FB_ + 4 * b + 3,
                                                                                  "0" if (it == 0 and aa == 0) else "v[%d:%d]" % (D, D + 3)))
                    if b == 7 - aa:
                        if it == 0 and aa + 2 < 8: rdA(0, aa + 2)
                        if it < 3: rdB(it + 1, b)
                    if b == 0 and it < 3: rdA(it + 1, aa)
                    if b == 1 and w2 and aa < 4: w2.pop(0)()
        assert not w2
        self.ts()
        a("v_lshlrev_b32 v%d, 4, v1" % t)
        a("s_lshl_b32 s%d, s%d, 12" % (sT2, sWAVE))
        a("s_add_u32 s%d, s%d, %d" % (sT2, sT2, L_K))
        a("v_add_u32 v%d, s%d, v%d" % (t + 2, sT2, t))
        a("s_xor_b32 s%d, s%d, 1" % (sT2, sWAVE))
        a("s_lshl_b32 s%d, s%d, 12" % (sT2, sT2))
        a("s_add_u32 s%d, s%d, %d" % (sT2, sT2, L_K))
        a("v_add_u32 v%d, s%d, v%d" % (t + 3, sT2, t))
        a("v_and_b32 v%d, 15, v1" % (t + 4))
        a("v_lshlrev_b32 v%d, 5, v%d" % (t + 4, t + 4))
        a("v_lshl_add_u32 v%d, v%d, 3, v%d" % (t + 4, t + 1, t + 4))
        a("s_mul_i32 s%d, s%d, 4608" % (sT2, sT0))
        a("s_lshl_b32 s%d, s%d, 11" % (sT3, sT1))
        a("s_add_u32 s%d, s%d, s%d" % (sT2, sT2, sT3))
        a("s_add_u32 s%d, s%d, %d" % (sT2, sT2, L_U + 512))
        a("v_add_u32 v%d, s%d, v%d" % (t + 5, sT2, t + 4))
        for k in range(4): self.dsop("ds_read_b64 v[%d:%d], v%d offset:%d" % (FA_ + 2 * k, FA_ + 2 * k + 1, t + 5, 512 * k))
        a("s_barrier")
        Lh, Lj = a.newlabel("yhi"), a.newlabel("yj")
        a("s_cmp_lg_u32 s%d, 0" % sT1)
        a("s_cbranch_scc1 %s" % Lh)
        for k in range(4): a("ds_write_b128 v%d, v[%d:%d] offset:%d" % (t + 2, YA + 16 + 4 * k, YA + 19 + 4 * k, 1024 * k))
        a("s_branch %s" % Lj)
        a.label(Lh)
        for k in range(4): a("ds_write_b128 v%d, v[%d:%d] offset:%d" % (t + 2, YA + 4 * k, YA + 3 + 4 * k, 1024 * k))
        a("s_nop 0")
        for k in range(16): a("v_mov_b32 v%d, v%d" % (YA + k, YA + 16 + k))
        a.label(Lj)
        a("s_waitcnt lgkmcnt(0)"); self.ds = []
        a("s_barrier")
        for k in range(4): self.dsop("ds_read_b128 v[%d:%d], v%d offset:%d" % (YA + 16 + 4 * k, YA + 19 + 4 * k, t + 3, 1024 * k), "yx%d" % k)
        a("s_lshl_b32 s%d, s2, 1" % sT2)
        a("s_add_u32 s%d, s%d, s%d" % (sT2, sT2, sT0))
        a("s_lshl_b32 s%d, s%d, 9" % (sT0, sT1))
        a("s_add_u32 s%d, s%d, s%d" % (sT0, sT0, sT2))
        a("s_lshl_b32 s%d, s%d, 2" % (sT0, sT0))
        a("s_add_u32 s%d, s%d, 0x%x" % (sT0, sT0, WS_FY))
        a("s_lshl_b32 s%d, s%d, 12" % (sT2, sT2))
        a("s_add_u32 s%d, s%d, s%d" % (sT2, sT2, sT3))
        a("s_add_u32 s%d, s%d, 0x%x" % (sT2, sT2, WS_YT))
        W = FB_
        for k in range(4):
            D = YA + 4 * k
            for q in range(2):
                a("v_lshlrev_b32 v%d, 16, v%d\nv_and_b32 v%d, 0xffff0000, v%d" % (W + 2 * q, FA_ + 2 * k + q, W + 2 * q + 1, FA_ + 2 * k + q))
            for q in range(4): a("v_fmac_f32 v%d, s%d, v%d" % (D + q, sDSK, W + q))
            self.wait_ds("yx%d" % k)
            a("v_pk_add_f32 v[%d:%d], v[%d:%d], v[%d:%d]" % (D, D + 1, D, D + 1, D + 16, D + 17))
            a("v_pk_add_f32 v[%d:%d], v[%d:%d], v[%d:%d]" % (D + 2, D + 3, D + 2, D + 3, D + 18, D + 19))
            Q = W + 4 + 2 * k
            a("v_cvt_pk_bf16_f32 v%d, v%d, v%d\nv_cvt_pk_bf16_f32 v%d, v%d, v%d" % (Q, D, D + 1, Q + 1, D + 2, D + 3))
            self.vmem("buffer_store_dwordx2 v[%d:%d], v%d, s[%d:%d], s%d offen offset:%d sc1" % (Q, Q + 1, t + 4, SRD_WS, SRD_WS + 3, sT2, 512 * k), "y")
        a("s_mov_b32 s%d, s%d" % (sLDT, sT0))
    def gemm2(self):
        a = self.a
        a.c("==== GEMM2")
        t = vT
        HR, NH = 128, 10
        WF = 208
        EX, EY, ESD = 224, 232, 240
        def ld_flagsH():
            a("v_min_u32 v%d, 6, v1" % t)
            a("v_lshlrev_b32 v%d, 2, v%d" % (t, t))
            a("s_lshl_b32 s%d, s%d, 5" % (sT3, sMB))
            a("s_mul_i32 s%d, s%d, 7" % (sT2, sWAVE))
            a("s_add_u32 s%d, s%d, s%d" % (sT3, sT3, sT2))
            a("s_lshl_b32 s%d, s%d, 2" % (sT3, sT3))
            a("s_add_u32 s%d, s%d, 0x%x" % (sT3, sT3, WS_FH))
            self.vmem("buffer_load_dword v%d, v%d, s[%d:%d], s%d offen sc1" % (vFL, t, SRD_WS, SRD_WS + 3, sT3), "poll")
        self.ts()
        self.poll(ld_flagsH, [vFL])
        self.publish(sLDT, vT)
        self.ts()
        vH0, vH1 = vFLQ, vFLQ + 1
        a("v_lshlrev_b32 v%d, 4, v1" % vH0)
        a("v_add_u32 v%d, %d, v%d" % (vH1, 112 * 1024, vH0))
        a("s_mul_i32 s%d, s%d, 224" % (sHO, sMB))
        a("s_mul_i32 s%d, s%d, 28" % (sT2, sWAVE))
        a("s_add_u32 s%d, s%d, s%d" % (sHO, sHO, sT2))
        a("s_lshl_b32 s%d, s%d, 10" % (sHO, sHO))
        def ldH(s):
            R = HR + 8 * (s % NH)
            if s and s % 4 == 0: a("s_add_u32 s%d, s%d, 4096" % (sHO, sHO))
            self.vmem("buffer_load_dwordx4 v[%d:%d], v%d, s[%d:%d], s%d offen offset:%d sc1" % (R, R + 3, vH0, SRD_WS, SRD_WS + 3, sHO, 1024 * (s & 3)), "h%d" % s)
            self.vmem("buffer_load_dwordx4 v[%d:%d], v%d, s[%d:%d], s%d offen offset:%d sc1" % (R + 4, R + 7, vH1, SRD_WS, SRD_WS + 3, sHO, 1024 * (s & 3)), "h%d" % s)
        def rdW(s):
            slot = (s >> 2) & 3
            ad = vA2 + 2 * (slot >> 1)
            o = (slot & 1) * SLOT + (s & 3) * 2048
            R = WF + 8 * (s & 1)
            return [("ds_read_b64_tr_b16 v[%d:%d], v%d offset:%d" % (R + 4 * dt + 2 * tt, R + 4 * dt + 2 * tt + 1, ad + dt, o + 1024 * tt), "W%d_%d" % (s, dt))
                    for dt in range(2) for tt in range(2)]
        AH = NH - 1
        for s in range(AH): ldH(s)
        need = self.wait_vm
        need("w2_0")
        for r, tg in rdW(0): self.dsop(r, tg)
        def epi_prefetch1():
            a("v_and_b32 v%d, 15, v1" % t)
            a("v_lshrrev_b32 v%d, 4, v1" % (t + 1))
            a("s_lshl_b32 s%d, s%d, 2" % (sT3, sMB))
            a("s_add_u32 s%d, s%d, s%d" % (sT3, sT3, sWAVE))
            a("s_lshl_b32 s%d, s%d, 6" % (sT2, sT3))
            a("s_add_u32 s%d, s%d, 0x%x" % (sT2, sT2, WS_ST))
            a("v_lshlrev_b32 v%d, 2, v%d" % (t + 2, t))
            self.vmem("buffer_load_dword v%d, v%d, s[%d:%d], s%d offen sc1" % (ESD, t + 2, SRD_WS, SRD_WS + 3, sT2), "ex")
            a("v_lshlrev_b32 v%d, 10, v%d" % (t, t))
            a("v_lshl_add_u32 v%d, v%d, 4, v%d" % (ESD + 1, t + 1, t))
            a("s_lshl_b32 s%d, s%d, 14" % (sT3, sT3))
            a("s_lshl_b32 s%d, s%d, 7" % (sT2, sDB))
            a("s_add_u32 s%d, s%d, s%d" % (sSOX, sT3, sT2))
            self.vmem("buffer_load_dwordx4 v[%d:%d], v%d, s[%d:%d], s%d offen" % (EX, EX + 3, ESD + 1, SRD_X, SRD_X + 3, sSOX), "ex")
            self.vmem("buffer_load_dwordx4 v[%d:%d], v%d, s[%d:%d], s%d offen offset:64" % (EX + 4, EX + 7, ESD + 1, SRD_X, SRD_X + 3, sSOX), "ex")
            ld_flagsY()
        def ld_flagsY():
            a("v_lshlrev_b32 v%d, 2, v1" % t)
            a("s_lshr_b32 s%d, s%d, 4" % (sT3, sMB))
            a("s_lshl_b32 s%d, s%d, 3" % (sT3, sT3))
            a("s_add_u32 s%d, s%d, s%d" % (sT3, sT3, sDB))
            a("s_lshl_b32 s%d, s%d, 8" % (sT3, sT3))
            a("s_add_u32 s%d, s%d, 0x%x" % (sT3, sT3, WS_FY))
            self.vmem("buffer_load_dword v%d, v%d, s[%d:%d], s%d offen sc1" % (vFL, t, SRD_WS, SRD_WS + 3, sT3), "polly")
        def epi_prefetch2():
            self.poll(ld_flagsY, [vFL], "polly")
            a("v_lshrrev_b32 v%d, 2, v0" % t)
            a("v_and_b32 v%d, 3, v0" % (t + 1))
            a("v_lshlrev_b32 v%d, 4, v%d" % (t + 1, t + 1))
            a("v_lshl_add_u32 v%d, v%d, 12, v%d" % (t + 2, t, t + 1))
            a("v_mul_u32_u24 v%d, 144, v%d" % (t, t))
            a("v_add3_u32 v%d, v%d, v%d, s%d" % (ESD + 2, t, t + 1, sSOW))
            a("s_lshl_b32 s%d, s%d, 18" % (sT3, sDB))
            a("s_lshl_b32 s%d, s%d, 7" % (sT2, sMB))
            a("s_add_u32 s%d, s%d, s%d" % (sT3, sT3, sT2))
            a("s_add_u32 s%d, s%d, 0x%x" % (sT3, sT3, WS_YT))
            self.vmem("buffer_load_dwordx4 v[%d:%d], v%d, s[%d:%d], s%d offen sc1" % (EY, EY + 3, t + 2, SRD_WS, SRD_WS + 3, sT3), "ey")
            self.vmem("buffer_load_dwordx4 v[%d:%d], v%d, s[%d:%d], s%d offen offset:64 sc1" % (EY + 4, EY + 7, t + 2, SRD_WS, SRD_WS + 3, sT3), "ey")
        a("s_mov_b32 s%d, %d" % (sSOW, L_YS))
        for s in range(28):
            R = HR + 8 * (s % NH)
            Wr = WF + 8 * (s & 1)
            nxt = []
            if s + 1 < 28:
                need("w2_%d" % (s + 1))
                nxt = rdW(s + 1)
            need("h%d" % s)
            for i in range(4):
                dt, tt = i >> 1, i & 1
                if tt == 0: self.wait_ds("W%d_%d" % (s, dt))
                D = vACC + 16 * i
                a("v_mfma_f32_32x32x16_bf16 v[%d:%d], v[%d:%d], v[%d:%d], %s" % (D, D + 15, Wr + 4 * dt, Wr + 4 * dt + 3, R + 4 * tt, R + 4 * tt + 3,
                                                                              "0" if s == 0 else "v[%d:%d]" % (D, D + 15)))
                if i < 2:
                    for r, tg in nxt[2 * i:2 * i + 2]: self.dsop(r, tg)
            if s & 1 and s + 15 < 28:
                for f in self.w2_dma_ops(s + 15, 2): f()
            if s + AH < 28: ldH(s + AH)
            if s == 17: epi_prefetch1()
            if s == 21: epi_prefetch2()
        self.ts()
        a.c("==== reduction over the four k-quarters and output")
        need("ey")
        self.dsop("ds_write_b128 v%d, v[%d:%d]" % (ESD + 2, EY, EY + 3))
        self.dsop("ds_write_b128 v%d, v[%d:%d] offset:64" % (ESD + 2, EY + 4, EY + 7))
        a("v_and_b32 v%d, 31, v1" % t)
        a("v_lshrrev_b32 v%d, 5, v1" % (t + 1))
        a("v_and_b32 v%d, 15, v1" % (t + 2))
        a("v_xor_b32 v%d, v%d, v%d" % (t + 1, t + 1, t + 2))
        a("v_lshlrev_b32 v%d, 4, v%d" % (t + 1, t + 1))
        a("v_lshl_add_u32 v%d, v%d, 8, v%d" % (t + 1, t, t + 1))
        a("s_lshl_b32 s%d, s%d, 14" % (sT3, sWAVE))
        a("v_add_u32 v%d, s%d, v%d" % (HR, sT3, t + 1))
        for k in range(1, 8): a("v_xor_b32 v%d, %d, v%d" % (HR + k, 32 * k, HR))
        a("s_barrier")
        for i in range(4):
            dt, tt = i >> 1, i & 1
            for g in range(4):
                D = vACC + 16 * i + 4 * g
                self.dsop("ds_write_b128 v%d, v[%d:%d] offset:%d" % (HR + 4 * dt + g, D, D + 3, 8192 * tt))
        a("v_lshrrev_b32 v%d, 4, v1" % (t + 1))
        a("v_lshlrev_b32 v%d, 1, v%d" % (t + 3, t + 1))
        a("v_xor_b32 v%d, v%d, v%d" % (t + 3, t + 3, t + 2))
        a("v_lshlrev_b32 v%d, 4, v%d" % (t + 3, t + 3))
        a("v_lshl_add_u32 v%d, v%d, 8, v%d" % (t + 3, t + 2, t + 3))
        a("s_lshl_b32 s%d, s%d, 12" % (sT3, sWAVE))
        a("v_add_u32 v%d, s%d, v%d" % (HR + 8, sT3, t + 3))
        a("v_xor_b32 v%d, 16, v%d\nv_xor_b32 v%d, 128, v%d\nv_xor_b32 v%d, 144, v%d" % (HR + 9, HR + 8, HR + 10, HR + 8, HR + 11, HR + 8))
        a("v_bfe_u32 v%d, v1, 2, 2" % (t + 3))
        a("v_lshl_add_u32 v%d, v%d, 3, v%d" % (t + 3, t + 1, t + 3))
        a("v_mul_u32_u24 v%d, 144, v%d" % (t + 3, t + 3))
        a("v_and_b32 v%d, 3, v1" % (t + 4))
        a("v_lshl_add_u32 v%d, v%d, 3, v%d" % (t + 3, t + 4, t + 3))
        a("s_lshl_b32 s%d, s%d, 5" % (sT3, sWAVE))
        a("s_add_u32 s%d, s%d, %d" % (sT3, sT3, L_YS))
        a("v_add_u32 v%d, s%d, v%d" % (t + 3, sT3, t + 3))
        a("v_and_b32 v%d, 0xffff0000, v%d" % (ESD, ESD))
        a("v_rcp_f32 v%d, v%d" % (ESD, ESD))
        T1 = HR + 16
        for k in range(8):
            a("v_lshlrev_b32 v%d, 16, v%d\nv_and_b32 v%d, 0xffff0000, v%d" % (T1 + 2 * k, EX + k, T1 + 2 * k + 1, EX + k))
        self.wait_ds()
        a("s_barrier")
        for j in range(4):
            self.dsop("ds_read_b64_tr_b16 v[%d:%d], v%d offset:%d" % (EY + 2 * j, EY + 2 * j + 1, t + 3, ((j & 1) * 4 + (j >> 1) * 32) * 144), "yt")
        for P in range(4):
            for j in range(4):
                self.dsop("ds_read_b128 v[%d:%d], v%d offset:%d" % (vACC + 16 * P + 4 * j, vACC + 16 * P + 4 * j + 3, HR + 8 + j, 16384 * P), "p%d" % P)
        self.wait_ds("yt")
        W = HR + 32
        for k in range(8):
            a("v_lshlrev_b32 v%d, 16, v%d\nv_and_b32 v%d, 0xffff0000, v%d" % (W, EY + k, W + 1, EY + k))
            a("v_pk_add_f32 v[%d:%d], v[%d:%d], v[%d:%d]" % (T1 + 2 * k, T1 + 2 * k + 1, T1 + 2 * k, T1 + 2 * k + 1, W, W + 1))
        for P in range(1, 4):
            self.wait_ds("p%d" % P)
            for k in range(8):
                a("v_pk_add_f32 v[%d:%d], v[%d:%d], v[%d:%d]" % (vACC + 2 * k, vACC + 2 * k + 1, vACC + 2 * k, vACC + 2 * k + 1, vACC + 16 * P + 2 * k, vACC + 16 * P + 2 * k + 1))
        for k in range(8):
            a("v_pk_fma_f32 v[%d:%d], v[%d:%d], v[%d:%d], v[%d:%d] op_sel_hi:[1,0,1]" % (T1 + 2 * k, T1 + 2 * k + 1, vACC + 2 * k, vACC + 2 * k + 1, ESD, ESD + 1, T1 + 2 * k, T1 + 2 * k + 1))
            a("v_cvt_pk_bf16_f32 v%d, v%d, v%d" % (EX + k, T1 + 2 * k, T1 + 2 * k + 1))
        self.ts()
        self.vmem("buffer_store_dwordx4 v[%d:%d], v%d, s[%d:%d], s%d offen" % (EX, EX + 3, ESD + 1, SRD_OUT, SRD_OUT + 3, sSOX))
        self.vmem("buffer_store_dwordx4 v[%d:%d], v%d, s[%d:%d], s%d offen offset:64" % (EX + 4, EX + 7, ESD + 1, SRD_OUT, SRD_OUT + 3, sSOX))

    def finish(self):
        a = self.a
        if self.diag:
            a("s_waitcnt vmcnt(0)")
            self.ts()
            a("s_memrealtime s[%d:%d]" % (sM0, sM1)); a("s_waitcnt lgkmcnt(0)"); a("s_mov_b32 s98, s%d" % sM0)
            a("s_cmp_lg_u32 s%d, 0" % sWAVE); a("s_cbranch_scc1 L_END")
            if self.o["hold"]:
                a.label("L_HOLD")
                a("s_memrealtime s[%d:%d]" % (sM0, sM1)); a("s_waitcnt lgkmcnt(0)")
                a("s_sub_u32 s%d, s%d, s99" % (sT0, sM0))
                a("s_cmp_lt_u32 s%d, %d" % (sT0, self.o["hold"])); a("s_cbranch_scc1 L_HOLD")
            if self.o["dbgts"]:
                a("s_cmp_lg_u32 s2, %d" % self.o["dbgts"]); a("s_cbranch_scc1 L_END")
                a("s_mov_b64 exec, 1")
                sel = [1, 3, 4, 5, 6, 7, 9, 10, 11, 12, 13, 14, 15, 16]
                for n, k in enumerate(sel):
                    a("s_sub_u32 s%d, s%d, s%d" % (sT0, sTS + k, sTS))
                    a("v_mov_b32 v2, s%d" % sT0)
                    a("buffer_store_dword v2, off, s[%d:%d], 0 offset:%d" % (SRD_DBG, SRD_DBG + 3, 4 * n + 4))
                a("s_sub_u32 s%d, s98, s99" % sT0)
                a("v_mov_b32 v2, s%d" % sT0)
                a("buffer_store_dword v2, off, s[%d:%d], 0 offset:60" % (SRD_DBG, SRD_DBG + 3))
                a("s_waitcnt vmcnt(0)")
                a("s_branch L_END")
            a("s_lshl_b32 s%d, s2, 7" % sT0); a("s_add_u32 s%d, s%d, 0x%x" % (sT0, sT0, WS_TS))
            a("s_mov_b64 exec, 1")
            for k in range(20):
                a("v_mov_b32 v2, s%d" % (sTS + k))
                a("buffer_store_dword v2, off, s[%d:%d], s%d offset:%d" % (SRD_WS, SRD_WS + 3, sT0, 4 * k))
            a("s_waitcnt vmcnt(0)")
        a.label("L_END")
        a("s_endpgm")

    def build(self):
        a = self.a
        if self.diag:
            for k in range(20): a("s_mov_b32 s%d, 0" % (sTS + k))
        self.setup()
        a("s_cmp_eq_u32 s%d, 7" % sDB)
        a("s_cbranch_scc1 L_SPARE")
        vm0, nts0 = list(self.vm), self.nts
        self.chunk_soffsets()
        for f in self.g1_dma_ops(0, "c0"): f()
        self.params_load()
        self.chunk_soffsets()
        for f in self.g1_dma_ops(1, "c1"): f()
        self.g1_addr()
        if not self.o["g1only"]: self.ts()
        self.stats()
        if not self.o["g1only"]: self.ts()
        self.gemm1()
        if self.o["g1only"]:
            a("s_branch L_FIN")
            self.diag_save = self.diag; self.diag = False
        self.g1_epilogue()
        self.ts()
        a("s_mov_b32 s%d, 1" % sSPARE)
        a.label("L_JOIN")
        a("s_barrier")
        self.stage_u()
        def mid():
            L = a.newlabel("noH")
            a("s_cmp_eq_u32 s%d, 7" % sDB)
            a("s_cbranch_scc1 %s" % L)
            save = list(self.vm)
            self.publish_H()
            self.vm = save
            a.label(L)
        self.ts()
        self.kgen(mid)
        self.conv()
        self.gemm2()
        a("s_branch L_FIN")
        vm1, ds1, nts1 = self.vm, self.ds, self.nts
        if self.o["g1only"]: self.diag = self.diag_save
        a.label("L_SPARE")
        self.vm, self.ds = vm0, []
        d = self.diag; self.diag = False
        self.spare_path()
        self.diag = d
        a("s_branch L_END" if self.o["g1only"] else "s_branch L_JOIN")
        a.label("L_FIN")
        self.vm, self.ds, self.nts = vm1, ds1, nts1
        self.finish()
        return a

HEADER = open("parallel_sum__ssm_conv_s4__dense_activation_relu__prompt.s.ref").read().split("; Override launch")[0] if __name__ == "__main__" else ""
def full_text(a, header=""):
    return header + """; @launch grid=(256,1,1) block=(256,1,1) lds=%d
.amdgcn_target "amdgcn-amd-amdhsa--gfx950"
.text
.globl %s
.p2align 8
.type %s,@function
%s:
""" % (LDS_BYTES, NAME, NAME, NAME) + a.text() + """.section .rodata,"a"
.p2align 6
.amdhsa_kernel %s
  .amdhsa_next_free_vgpr 256
  .amdhsa_next_free_sgpr 102
  .amdhsa_accum_offset 256
  .amdhsa_group_segment_fixed_size 0
  .amdhsa_kernarg_size 120
  .amdhsa_user_sgpr_count 2
  .amdhsa_user_sgpr_kernarg_segment_ptr 1
  .amdhsa_system_sgpr_workgroup_id_x 1
  .amdhsa_float_denorm_mode_32 3
.end_amdhsa_kernel
""" % NAME

if __name__ == "__main__":
    import argparse
    ap = argparse.ArgumentParser()
    ap.add_argument("-o", default="k.s")
    ap.add_argument("--diag", action="store_true")
    ap.add_argument("--opt", default="")
    args = ap.parse_args()
    opt = {}
    for kv in args.opt.split(","):
        if kv: k, v = kv.split("="); opt[k] = int(v)
    g = Gen(diag=args.diag, opt=opt)
    a = g.build()
    check_hazards(a.lines)
    open(args.o, "w").write(full_text(a, HEADER))
    print("wrote", args.o, "instructions:", sum(1 for l in a.lines if parse(l)))
```

```python
import re
class Asm:
    def __init__(self):
        self.lines = []
        self.nlabel = 0
    def __call__(self, s):
        for ln in s.strip("\n").split("\n"):
            ln = ln.strip()
            if ln: self.lines.append(ln)
    def c(self, s): self.lines.append("; " + s)
    def label(self, name): self.lines.append(name + ":")
    def newlabel(self, base):
        self.nlabel += 1
        return "L_%s_%d" % (base, self.nlabel)
    def text(self):
        out = []
        for l in self.lines:
            if l.endswith(":") and not l.startswith(";"): out.append(l)
            else: out.append("    " + l)
        return "\n".join(out) + "\n"

def vr(a, n=1):
    return "v%d" % a if n == 1 else "v[%d:%d]" % (a, a + n - 1)
def sr(a, n=1):
    return "s%d" % a if n == 1 else "s[%d:%d]" % (a, a + n - 1)

_reg = re.compile(r"^-?\|?(?:abs\()?([vsa])(?:\[(\d+):(\d+)\]|(\d+))\)?\|?$")
def regs(op):
    op = op.strip()
    if op in ("vcc",): return {("s", "vcc")}
    if op == "m0": return {("s", "m0")}
    if op == "exec": return {("s", "exec")}
    m = _reg.match(op)
    if not m: return set()
    if m.group(2) is not None: return {(m.group(1), i) for i in range(int(m.group(2)), int(m.group(3)) + 1)}
    return {(m.group(1), int(m.group(4)))}
TRANS = ("v_exp_f32", "v_log_f32", "v_rcp_f32", "v_rsq_f32", "v_sqrt_f32", "v_sin_f32", "v_cos_f32")
def parse(line):
    line = line.split(";")[0].strip()
    if not line or line.endswith(":") or line.startswith("."): return None
    parts = line.split(None, 1)
    op = parts[0]
    args = []
    if len(parts) > 1:
        args = [a.strip() for a in parts[1].split(",")]
        last = args[-1].split()
        if "[" in args[-1] and args[-1].count("[") > 1 and False: pass
        args = args[:-1] + ([last[0]] if last else [])
    args = [a for a in args if regs(a) or True]
    dst, src = set(), set()
    R = [regs(a.split()[0]) if a else set() for a in args]
    if op.startswith("buffer_store") or op.startswith("global_store") or op.startswith("ds_write"):
        for r in R: src |= r
    elif op.startswith("buffer_load") and " lds" in line:
        for r in R: src |= r
        src |= {("s", "m0")}
    elif op.startswith("v_cmp"):
        dst = R[0]
        for r in R[1:]: src |= r
    elif op.startswith("v_permlane") and "swap" in op:
        dst = R[0] | R[1]; src = R[0] | R[1]
    elif op.startswith("s_cmp") or op.startswith("s_cbranch") or op.startswith("s_waitcnt") or op in ("s_nop", "s_barrier", "s_branch", "s_endpgm", "s_setprio", "s_sleep"):
        for r in R: src |= r
    else:
        if R: dst = R[0]
        for r in R[1:]: src |= r
        if op.startswith("v_fmac") or op.startswith("v_mac") or "d16" in op or op.startswith("v_writelane"): src |= R[0]
        if op.startswith("v_cndmask") and len(args) == 3: src |= {("s", "vcc")}
    kind = "salu"
    if op.startswith("v_mfma"): kind = "mfma"
    elif op.startswith("v_"): kind = "valu"
    elif op.startswith("ds_"): kind = "ds"
    elif op.startswith("buffer_") or op.startswith("global_"): kind = "vmem"
    elif op.startswith("s_load") or op.startswith("s_mem"): kind = "smem"
    ws = 1
    if op == "s_nop": ws = int(args[0], 0) + 1
    srcC = R[3] if kind == "mfma" else set()
    srcAB = (R[1] | R[2]) if kind == "mfma" else set()
    return dict(op=op, kind=kind, dst=dst, src=src, ws=ws, line=line, srcC=srcC, srcAB=srcAB, dpp=("_dpp" in op or "row_" in line or "quad_perm" in line))

def check_hazards(lines, verbose=True):
    ins = [p for p in (parse(l) for l in lines) if p]
    probs = []
    for i, b in enumerate(ins):
        dist = 0
        for j in range(i - 1, max(-1, i - 24), -1):
            a = ins[j]
            need = 0
            vd = {r for r in a["dst"] if r[0] in "va"}
            sd = {r for r in a["dst"] if r[0] == "s"}
            if a["kind"] == "valu":
                if b["kind"] == "mfma" and vd & b["src"]: need = max(need, 2)
                if b["kind"] == "valu" and b["dpp"] and vd & b["src"]: need = max(need, 2)
                if b["op"].startswith("v_permlane") and vd & b["src"]: need = max(need, 2)
                if (b["op"].startswith("v_readlane") or b["op"].startswith("v_readfirstlane")) and vd & b["src"]: need = max(need, 1)
                if a["op"].replace("_e32", "").replace("_e64", "") in TRANS and b["kind"] == "valu" and b["op"].replace("_e32", "").replace("_e64","") not in TRANS and vd & b["src"]: need = max(need, 1)
                if sd & b["src"]:
                    if b["kind"] == "vmem": need = max(need, 5)
                    elif b["kind"] == "valu": need = max(need, 2)
                    elif b["kind"] in ("salu", "smem"): need = max(need, 1)
            if a["op"].startswith("v_dot"):
                if b["op"] != a["op"] and vd & (b["src"] | b["dst"]): need = max(need, 3)
            if a["kind"] == "mfma":
                p8 = "32x32x16" in a["op"]
                if "4x4x4" in a["op"]:
                    if b["kind"] == "mfma":
                        if vd & b["srcAB"]: need = max(need, 5)
                        if vd & b["srcC"]: need = max(need, 2 if a["dst"] == b["srcC"] else 4)
                    elif b["kind"] in ("valu", "ds", "vmem") and vd & (b["src"] | b["dst"]): need = max(need, 5)
                    if need > dist: probs.append("need %d have %d: [%s] -> [%s]" % (need, dist, a["line"], b["line"]))
                    dist += a["ws"]
                    if dist >= 20: break
                    continue
                if b["kind"] == "mfma":
                    if vd & b["srcAB"]: need = max(need, 12 if p8 else 8)
                    if vd & b["srcC"] and not (a["dst"] == b["srcC"] and a["op"] == b["op"]): need = max(need, 10 if p8 else 6)
                    if vd & b["dst"] and not (a["dst"] == b["dst"]): need = max(need, 10 if p8 else 6)
                elif b["kind"] in ("valu", "ds", "vmem"):
                    if vd & (b["src"] | b["dst"]): need = max(need, 12 if p8 else 8)
                    if b["kind"] == "valu" and a["srcC"] & b["dst"]: need = max(need, 7 if p8 else 3)
            if a["kind"] == "salu" and ("s", "m0") in sd and b["kind"] == "vmem" and " lds" in b["line"]: need = max(need, 1)
            if a["kind"] == "vmem" and ("store_dwordx4" in a["op"] or "store_dwordx3" in a["op"]) and b["kind"] == "valu":
                data = regs(a["line"].split(None, 1)[1].split(",")[0]) if a["op"].startswith("buffer") else regs(a["line"].split(None, 1)[1].split(",")[1])
                if data & b["dst"]: need = max(need, 2)
            if need > dist:
                probs.append("need %d have %d: [%s] -> [%s]" % (need, dist, a["line"], b["line"]))
            dist += a["ws"]
            if dist >= 20: break
    if verbose:
        for p in probs: print("HAZARD", p)
    return probs
```

```python
import sys
from asmlib import *

NAME = "parallel_sum__ssm_conv_s4__dense_activation_relu__prompt_kernel"
BLOCK = 512
WS_H, WS_XN, WS_YT = 0, 0x700000, 0x900000
WS_ST = 0xB00000
WS_FX, WS_FY, WS_TS, WS_FH = 0xB04000, 0xB06000, 0xB10000, 0xB20000
WS_SIZE = 0xB40000
XPART = 16 * 1040
SLOT1 = XPART + 16384
L_TAB = 3 * SLOT1
TABW = 63 * 256
L_SUM = 136960
L_U = L_SUM + 1024
L_K = L_U + 9216
L_CNT = L_SUM - 16
L_YS = L_U
LDS_BYTES = 163840
W2BASE = [2 * SLOT1, 0, SLOT1, 3 * SLOT1]
LNROW = 1040
L_PAR = 69632
L_LNS = 66560
SRD_X, SRD_W1, SRD_W2, SRD_OUT, SRD_WS, SRD_DBG = 36, 40, 44, 48, 52, 56
sWAVE, sMT, sSL, sJ, sC, sNONCE, sMB, sDB = 60, 61, 62, 63, 64, 65, 66, 67
sSOX, sSOW, sLDT, sDSK, sONES, sT0, sT1, sT2, sT3, sCNT = 68, 69, 70, 71, 72, 73, 74, 75, 76, 77
sW2A, sW2B, sHA, sHB = 78, 79, 34, 35
sH00 = 4
sFLG = 8
sTS = 80
sM0, sM1 = 100, 101
vT = 2
vD2, vA2, vH0, vH1, vNON, vFL = 10, 14, 18, 19, 20, 21
vDX, vDW, vAX, vAW, vRS, vCSUM, vONE = 24, 28, 32, 40, 44, 48, 52
vACC, vFR, vCS, vMEAN = 64, 128, 160, 192
vPAR = 56

class Gen:
    def __init__(self, diag=False, opt=None):
        self.a = Asm(); self.diag = diag
        self.vm, self.ds, self.seen = [], [], set()
        self.nts = 0
        self.nsb = 0
        self.nb = 0
        self.o = dict(wtouch=1, ctouch=1, pkc=1, sprio0=2, sprio=3, fxlate=1, ra=1, rb=0, rg=4, rot2=1, dbgts=0, hold=0, tsw=0, quota0=150, quota=70, fprio=1, sleep=12, hsplit=8)
        if opt: self.o.update(opt)
    def vmem(self, s, tag="x"):
        self.a(s); self.vm.append(tag); self.seen.add(tag)
    def dsop(self, s, tag="x"):
        self.a(s); self.ds.append(tag); self.seen.add(tag)
    def _n(self, lst, tag):
        return len(lst) - 1 - max(i for i, t in enumerate(lst) if t == tag)
    def wait_vm(self, tag=None):
        if tag is not None:
            assert tag in self.seen, tag
            if tag not in self.vm: return
        n = 0 if tag is None else self._n(self.vm, tag)
        assert n <= 63, (tag, n)
        self.a("s_waitcnt vmcnt(%d)" % n)
        self.vm = self.vm[len(self.vm) - n:] if n else []
    def wait_ds(self, tag=None):
        if tag is not None:
            assert tag in self.seen, tag
            if tag not in self.ds: return
        n = 0 if tag is None else self._n(self.ds, tag)
        n = min(n, 15)
        self.a("s_waitcnt lgkmcnt(%d)" % n)
        self.ds = self.ds[len(self.ds) - n:] if n else []
    def ts(self):
        if not self.diag: return
        assert self.nts < 18
        self.a("s_memtime s[%d:%d]" % (sM0, sM1)); self.a("s_waitcnt lgkmcnt(0)"); self.ds = []
        self.a("s_mov_b32 s%d, s%d" % (sTS + self.nts, sM0)); self.nts += 1
    def srd(self, r, p, size):
        self.a("s_mov_b32 s%d, s%d\ns_mov_b32 s%d, s%d\ns_mov_b32 s%d, 0x%x\ns_mov_b32 s%d, 0x20000" % (r, p, r + 1, p + 1, r + 2, size, r + 3))
    def ninstr(self): return len(self.a.lines)
    def poll(self, load, issued=None):
        a = self.a
        Lr, Ld = a.newlabel("retry"), a.newlabel("ok")
        a("s_mov_b32 s%d, 0" % sCNT)
        if issued is None:
            self.vmem(load, "poll"); self.wait_vm("poll")
        else:
            self.wait_vm(issued)
        a.label(Lr)
        a("v_cmp_ne_u32 vcc, s%d, v%d" % (sNONCE, vFL))
        a("s_add_u32 s%d, s%d, 1" % (sCNT, sCNT))
        a("s_nop 0")
        a("s_cmp_eq_u64 vcc, 0")
        a("s_cbranch_scc1 %s" % Ld)
        a("s_cmp_ge_u32 s%d, 20000" % sCNT)
        a("s_cbranch_scc1 %s" % Ld)
        if self.o["sleep"]: a("s_sleep %d" % self.o["sleep"])
        a(load)
        a("s_waitcnt vmcnt(0)")
        a("s_branch %s" % Lr)
        a.label(Ld)
    def nonce_load(self):
        self.vmem("buffer_load_dword v%d, off, s[%d:%d], 0 sc1" % (vNON, SRD_DBG, SRD_DBG + 3), "non")
    def get_nonce(self):
        a = self.a
        Lr, Ld = a.newlabel("nretry"), a.newlabel("nok")
        a("s_mov_b32 s%d, 0" % sCNT)
        self.wait_vm("non")
        a.label(Lr)
        a("v_readfirstlane_b32 s%d, v%d" % (sNONCE, vNON))
        a("s_add_u32 s%d, s%d, 1" % (sCNT, sCNT))
        a("s_nop 0")
        a("s_cmp_lg_u32 s%d, 0" % sNONCE)
        a("s_cbranch_scc1 %s" % Ld)
        a("s_cmp_ge_u32 s%d, 20000" % sCNT)
        a("s_cbranch_scc1 %s" % Ld)
        a("buffer_load_dword v%d, off, s[%d:%d], 0 sc1" % (vNON, SRD_DBG, SRD_DBG + 3))
        a("s_waitcnt vmcnt(0)")
        a("s_branch %s" % Lr)
        a.label(Ld)
    def publish(self, soff_reg, tmpv):
        a = self.a
        a("v_mov_b32 v%d, s%d" % (tmpv, sNONCE))
        a("s_mov_b64 exec, 1")
        self.vmem("buffer_store_dword v%d, off, s[%d:%d], s%d sc1" % (tmpv, SRD_WS, SRD_WS + 3, soff_reg), "flag")
        a("s_mov_b64 exec, -1")
    def sbar(self, between=None):
        a = self.a
        self.nsb += 1
        Lr, Ld = a.newlabel("sb"), a.newlabel("sbok")
        a("s_waitcnt lgkmcnt(0)"); self.ds = []
        a("s_mov_b64 exec, 1")
        a("ds_add_u32 v22, v23")
        a("s_mov_b64 exec, -1")
        if between: between()
        a("s_mov_b32 s%d, 0" % sCNT)
        a.label(Lr)
        a("ds_read_b32 v%d, v22" % vFL)
        a("s_add_u32 s%d, s%d, 1" % (sCNT, sCNT))
        a("s_waitcnt lgkmcnt(0)")
        a("v_readfirstlane_b32 s%d, v%d" % (sM0, vFL))
        a("s_cmp_ge_u32 s%d, 200000" % sCNT)
        a("s_cbranch_scc1 %s" % Ld)
        a("s_cmp_lt_u32 s%d, %d" % (sM0, 4 * self.nsb))
        a("s_cbranch_scc1 %s" % Lr)
        a.label(Ld)

    def setup(self):
        a = self.a
        o = self.o
        a("s_cmp_ge_u32 s2, 256\ns_cbranch_scc1 L_END")
        if self.diag:
            a("s_memrealtime s[%d:%d]" % (sM0, sM1)); a("s_waitcnt lgkmcnt(0)"); a("s_mov_b32 s99, s%d" % sM0)
            self.ts()
        a("""s_load_dwordx16 s[4:19], s[0:1], 0
             s_load_dwordx8 s[20:27], s[0:1], 64
             s_load_dwordx4 s[28:31], s[0:1], 96
             s_load_dwordx2 s[32:33], s[0:1], 112
             v_and_b32 v1, 63, v0
             v_lshrrev_b32 v2, 6, v0
             s_and_b32 s%d, s2, 7""" % sT0)
        a("v_readfirstlane_b32 s%d, v2" % sWAVE)
        a("s_lshr_b32 s%d, s2, 3" % sT1)
        a("s_lshr_b32 s%d, s%d, 3" % (sT2, sT1))
        a("s_and_b32 s%d, s%d, 7" % (sDB, sT1))
        a("s_lshl_b32 s%d, s%d, 2" % (sMB, sT0))
        a("s_add_u32 s%d, s%d, s%d" % (sMB, sMB, sT2))
        a("s_lshr_b32 s%d, s%d, 1" % (sT3, sT0))
        a("s_lshl_b32 s%d, s%d, 2" % (sMT, sT3))
        a("s_add_u32 s%d, s%d, s%d" % (sMT, sMT, sT2))
        a("s_and_b32 s%d, s%d, 1" % (sJ, sT0))
        a("s_mul_i32 s%d, s%d, 7" % (sSL, sJ))
        a("s_add_u32 s%d, s%d, s%d" % (sSL, sSL, sDB))
        a("s_add_u32 s%d, s%d, s%d" % (sT2, sT2, sDB))
        a("s_and_b32 s%d, s%d, 1" % (sT2, sT2))
        a("s_mul_i32 s%d, s%d, %d" % (sC, sT2, o["rg"]))
        a("s_mul_i32 s%d, s%d, %d" % (sT3, sT3, o["ra"]))
        a("s_add_u32 s%d, s%d, s%d" % (sC, sC, sT3))
        a("s_mul_i32 s%d, s%d, %d" % (sT3, sJ, o["rb"]))
        a("s_add_u32 s%d, s%d, s%d" % (sC, sC, sT3))
        a("s_and_b32 s%d, s%d, 7" % (sC, sC))
        a("s_mul_i32 s%d, s%d, %d" % (sHA, sT2, 14 if o["rot2"] else 0))
        if o.get("swap23"):
            a("s_and_b32 s%d, s%d, 6" % (sT3, sDB))
            a("s_cmp_eq_u32 s%d, 2" % sT3)
            a("s_cselect_b32 s%d, 1, 0" % sT3)
            a("s_xor_b32 s%d, s%d, s%d" % (sDB, sDB, sT3))
        t = vT
        for k in range(6): a("v_mov_b32 v%d, 0" % (vPAR + k))
        a("v_and_b32 v%d, 255, v0" % (t + 7))
        a("s_lshl_b32 s%d, s2, 9" % sT0)
        a("v_lshl_add_u32 v%d, v%d, 1, s%d" % (t + 7, t + 7, sT0))
        self.f_dma_setup()
        self.chunk_soffsets()
        a("s_lshl_b32 s%d, s2, 2" % sT2)
        a("s_waitcnt lgkmcnt(0)")
        if o.get("tsstart"): self.ts()
        a("s_load_dword s%d, s[18:19], s%d" % (sLDT, sT2))
        a("s_load_dword s%d, s[20:21], s%d" % (sDSK, sT2))
        a("s_cmp_ge_u32 s%d, 4" % sWAVE)
        a("s_cbranch_scc1 L_SWAVE")
        for k in range(6):
            self.vmem("global_load_short_d16_hi v%d, v%d, s[%d:%d]" % (vPAR + k, t + 7, 6 + 2 * k, 7 + 2 * k), "par")
    def srds(self, which):
        m = dict(x=(SRD_X, 4, 2097152), w1=(SRD_W1, 24, 1835008), w2=(SRD_W2, 26, 1835008), out=(SRD_OUT, 28, 2097152), ws=(SRD_WS, 32, WS_SIZE), dbg=(SRD_DBG, 30, 256))
        for w in which: self.srd(*m[w])
    def tag_store(self):
        a = self.a
        L = a.newlabel("notag")
        a("s_cmp_lg_u32 s2, 0")
        a("s_cbranch_scc1 %s" % L)
        a("s_cmp_lg_u32 s%d, 4" % sWAVE)
        a("s_cbranch_scc1 %s" % L)
        a("s_memrealtime s[%d:%d]" % (sM0, sM1))
        a("s_waitcnt lgkmcnt(0)")
        a("s_or_b32 s%d, s%d, 1" % (sT0, sM0))
        a("v_mov_b32 v%d, s%d" % (vNON, sT0))
        a("s_mov_b64 exec, 1")
        a("buffer_store_dword v%d, off, s[%d:%d], 0 sc1" % (vNON, SRD_DBG, SRD_DBG + 3))
        a("s_mov_b64 exec, -1")
        a.label(L)

    def f_dma_setup(self):
        a = self.a
        t = vT
        a("v_lshrrev_b32 v%d, 3, v1" % t)
        a("v_lshrrev_b32 v%d, 4, v1" % (t + 1))
        a("v_and_b32 v%d, 7, v1" % (t + 2))
        a("s_lshl_b32 s%d, s%d, 15" % (sT0, sWAVE))
        a("v_lshl_add_u32 v%d, v%d, 10, s%d" % (t + 3, t, sT0))
        a("v_bfe_u32 v%d, v1, 4, 1" % (t + 4))
        a("v_lshlrev_b32 v%d, 2, v%d" % (t + 4, t + 4))
        a("v_xor_b32 v%d, v%d, v%d" % (t + 4, t + 2, t + 4))
        a("v_lshl_add_u32 v%d, v%d, 4, v%d" % (vDX, t + 4, t + 3))
        for i in range(1, 4): a("v_add_u32 v%d, %d, v%d" % (vDX + i, i * (8192 - 1040), vDX))
        a("s_lshl_b32 s%d, s%d, 4" % (sT0, sWAVE))
        a("v_add_u32 v%d, s%d, v%d" % (t + 3, sT0, t + 1))
        a("v_mul_u32_u24 v%d, 3584, v%d" % (t + 3, t + 3))
        a("v_and_b32 v%d, 15, v1" % (t + 4))
        a("v_lshlrev_b32 v%d, 2, v%d" % (t + 5, t + 1))
        a("v_xor_b32 v%d, v%d, v%d" % (t + 4, t + 4, t + 5))
        a("v_lshl_add_u32 v%d, v%d, 4, v%d" % (vDW, t + 4, t + 3))
        for i in range(1, 4): a("v_add_u32 v%d, %d, v%d" % (vDW + i, i * (14336 - 1024), vDW))
        a("s_lshl_b32 s%d, s%d, 17" % (sSOX, sMT))
        a("s_lshl_b32 s%d, s%d, 8" % (sSOW, sSL))
    def chunk_soffsets(self):
        a = self.a
        a("s_lshl_b32 s%d, s%d, 7" % (sT0, sC))
        a("s_add_u32 s%d, s%d, s%d" % (sT0, sT0, sSOX))
        a("s_mul_i32 s%d, s%d, %d" % (sT1, sC, 64 * 3584))
        a("s_add_u32 s%d, s%d, s%d" % (sT1, sT1, sSOW))
        a("s_add_u32 s%d, s%d, 1" % (sC, sC))
        a("s_and_b32 s%d, s%d, 7" % (sC, sC))
    def g1_dma_ops(self, slot, tag):
        ops = []
        def mk(kind, i):
            def f():
                a = self.a
                if i == 0:
                    a("s_mul_i32 s%d, s%d, %d" % (sT3, sWAVE, 4096 if kind else 4160))
                    a("s_add_u32 m0, s%d, %d" % (sT3, slot * SLOT1 + (XPART if kind else 0)))
                    a("s_nop 0")
                if kind == 0:
                    self.vmem("buffer_load_dwordx4 v%d, s[%d:%d], s%d offen offset:%d lds" % (vDX + i, SRD_X, SRD_X + 3, sT0, 1040 * i), tag)
                else:
                    self.vmem("buffer_load_dwordx4 v%d, s[%d:%d], s%d offen offset:%d lds" % (vDW + i, SRD_W1, SRD_W1 + 3, sT1, 1024 * i), tag)
            return f
        for kind in (0, 1):
            for i in range(4): ops.append(mk(kind, i))
        return ops
    def w2_dma_ops(self, ks0, nks=4):
        ops = []
        def mk(ks, j):
            def f():
                a = self.a
                if j == 0:
                    a("s_lshl_b32 s%d, s%d, 13" % (sT3, sWAVE))
                    a("s_add_u32 m0, s%d, %d" % (sT3, W2BASE[(ks >> 2) & 3] + (ks & 3) * 2048))
                    a("s_add_u32 s%d, s%d, %d" % (sT2, sW2A if ks < 14 else sW2B, (ks % 14) * 16384))
                self.vmem("buffer_load_dwordx4 v%d, s[%d:%d], s%d offen offset:%d lds" % (vD2 + j, SRD_W2, SRD_W2 + 3, sT2, 1024 * j), "w2_%d" % (ks + (j >> 1)))
            return f
        for ks in range(ks0, ks0 + nks, 2):
            for j in range(4): ops.append(mk(ks, j))
        return ops
    def w2_setup(self):
        a = self.a
        t = vT
        a("v_lshrrev_b32 v%d, 3, v1" % t)
        a("v_and_b32 v%d, 7, v1" % (t + 1))
        a("v_bfe_u32 v%d, v1, 4, 1" % (t + 2))
        a("v_lshlrev_b32 v%d, 2, v%d" % (t + 2, t + 2))
        a("v_xor_b32 v%d, v%d, v%d" % (t + 1, t + 1, t + 2))
        a("v_lshlrev_b32 v%d, 4, v%d" % (t + 1, t + 1))
        a("v_lshl_add_u32 v%d, v%d, 10, v%d" % (vD2, t, t + 1))
        for j in range(1, 4): a("v_add_u32 v%d, %d, v%d" % (vD2 + j, j * 7168, vD2))
        a("s_mul_i32 s%d, s%d, 28" % (sT3, sWAVE))
        a("s_add_u32 s%d, s%d, 14" % (sHB, sT3))
        a("s_sub_u32 s%d, s%d, s%d" % (sHB, sHB, sHA))
        a("s_add_u32 s%d, s%d, s%d" % (sHA, sHA, sT3))
        a("s_lshl_b32 s%d, s%d, 7" % (sT3, sDB))
        a("s_lshl_b32 s%d, s%d, 14" % (sW2A, sHA))
        a("s_add_u32 s%d, s%d, s%d" % (sW2A, sW2A, sT3))
        a("s_lshl_b32 s%d, s%d, 14" % (sW2B, sHB))
        a("s_add_u32 s%d, s%d, s%d" % (sW2B, sW2B, sT3))
        a("s_mul_i32 s%d, s%d, 224" % (sT3, sMB))
        a("s_add_u32 s%d, s%d, s%d" % (sHA, sHA, sT3))
        a("s_lshl_b32 s%d, s%d, 10" % (sHA, sHA))
        a("s_add_u32 s%d, s%d, s%d" % (sHB, sHB, sT3))
        a("s_lshl_b32 s%d, s%d, 10" % (sHB, sHB))
        a("v_bfe_u32 v%d, v1, 2, 2" % t)
        a("v_lshrrev_b32 v%d, 5, v1" % (t + 1))
        a("v_lshl_add_u32 v%d, v%d, 2, v%d" % (t + 1, t + 1, t))
        a("v_lshlrev_b32 v%d, 7, v%d" % (t + 1, t + 1))
        a("v_lshrrev_b32 v%d, 1, v%d" % (t, t))
        a("v_lshl_add_u32 v%d, v%d, 6, v%d" % (t + 1, t, t + 1))
        a("v_bfe_u32 v%d, v1, 4, 1" % t)
        a("v_lshl_add_u32 v%d, v%d, 5, v%d" % (t + 1, t, t + 1))
        a("v_and_b32 v%d, 3, v1" % t)
        a("v_lshl_add_u32 v%d, v%d, 3, v%d" % (t + 1, t, t + 1))
        a("s_lshl_b32 s%d, s%d, 13" % (sT3, sWAVE))
        a("v_add_u32 v%d, s%d, v%d" % (vA2, sT3, t + 1))
        a("v_xor_b32 v%d, 64, v%d" % (vA2 + 1, vA2))
        a("v_add_u32 v%d, %d, v%d\nv_add_u32 v%d, %d, v%d" % (vA2 + 2, 2 * SLOT1, vA2, vA2 + 3, 2 * SLOT1, vA2 + 1))
        a("v_lshlrev_b32 v%d, 4, v1" % vH0)
        a("v_add_u32 v%d, %d, v%d" % (vH1, 112 * 1024, vH0))
    def g1_addr(self):
        a = self.a
        t = vT
        a("v_lshrrev_b32 v%d, 5, v1" % (t + 1))
        a("v_bfe_u32 v%d, v1, 3, 2" % t)
        a("v_mul_u32_u24 v%d, 1040, v%d" % (t, t))
        a("v_and_b32 v%d, 7, v1" % (t + 2))
        a("v_lshl_add_u32 v%d, v%d, 7, v%d" % (t, t + 2, t))
        a("v_lshl_add_u32 v%d, v%d, 4, v%d" % (t, t + 1, t))
        a("s_and_b32 s%d, s%d, 1" % (sT3, sWAVE))
        a("s_mul_i32 s%d, s%d, 8320" % (sT3, sT3))
        a("s_lshr_b32 s%d, s%d, 1" % (sT2, sWAVE))
        a("s_mul_i32 s%d, s%d, 4160" % (sT2, sT2))
        a("s_add_u32 s%d, s%d, s%d" % (sM0, sT3, sT2))
        a("s_sub_u32 s%d, s%d, s%d" % (sM1, sT3, sT2))
        a("s_add_u32 s%d, s%d, 4160" % (sM1, sM1))
        a("v_bfe_u32 v%d, v1, 1, 1" % (t + 2))
        a("v_lshlrev_b32 v%d, 6, v%d" % (t + 2, t + 2))
        a("v_xor_b32 v%d, 64, v%d" % (t + 3, t + 2))
        for x, s in ((0, sM0), (1, sM1)):
            a("v_add3_u32 v%d, v%d, v%d, s%d" % (vAX + 4 * x, t, t + 2, s))
            a("v_add3_u32 v%d, v%d, v%d, s%d" % (vAX + 4 * x + 1, t, t + 3, s))
            a("v_add_u32 v%d, %d, v%d\nv_add_u32 v%d, %d, v%d" % (vAX + 4 * x + 2, 2 * SLOT1, vAX + 4 * x, vAX + 4 * x + 3, 2 * SLOT1, vAX + 4 * x + 1))
        a("v_bfe_u32 v%d, v1, 2, 2" % t)
        a("v_lshl_add_u32 v%d, v%d, 3, v%d" % (t + 3, t + 1, t))
        a("v_lshlrev_b32 v%d, 8, v%d" % (t + 3, t + 3))
        a("v_xor_b32 v%d, s%d, v%d" % (t, sWAVE, t))
        a("v_lshl_add_u32 v%d, v%d, 6, v%d" % (t + 3, t, t + 3))
        a("v_bfe_u32 v%d, v1, 4, 1" % t)
        a("v_lshl_add_u32 v%d, v%d, 5, v%d" % (t + 3, t, t + 3))
        a("v_and_b32 v%d, 3, v1" % t)
        a("v_lshl_add_u32 v%d, v%d, 3, v%d" % (t + 3, t, t + 3))
        a("v_add_u32 v%d, %d, v%d" % (vAW, XPART, t + 3))
        a("v_xor_b32 v%d, 64, v%d" % (t + 3, t + 3))
        a("v_add_u32 v%d, %d, v%d" % (vAW + 2, XPART, t + 3))
        a("v_add_u32 v%d, %d, v%d\nv_add_u32 v%d, %d, v%d" % (vAW + 1, 2 * SLOT1, vAW, vAW + 3, 2 * SLOT1, vAW + 2))
        a("v_lshrrev_b32 v%d, 4, v1" % t)
        a("v_xor_b32 v%d, v%d, v1" % (t, t))
        a("v_and_b32 v%d, 1, v%d" % (t, t))
        a("v_subrev_u32 v%d, 1, v%d" % (t, t))
        for k in range(4): a("v_and_b32 v%d, 0x3f803f80, v%d" % (vONE + k, t))
    def g1_reads(self, g):
        c, ks = g >> 2, g & 3
        slot = c % 3
        hi, so = slot >> 1, (slot & 1) * SLOT1
        B = vFR + 16 * (g & 1)
        X0, X1, W0, W1 = B, B + 4, B + 8, B + 12
        ax = vAX + 2 * hi + (ks >> 1)
        xo = so + 32 * (ks & 1)
        aw = vAW + hi
        t = "g%d" % g
        return [
            ("ds_read_b128 v[%d:%d], v%d offset:%d" % (X0, X0 + 3, ax, xo), t + "a"),
            ("ds_read_b64_tr_b16 v[%d:%d], v%d offset:%d" % (W0, W0 + 1, aw, so + ks * 4096), t + "a"),
            ("ds_read_b64_tr_b16 v[%d:%d], v%d offset:%d" % (W0 + 2, W0 + 3, aw, so + ks * 4096 + 1024), t + "a"),
            ("ds_read_b128 v[%d:%d], v%d offset:%d" % (X1, X1 + 3, ax + 4, xo), t + "b"),
            ("ds_read_b64_tr_b16 v[%d:%d], v%d offset:%d" % (W1, W1 + 1, aw + 2, so + ks * 4096), t + "c"),
            ("ds_read_b64_tr_b16 v[%d:%d], v%d offset:%d" % (W1 + 2, W1 + 3, aw + 2, so + ks * 4096 + 1024), t + "c"),
        ]
    def g1_mfma(self, g, i):
        B = vFR + 16 * (g & 1)
        ws, xs = i >> 1, i & 1
        D = vACC + 16 * i
        C = "0" if g == 0 else "v[%d:%d]" % (D, D + 15)
        self.a("v_mfma_f32_32x32x16_bf16 v[%d:%d], v[%d:%d], v[%d:%d], %s" % (D, D + 15, B + 8 + 4 * ws, B + 11 + 4 * ws, B + 4 * xs, B + 3 + 4 * xs, C))
    def g1_dots(self, g):
        B = vFR + 16 * (g & 1)
        r = []
        if self.o.get("nodots"): return r
        r.append("v_mfma_f32_16x16x32_bf16 v[%d:%d], v[%d:%d], v[%d:%d], %s" % (vRS, vRS + 3, vONE, vONE + 3, B, B + 3, "0" if g == 0 else "v[%d:%d]" % (vRS, vRS + 3)))
        r.append("v_mfma_f32_16x16x32_bf16 v[%d:%d], v[%d:%d], v[%d:%d], %s" % (vCSUM, vCSUM + 3, vONE, vONE + 3, B + 8, B + 11, "0" if g == 0 else "v[%d:%d]" % (vCSUM, vCSUM + 3)))
        return r
    def gemm1(self):
        a = self.a
        a.c("==== GEMM1")
        self.wait_vm("c0"); a("s_barrier")
        self.ts()
        for r, tg in self.g1_reads(0): self.dsop(r, tg)
        for c in range(8):
            if c <= 5:
                dma = self.g1_dma_ops((c + 2) % 3, "c%d" % (c + 2)); self.chunk_soffsets()
            else:
                dma = self.w2_dma_ops(4 * (c - 6))
            if c == 1: self.nonce_load()
            for ks in range(4):
                g = 4 * c + ks
                t = "g%d" % g
                nxt = self.g1_reads(g + 1) if g < 31 else []
                dots = self.g1_dots(g)
                if g == 31:
                    self.wait_ds()
                    for d in dots: a(d)
                    self.g1_mfma(g, 0); self.g1_mfma(g, 1)
                    self.g1_sums_out()
                    self.g1_mfma(g, 2); self.g1_mfma(g, 3)
                    continue
                if ks == 3:
                    if c == 2: self.w2_setup()
                    if c == 3: self.get_nonce()
                    self.wait_ds()
                    self.wait_vm("c%d" % (c + 1)); a("s_barrier")
                    if self.o.get("g1ts"): self.ts()
                for i in range(4):
                    if i < 3: self.wait_ds(t + "abc"[i])
                    self.g1_mfma(g, i)
                    for r, tg in nxt[2 * i:2 * i + 2]: self.dsop(r, tg)
                    for d in (dots[(i >> 1):(i >> 1) + 1] if (i & 1) == 0 else []): a(d)
                    if ks < 3 and i < 3 and dma: dma.pop(0)()
            assert not dma
    def g1_sums_out(self):
        a = self.a
        t = vT
        a("v_and_b32 v%d, 31, v1" % (t + 2))
        a("v_lshlrev_b32 v%d, 2, v%d" % (t + 2, t + 2))
        a("v_and_b32 v%d, 16, v1" % t)
        a("v_cmp_ne_u32 vcc, 0, v%d" % t)
        a("s_and_b32 s%d, s%d, 1" % (sT0, sWAVE))
        a("s_lshr_b32 s%d, s%d, 1" % (sT1, sWAVE))
        a("s_lshl_b32 s%d, s%d, 1" % (sT2, sT0))
        a("s_add_u32 s%d, s%d, s%d" % (sT2, sT2, sT1))
        a("s_lshl_b32 s%d, s%d, 7" % (sT2, sT2))
        a("s_add_u32 s%d, s%d, %d" % (sT2, sT2, L_SUM))
        a("s_lshl_b32 s%d, s%d, 7" % (sT3, sWAVE))
        a("s_add_u32 s%d, s%d, %d" % (sT3, sT3, L_SUM + 512))
        a("v_cndmask_b32 v%d, v%d, v%d, vcc" % (t, vRS, vRS + 1))
        a("v_cndmask_b32 v%d, v%d, v%d, vcc" % (t + 1, vCSUM, vCSUM + 1))
        a("v_mul_f32 v%d, 0x3b000000, v%d" % (t, t))
        a("v_add_u32 v%d, s%d, v%d" % (t + 4, sT3, t + 2))
        a("v_cvt_pk_bf16_f32 v%d, v%d, v%d" % (t, t, t))
        a("v_add_u32 v%d, s%d, v%d" % (t + 3, sT2, t + 2))
        a("v_and_b32 v%d, 0xffff0000, v%d" % (vMEAN, t))
        self.dsop("ds_write_b32 v%d, v%d" % (t + 4, t + 1))
        self.dsop("ds_write_b32 v%d, v%d" % (t + 3, vMEAN))
        a("v_xor_b32 v%d, 128, v%d" % (t + 3, t + 3))
        a("v_lshrrev_b32 v%d, 5, v1" % (t + 5))
        a("v_lshl_add_u32 v%d, v%d, 4, s%d" % (t + 4, t + 5, sT3))
        a("v_xor_b32 v%d, 128, v%d" % (t + 5, t + 4))
    def g1_epilogue(self):
        a = self.a
        t = vT
        a.c("==== GEMM1 epilogue: h = relu(acc - mean*colsum) in fragment order")
        self.wait_ds()
        a("s_barrier")
        self.dsop("ds_read_b32 v%d, v%d" % (vMEAN + 2, t + 3), "cs0")
        for k in range(8):
            self.dsop("ds_read_b128 v[%d:%d], v%d offset:%d" % (vCS + 4 * k, vCS + 4 * k + 3, t + 4 + (k >> 2), 32 * (k & 3)), "cs%d" % (k >> 1))
        self.ts() if self.o.get("g1ts") else None
        a("s_lshl_b32 s%d, s%d, 1" % (sT3, sMT))
        a("s_add_u32 s%d, s%d, s%d" % (sT3, sT3, sT0))
        a("s_lshl_b32 s%d, s%d, 1" % (sT2, sSL))
        a("s_add_u32 s%d, s%d, s%d" % (sT2, sT2, sT1))
        a("s_mul_i32 s%d, s%d, 28" % (sFLG, sT3))
        a("s_add_u32 s%d, s%d, s%d" % (sFLG, sFLG, sT2))
        a("s_lshl_b32 s%d, s%d, 7" % (sFLG, sFLG))
        a("s_add_u32 s%d, s%d, 0x%x" % (sFLG, sFLG, WS_FH))
        a("s_mul_i32 s%d, s%d, 56" % (sT3, sT3))
        a("s_add_u32 s%d, s%d, s%d" % (sT3, sT3, sT2))
        a("s_lshl_b32 s%d, s%d, 12" % (sT3, sT3))
        a("s_mul_i32 s%d, s%d, %d" % (sT1, sT1, 112 * 1024))
        a("s_lshl_b32 s%d, s%d, 11" % (sT0, sT0))
        a("s_add_u32 s%d, s%d, s%d" % (sH00, sT3, sT1))
        a("s_sub_u32 s%d, s%d, s%d" % (sH00 + 1, sT3, sT1))
        a("s_add_u32 s%d, s%d, %d" % (sH00 + 1, sH00 + 1, 112 * 1024))
        for x in range(2):
            a("s_sub_u32 s%d, s%d, s%d" % (sH00 + 2 + x, sH00 + x, sT0))
            a("s_add_u32 s%d, s%d, 2048" % (sH00 + 2 + x, sH00 + 2 + x))
            a("s_add_u32 s%d, s%d, s%d" % (sH00 + x, sH00 + x, sT0))
        n = 0
        for ws in range(2):
            for sp in range(2):
                for xs in range(2):
                    D = vACC + 16 * (2 * ws + xs)
                    Q = vFR + 4 * n; n += 1
                    self.wait_ds("cs%d" % (2 * ws + sp))
                    for k in range(4):
                        r = 8 * sp + 2 * k
                        a("v_pk_fma_f32 v[%d:%d], v[%d:%d], v[%d:%d], v[%d:%d] op_sel_hi:[1,0,1] neg_lo:[0,1,0] neg_hi:[0,1,0]" %
                          (D + r, D + r + 1, vCS + 16 * ws + r, vCS + 16 * ws + r + 1, vMEAN + 2 * xs, vMEAN + 2 * xs + 1, D + r, D + r + 1))
                    for k in range(4):
                        r = 8 * sp + 2 * k
                        a("v_cvt_pk_bf16_f32 v%d, v%d, v%d" % (Q + k, D + r, D + r + 1))
                    for k in range(4):
                        a("v_pk_max_i16 v%d, v%d, 0" % (Q + k, Q + k))
                    self.vmem("buffer_store_dwordx4 v[%d:%d], v%d, s[%d:%d], s%d offen offset:%d sc1" %
                              (Q, Q + 3, vH0, SRD_WS, SRD_WS + 3, sH00 + 2 * ws + xs, sp * 1024), "h")
    WREG = 160
    def rdW(self, s):
        grp = (s >> 2) & 3
        base = W2BASE[grp]
        hi = 1 if base >= 2 * SLOT1 else 0
        o = base - hi * 2 * SLOT1 + (s & 3) * 2048
        R = self.WREG + 8 * (s if s < 12 else (s & 1))
        return [("ds_read_b64_tr_b16 v[%d:%d], v%d offset:%d" % (R + 4 * dt + 2 * tt, R + 4 * dt + 2 * tt + 1, vA2 + 2 * hi + dt, o + 1024 * tt), "W%d_%d" % (s, dt))
                for dt in range(2) for tt in range(2)]
    def gemm2(self, spare_join):
        a = self.a
        t = vT
        a.c("==== publish h, bring the rest of w2 on chip")
        ops = self.w2_dma_ops(8) + self.w2_dma_ops(12)
        hs = self.o["hsplit"]
        for f in ops[:hs]: f()
        self.wait_vm("h")
        self.publish(sFLG, vT)
        self.ts()
        for f in ops[hs:]: f()
        vm_main = list(self.vm)
        a.label(spare_join)
        for g in range(3):
            for s in range(4 * g, 4 * g + 4):
                self.wait_vm("w2_%d" % s)
                for r, tg in self.rdW(s): self.dsop(r, tg)
            self.wait_ds()
            for f in self.w2_dma_ops(16 + 4 * g): f()
        a("v_min_u32 v%d, 6, v1" % t)
        a("v_lshlrev_b32 v%d, 7, v%d" % (t, t))
        a("s_mul_i32 s%d, s%d, 28" % (sT3, sMB))
        a("s_mul_i32 s%d, s%d, 7" % (sT2, sWAVE))
        a("s_add_u32 s%d, s%d, s%d" % (sT3, sT3, sT2))
        a("s_lshl_b32 s%d, s%d, 7" % (sT3, sT3))
        a("s_add_u32 s%d, s%d, 0x%x" % (sT3, sT3, WS_FH))
        self.ts()
        self.poll("buffer_load_dword v%d, v%d, s[%d:%d], s%d offen sc1" % (vFL, t, SRD_WS, SRD_WS + 3, sT3))
        self.ts()
        a.c("==== GEMM2")
        NH = self.o.get('nh', 9)
        def hreg(s):
            k = s % NH
            return 24 + 8 * k if k < 5 else 128 + 8 * (k - 5)
        def ldH(s):
            R = hreg(s)
            sb, q = (sHA, s) if s < 14 else (sHB, s - 14)
            if q and q % 4 == 0: a("s_add_u32 s%d, s%d, 4096" % (sb, sb))
            self.vmem("buffer_load_dwordx4 v[%d:%d], v%d, s[%d:%d], s%d offen offset:%d sc1" % (R, R + 3, vH0, SRD_WS, SRD_WS + 3, sb, 1024 * (q & 3)), "h%d" % s)
            self.vmem("buffer_load_dwordx4 v[%d:%d], v%d, s[%d:%d], s%d offen offset:%d sc1" % (R + 4, R + 7, vH1, SRD_WS, SRD_WS + 3, sb, 1024 * (q & 3)), "h%d" % s)
        AH = NH - 1
        for s in range(AH): ldH(s)
        for s in range(28):
            R = hreg(s)
            Wr = self.WREG + 8 * (s if s < 12 else (s & 1))
            nxt = self.rdW(s + 1) if 12 <= s + 1 < 28 else []
            self.wait_vm("h%d" % s)
            for i in range(4):
                dt, tt = i >> 1, i & 1
                if tt == 0: self.wait_ds("W%d_%d" % (s, dt))
                D = vACC + 16 * i
                a("v_mfma_f32_32x32x16_bf16 v[%d:%d], v[%d:%d], v[%d:%d], %s" % (D, D + 15, Wr + 4 * dt, Wr + 4 * dt + 3, R + 4 * tt, R + 4 * tt + 3,
                                                                              "0" if s == 0 else "v[%d:%d]" % (D, D + 15)))
                if i < 2:
                    for r, tg in nxt[2 * i:2 * i + 2]: self.dsop(r, tg)
            if s + AH < 28: ldH(s + AH)
            if s == 20:
                a("v_and_b32 v%d, 31, v1" % t)
                a("v_lshrrev_b32 v%d, 5, v1" % (t + 1))
                a("v_and_b32 v%d, 15, v1" % (t + 2))
                a("v_xor_b32 v%d, v%d, v%d" % (t + 1, t + 1, t + 2))
                a("v_lshlrev_b32 v%d, 4, v%d" % (t + 1, t + 1))
                a("v_lshl_add_u32 v%d, v%d, 8, v%d" % (t + 1, t, t + 1))
                a("s_lshl_b32 s%d, s%d, 13" % (sT3, sWAVE))
                a("s_add_u32 s%d, s%d, %d" % (sT3, sT3, W2BASE[0]))
                a("v_add_u32 v%d, s%d, v%d" % (192, sT3, t + 1))
                for k in range(1, 8): a("v_xor_b32 v%d, %d, v%d" % (192 + k, 32 * k, 192))
        self.ts()
        a("s_nop 7")
        for i in range(4):
            dt, tt = i >> 1, i & 1
            for g in range(4):
                D = vACC + 16 * i + 4 * g
                self.dsop("ds_write_b128 v%d, v[%d:%d] offset:%d" % (192 + 4 * dt + g, D, D + 3, 0 if tt else W2BASE[3] - W2BASE[0]))
        self.wait_ds()
        a("s_barrier")
        self.ts()

    def spare_loads(self):
        a = self.a
        a.c("==== spare workgroup: 64 rows of x into LDS (row r at r*1040; wave loads rows 16w..16w+15)")
        if self.o["ctouch"]: self.code_touch()
        a("v_lshlrev_b32 v%d, 4, v1" % vDX)
        a("s_lshl_b32 s%d, s%d, 1" % (sT0, sMT))
        a("s_add_u32 s%d, s%d, s%d" % (sT0, sT0, sJ))
        a("s_mov_b32 s%d, s%d" % (sSL, sT0))
        a("s_lshl_b32 s%d, s%d, 16" % (sT0, sT0))
        a("s_lshl_b32 s%d, s%d, 14" % (sT1, sWAVE))
        a("s_add_u32 s%d, s%d, s%d" % (sT0, sT0, sT1))
        a("s_mul_i32 s%d, s%d, %d" % (sT1, sWAVE, 16 * LNROW))
        for i in range(16):
            a("s_add_u32 m0, s%d, %d" % (sT1, i * LNROW))
            a("s_add_u32 s%d, s%d, %d" % (sT2, sT0, i * 1024))
            self.vmem("buffer_load_dwordx4 v%d, s[%d:%d], s%d offen lds" % (vDX, SRD_X, SRD_X + 3, sT2), "ln")
    def w2_touch(self):
        a = self.a
        a("v_lshlrev_b32 v%d, 7, v1" % (vDX + 1))
        a("s_mul_i32 s%d, s%d, %d" % (sT0, sSL, 56 * 1024))
        a("s_lshl_b32 s%d, s%d, 14" % (sT1, sWAVE))
        a("s_add_u32 s%d, s%d, s%d" % (sT0, sT0, sT1))
        a("s_add_u32 s%d, s%d, 8192" % (sT1, sT0))
        a("s_cmp_eq_u32 s%d, 3" % sWAVE)
        a("s_cselect_b32 s%d, 0x7ff00000, s%d" % (sT1, sT1))
        self.vmem("buffer_load_dword v%d, v%d, s[%d:%d], s%d offen" % (vDX + 2, vDX + 1, SRD_W2, SRD_W2 + 3, sT0), "wt")
        self.vmem("buffer_load_dword v%d, v%d, s[%d:%d], s%d offen" % (vDX + 3, vDX + 1, SRD_W2, SRD_W2 + 3, sT1), "wt")
    def code_touch(self):
        a = self.a
        a("s_getpc_b64 s[%d:%d]" % (SRD_W1, SRD_W1 + 1))
        a.label("L_PCREF")
        a("s_sub_u32 s%d, s%d, L_PCREF - %s" % (SRD_W1, SRD_W1, NAME))
        a("s_subb_u32 s%d, s%d, 0" % (SRD_W1 + 1, SRD_W1 + 1))
        a("s_mov_b32 s%d, L_CODE_END - %s" % (SRD_W1 + 2, NAME))
        a("s_mov_b32 s%d, 0x20000" % (SRD_W1 + 3))
        a("v_lshlrev_b32 v%d, 7, v1" % (vT + 6))
        a("s_lshr_b32 s%d, s2, 6" % sT0)
        a("s_lshl_b32 s%d, s%d, 13" % (sT0, sT0))
        a("s_cmp_eq_u32 s%d, 0" % sWAVE)
        a("s_cselect_b32 s%d, s%d, 0x7ff00000" % (sT0, sT0))
        a("buffer_load_dword v%d, v%d, s[%d:%d], s%d offen" % (vT + 5, vT + 6, SRD_W1, SRD_W1 + 3, sT0))
    def spare_path(self):
        a = self.a
        t = vT
        a.c("==== spare workgroup: statistics and transposed rows")
        if self.o["wtouch"]: self.w2_touch()
        self.w2_setup()
        a("v_and_b32 v%d, 15, v1" % t)
        a("v_lshrrev_b32 v%d, 4, v1" % (t + 1))
        a("v_lshl_add_u32 v%d, v%d, 2, v%d" % (t + 2, t, t + 1))
        a("v_mul_u32_u24 v%d, %d, v%d" % (t + 3, LNROW, t + 2))
        a("s_lshl_b32 s%d, s%d, 8" % (sT2, sWAVE))
        a("v_add_u32 v%d, s%d, v%d" % (t + 3, sT2, t + 3))
        a("v_mov_b32 v%d, 0\nv_mov_b32 v%d, 0" % (vRS, (vRS + 1)))
        a("s_mov_b32 s%d, 0x3f803f80" % sONES)
        self.wait_ds()
        a("s_barrier")
        self.wait_vm("ln"); a("s_barrier")
        self.ts()
        self.nonce_load()
        X = vACC
        for k in range(16): self.dsop("ds_read_b128 v[%d:%d], v%d offset:%d" % (X + 4 * k, X + 4 * k + 3, t + 3, 16 * k), "x%d" % k)
        a("v_lshlrev_b32 v%d, 13, v%d" % (t + 1, t + 1))
        a("v_lshl_add_u32 v%d, v%d, 4, v%d" % (t + 1, t, t + 1))
        a("s_lshl_b32 s%d, s%d, 19" % (sT0, sWAVE))
        a("s_lshl_b32 s%d, s%d, 8" % (sT1, sSL))
        a("s_add_u32 s%d, s%d, s%d" % (sT0, sT0, sT1))
        a("s_add_u32 s%d, s%d, 0x%x" % (sT0, sT0, WS_XN))
        for k in range(16):
            R = X + 4 * k
            self.wait_ds("x%d" % k)
            for q in range(4):
                a("v_dot2_f32_bf16 v%d, v%d, s%d, v%d" % (vRS, R + q, sONES, vRS))
                a("v_dot2_f32_bf16 v%d, v%d, v%d, v%d" % (vRS + 1, R + q, R + q, vRS + 1))
            a("v_permlane32_swap_b32 v%d, v%d" % (R, R + 2))
            a("v_permlane32_swap_b32 v%d, v%d" % (R + 1, R + 3))
            if k: a("s_add_u32 s%d, s%d, 32768" % (sT0, sT0))
            a("s_nop %d" % (0 if k else 1))
            a("v_permlane16_swap_b32 v%d, v%d" % (R, R + 1))
            a("v_permlane16_swap_b32 v%d, v%d" % (R + 2, R + 3))
            self.vmem("buffer_store_dwordx4 v[%d:%d], v%d, s[%d:%d], s%d offen sc1" % (R, R + 3, t + 1, SRD_WS, SRD_WS + 3, sT0), "lnst")
        a("v_lshlrev_b32 v%d, 3, v1" % (t + 4))
        a("s_lshl_b32 s%d, s%d, 9" % (sT2, sWAVE))
        a("s_add_u32 s%d, s%d, %d" % (sT2, sT2, L_LNS))
        a("v_add_u32 v%d, s%d, v%d" % (t + 5, sT2, t + 4))
        a("v_add_u32 v%d, %d, v%d" % (t + 4, L_LNS, t + 4))
        self.dsop("ds_write_b64 v%d, v[%d:%d]" % (t + 5, vRS, vRS + 1))
        self.wait_ds()
        a("s_barrier")
        self.ts()
        P = vFR
        for k in range(4): self.dsop("ds_read_b64 v[%d:%d], v%d offset:%d" % (P + 2 * k, P + 2 * k + 1, t + 4, 512 * k))
        self.wait_ds()
        a("v_pk_add_f32 v[%d:%d], v[%d:%d], v[%d:%d]" % (P, P + 1, P, P + 1, P + 2, P + 3))
        a("v_pk_add_f32 v[%d:%d], v[%d:%d], v[%d:%d]" % (P + 4, P + 5, P + 4, P + 5, P + 6, P + 7))
        a("v_pk_add_f32 v[%d:%d], v[%d:%d], v[%d:%d]" % (P, P + 1, P, P + 1, P + 4, P + 5))
        a("v_mul_f32 v%d, 0x3b000000, v%d\nv_mul_f32 v%d, 0x3b000000, v%d" % (P, P, P + 1, P + 1))
        a("v_fma_f32 v%d, -v%d, v%d, v%d" % (P + 1, P, P, P + 1))
        a("v_max_f32 v%d, 0, v%d" % (P + 1, P + 1))
        a("v_cvt_pk_bf16_f32 v%d, v%d, v%d" % (P + 2, P, P + 1))
        a("v_and_b32 v%d, 0xffff0000, v%d" % (P + 1, P + 2))
        a("v_add_f32 v%d, 0x3727c5ac, v%d" % (P + 1, P + 1))
        a("v_cvt_pk_bf16_f32 v%d, v%d, v%d" % (P + 1, P + 1, P + 1))
        a("v_and_b32 v%d, 0xffff0000, v%d" % (P + 1, P + 1))
        a("v_sqrt_f32 v%d, v%d" % (P + 1, P + 1))
        a("v_lshlrev_b32 v%d, 16, v%d" % (P, P + 2))
        a("v_cvt_pk_bf16_f32 v%d, v%d, v%d" % (P + 3, P, P + 1))
        a("v_lshlrev_b32 v%d, 2, v%d" % (t + 2, t + 2))
        a("s_lshl_b32 s%d, s%d, 8" % (sT2, sSL))
        a("s_add_u32 s%d, s%d, 0x%x" % (sT2, sT2, WS_ST))
        a("s_cmp_eq_u32 s%d, 0" % sWAVE)
        a("s_cselect_b32 s%d, s%d, 0x7ff00000" % (sT2, sT2))
        self.vmem("buffer_store_dword v%d, v%d, s[%d:%d], s%d offen sc1" % (P + 3, t + 2, SRD_WS, SRD_WS + 3, sT2), "lnst")
        self.get_nonce()
        self.wait_vm()
        self.ts()
        a("s_barrier")
        L = a.newlabel("noX")
        a("s_cmp_lg_u32 s%d, 0" % sWAVE)
        a("s_cbranch_scc1 %s" % L)
        a("v_lshlrev_b32 v%d, 7, v1" % t)
        a("v_mov_b32 v%d, s%d" % (t + 1, sNONCE))
        a("s_lshl_b32 s%d, s%d, 2" % (sT0, sSL))
        a("s_add_u32 s%d, s%d, 0x%x" % (sT0, sT0, WS_FX))
        a("s_mov_b64 exec, 0xff")
        a("buffer_store_dword v%d, v%d, s[%d:%d], s%d offen sc1" % (t + 1, t, SRD_WS, SRD_WS + 3, sT0))
        a("s_mov_b64 exec, -1")
        a.label(L)
        self.ts()
        for k in range(0, 12, 4):
            for f in self.w2_dma_ops(k): f()
        for k in range(6): a("s_barrier")
        for f in self.w2_dma_ops(12): f()
        self.wait_vm()

    def cmul(self, d, x, y):
        a = self.a
        if not (self.o.get("pkc") == 2 or (self.o.get("pkc") == 1 and self.nb == 0)):
            a("v_mul_f32 v%d, v%d, v%d\nv_mul_f32 v%d, v%d, v%d" % (d, x, y, d + 1, x, y + 1))
            a("v_fma_f32 v%d, -v%d, v%d, v%d\nv_fmac_f32 v%d, v%d, v%d" % (d, x + 1, y + 1, d, d + 1, x + 1, y))
            return
        a("v_pk_mul_f32 v[%d:%d], v[%d:%d], v[%d:%d] op_sel_hi:[0,1]" % (d, d + 1, x, x + 1, y, y + 1))
        a("v_pk_fma_f32 v[%d:%d], v[%d:%d], v[%d:%d], v[%d:%d] op_sel:[1,1,0] op_sel_hi:[1,0,1] neg_lo:[0,1,0]" % (d, d + 1, x, x + 1, y, y + 1, d, d + 1))
    def k_poles(self, sidx, evals, full):
        a = self.a
        t = vT
        a("s_waitcnt lgkmcnt(0)"); self.ds = []
        a("s_lshr_b32 s%d, s%d, 1" % (sT1, sidx))
        a("s_lshl_b32 s%d, s%d, 4" % (sT1, sT1))
        a("s_lshr_b32 s%d, s%d, s%d" % (sT2, sLDT, sT1))
        a("s_lshl_b32 s%d, s%d, 16" % (sT2, sT2))
        if full:
            a("s_lshr_b32 s%d, s%d, s%d" % (sDSK, sDSK, sT1))
            a("s_lshl_b32 s%d, s%d, 16" % (sDSK, sDSK))
        a("v_mov_b32 v%d, 0x3fb8aa3b" % t)
        a("v_mul_f32 v%d, s%d, v%d" % (t, sT2, t))
        a("v_exp_f32 v%d, v%d" % (t, t))
        a("s_nop 0")
        a("v_cvt_pk_bf16_f32 v%d, v%d, v%d" % (t, t, t))
        a("v_and_b32 v%d, 0xffff0000, v%d" % (t, t))
        a("v_and_b32 v%d, 255, v0" % (t + 2))
        a("v_lshlrev_b32 v%d, 2, v%d" % (t + 2, t + 2))
        a("v_add_u32 v%d, %d, v%d" % (t + 2, L_PAR, t + 2))
        if full:
            a("s_barrier")
            for k in (4, 5, 2, 3, 0, 1): self.dsop("ds_read_b32 v%d, v%d offset:%d" % (vPAR + k, t + 2, 1024 * k))
            self.wait_ds()
            self.ts()
        else:
            self.wait_vm("par")
            for k in range(6): self.dsop("ds_write_b32 v%d, v%d offset:%d" % (t + 2, vPAR + k, 1024 * k))
            self.wait_ds()
            a("s_barrier")
        for k in range(4 if full else 2): a("v_mul_f32 v%d, v%d, v%d" % (vPAR + k, t, vPAR + k))
        a("v_mul_f32 v%d, 0x3fb8aa3b, v%d" % (vPAR, vPAR))
        a("v_mul_f32 v%d, 0.15915494, v%d" % (vPAR + 1, vPAR + 1))
        for Z, sc in evals:
            if sc:
                a("v_mul_f32 v%d, %s, v%d\nv_mul_f32 v%d, %s, v%d" % (t, sc, vPAR, t + 1, sc, vPAR + 1))
                e, p = t, t + 1
            else: e, p = vPAR, vPAR + 1
            a("v_fract_f32 v%d, v%d" % (t + 1, p))
            a("v_exp_f32 v%d, v%d" % (t, e))
            a("v_cos_f32 v%d, v%d" % (Z, t + 1))
            a("v_sin_f32 v%d, v%d" % (Z + 1, t + 1))
            a("s_nop 0")
            a("v_pk_mul_f32 v[%d:%d], v[%d:%d], v[%d:%d] op_sel_hi:[1,0]" % (Z, Z + 1, Z, Z + 1, t, t + 1))
    def f_vrows(self):
        a = self.a
        a.c("---- V rows of the kernel-generation table")
        AD, Z16, VV, PK = 64, 80, 82, 86
        a("s_mul_i32 s%d, s%d, %d" % (sT3, sWAVE, TABW))
        a("s_add_u32 s%d, s%d, %d" % (sT3, sT3, L_TAB))
        a("v_lshl_add_u32 v%d, v1, 2, s%d" % (AD, sT3))
        for k in range(1, 16): a("v_xor_b32 v%d, %d, v%d" % (AD + k, 16 * k, AD))
        self.k_poles(sWAVE, ((Z16, "0x41800000"),), False)
        save = self.o.get("pkc"); self.o["pkc"] = 1; nb = self.nb; self.nb = 0
        a("v_mov_b32 v%d, 0x3f80" % PK)
        a("v_cvt_pk_bf16_f32 v%d, v%d, -v%d" % (PK + 1, Z16, Z16 + 1))
        self.dsop("ds_write_b32 v%d, v%d" % (AD, PK))
        pend = "ds_write_b32 v%d, v%d offset:256" % (AD + 1, PK + 1)
        prev = Z16
        for r in range(2, 16):
            cur = VV + 2 * (r & 1)
            self.cmul(cur, prev, Z16); prev = cur
            self.dsop(pend)
            a("v_cvt_pk_bf16_f32 v%d, v%d, -v%d" % (PK + (r & 1), cur, cur + 1))
            pend = "ds_write_b32 v%d, v%d offset:%d" % (AD + r, PK + (r & 1), 256 * r)
        a("s_nop 0")
        self.dsop(pend)
        self.o["pkc"] = save; self.nb = nb
    def s_bar_maybe(self, force=False):
        q = self.o["quota0"] if self.nb == 0 else self.o["quota"]
        if force or (self.ninstr() - self.lastb >= q and self.nb < self.nb_cap):
            self.a("s_barrier"); self.nb += 1; self.lastb = self.ninstr()
            if self.o.get("sts"): self.ts()
    def s_entry(self):
        a = self.a
        t = vT
        a.label("L_SWAVE")
        a("s_sub_u32 s%d, s%d, 4" % (sSL, sWAVE))
        if self.o["sprio0"]: a("s_setprio %d" % self.o["sprio0"])
        self.srds(["dbg"])
        self.tag_store()
        self.srds(["ws", "x", "out"])
        a("v_mov_b32 v22, %d\nv_mov_b32 v23, 1" % L_CNT)
        a("s_waitcnt lgkmcnt(0)")
    def kgen(self):
        a = self.a
        a.c("==== kernel generation: K[l] = Re sum_n CB_n z_n^bf16(l)")
        self.nb, self.nb_cap, self.lastb = 0, 0, self.ninstr()
        AD = 128
        Z1, Z256 = 144, 148
        WR, VV, PK = 152, 186, 190
        KA, AA, BF, AF = 64, 96, 196, 212
        t = vT
        a("s_mul_i32 s%d, s%d, %d" % (sC, sSL, TABW))
        a("s_add_u32 s%d, s%d, %d" % (sC, sC, L_TAB))
        a("v_lshl_add_u32 v%d, v1, 2, s%d" % (AD, sC))
        for k in range(1, 16): a("v_xor_b32 v%d, %d, v%d" % (AD + k, 16 * k, AD))
        base = {0: 16, 1: 32, 2: 41, 3: 46, 4: 51, 5: 54, 6: 57, 7: 60}
        kk = [0, 1, 2, 2, 3, 3, 3, 3]
        a("v_and_b32 v%d, 15, v1" % t)
        a("v_lshrrev_b32 v%d, 4, v1" % (t + 1))
        def addr(dst, rowreg):
            a("v_and_b32 v%d, 15, v%d" % (t + 5, rowreg))
            a("v_xor_b32 v%d, v%d, v%d" % (t + 5, t + 5, t + 1))
            a("v_lshlrev_b32 v%d, 4, v%d" % (t + 5, t + 5))
            a("v_lshl_add_u32 v%d, v%d, 8, v%d" % (t + 5, rowreg, t + 5))
            a("v_add_u32 v%d, s%d, v%d" % (dst, sC, t + 5))
        addr(AA, t)
        a("v_add_u32 v%d, 4096, v%d" % (AA + 1, AA))
        for k in (1, 2, 3):
            a("v_bfe_u32 v%d, v%d, %d, 1" % (t + 2, t, k))
            a("v_add3_u32 v%d, v%d, v%d, %d" % (t + 2, t + 2, t, (1 << (k - 1)) - 1))
            a("v_lshrrev_b32 v%d, %d, v%d" % (t + 2, k, t + 2))
            for T in range(1, 8):
                if kk[T] != k: continue
                a("v_add_u32 v%d, %d, v%d" % (t + 3, base[T], t + 2))
                addr(AA + 1 + T, t + 3)
        self.k_poles(sSL, ((Z1, None), (Z256, "0x43800000")), True)
        self.lastb = self.ninstr()
        self.cmul(WR, vPAR + 4, vPAR + 2)
        self.nonce_load()
        pend = []
        for r in range(17):
            if r: self.cmul(WR + 2 * r, WR + 2 * (r - 1), Z1)
            if pend: self.dsop(pend.pop(0))
            if r < 16:
                p = PK + (r & 1)
                a("v_cvt_pk_bf16_f32 v%d, v%d, v%d" % (p, WR + 2 * r, WR + 2 * r + 1))
                pend.append("ds_write_b32 v%d, v%d offset:%d" % (AD + r, p, (16 + r) * 256))
            self.s_bar_maybe()
        loc = {r: WR + 2 * r for r in range(17)}
        npk = 0
        for T in range(1, 8):
            for n, r in enumerate(range(0, 17, 1 << kk[T])):
                alt = (WR + 2 * (r + 1)) if r < 16 else VV
                dst = alt if loc[r] == WR + 2 * r else WR + 2 * r
                self.cmul(dst, loc[r], Z256); loc[r] = dst
                if pend: self.dsop(pend.pop(0))
                p = PK + (npk & 1); npk += 1
                a("v_cvt_pk_bf16_f32 v%d, v%d, v%d" % (p, dst, dst + 1))
                pend.append("ds_write_b32 v%d, v%d offset:%d" % (AD + ((base[T] + n) & 15), p, (base[T] + n) * 256))
                self.s_bar_maybe()
        for ks in range(1, 4): a("v_xor_b32 v%d, %d, v%d" % (t + 1 + ks, 64 * ks, AA))
        self.dsop(pend.pop(0))
        self.wait_ds()
        if self.o.get("fine"): self.ts()
        a("s_barrier")
        for ks in range(4):
            self.dsop("ds_read_b128 v[%d:%d], v%d" % (BF + 4 * ks, BF + 4 * ks + 3, t + 1 + ks if ks else AA), "kb%d" % ks)
        seq = [(T, ks) for ks in range(4) for T in range(8)]
        NA = 11
        def rd(n):
            T, ks = seq[n]
            r = AA + 1 + T
            if ks: a("v_xor_b32 v%d, %d, v%d" % (r, 64 * (ks ^ (ks - 1)), r))
            k = AF + 4 * (n % NA)
            self.dsop("ds_read_b128 v[%d:%d], v%d" % (k, k + 3, r), "ka%d" % n)
        for n in range(NA): rd(n)
        for n in range(32):
            T, ks = seq[n]
            self.wait_ds("ka%d" % n)
            D = KA + 4 * T
            k = AF + 4 * (n % NA)
            a("v_mfma_f32_16x16x32_bf16 v[%d:%d], v[%d:%d], v[%d:%d], %s" % (D, D + 3, k, k + 3, BF + 4 * ks, BF + 4 * ks + 3,
                                                                          "0" if ks == 0 else "v[%d:%d]" % (D, D + 3)))
            if n + NA < 32: rd(n + NA)
        a("s_and_b32 s%d, s%d, 1" % (sT1, sSL))
        a("s_lshl_b32 s%d, s%d, 12" % (sT2, sSL))
        a("s_add_u32 s%d, s%d, %d" % (sT2, sT2, L_TAB))
        a("v_lshl_add_u32 v%d, v1, 4, s%d" % (t, sT2))
        a("s_xor_b32 s%d, s%d, 1" % (sT2, sSL))
        a("s_lshl_b32 s%d, s%d, 12" % (sT2, sT2))
        a("s_add_u32 s%d, s%d, %d" % (sT2, sT2, L_TAB))
        a("v_lshl_add_u32 v%d, v1, 4, s%d" % (t + 1, sT2))
        W = 192
        for k in range(4): a("v_mov_b32 v%d, 0" % (W + k))
        a("v_and_b32 v%d, 31, v1" % (t + 4))
        a("v_lshlrev_b32 v%d, 4, v%d" % (t + 4, t + 4))
        a("v_add_u32 v%d, %d, v%d" % (t + 4, L_U, t + 4))
        a("v_min_u32 v%d, 8, v1" % (t + 5))
        a("v_lshlrev_b32 v%d, 2, v%d" % (t + 5, t + 5))
        a("s_lshr_b32 s%d, s%d, 1" % (sT2, sSL))
        a("s_mul_i32 s%d, s%d, 8320" % (sT2, sT2))
        a("s_add_u32 s%d, s%d, %d" % (sT3, sT2, L_K))
        a("v_add_u32 v%d, s%d, v%d" % (t + 5, sT3, t + 5))
        a("s_lshl_b32 s%d, s%d, 11" % (sT3, sT1))
        a("s_sub_u32 s%d, s%d, s%d" % (sT2, sT2, sT3))
        a("s_add_u32 s%d, s%d, %d" % (sT2, sT2, L_K + 4088 - 1536))
        a("v_and_b32 v%d, 15, v1" % (t + 2))
        a("v_lshlrev_b32 v%d, 5, v%d" % (t + 2, t + 2))
        a("v_lshrrev_b32 v%d, 4, v1" % (t + 3))
        a("v_lshl_add_u32 v%d, v%d, 3, v%d" % (t + 2, t + 3, t + 2))
        a("v_sub_u32 v%d, s%d, v%d" % (t + 2, sT2, t + 2))
        if self.o.get("fine"): self.ts()
        self.s_bar_maybe(force=True)
        Lh, Lj = a.newlabel("khi"), a.newlabel("kj")
        a("s_cmp_lg_u32 s%d, 0" % sT1)
        a("s_cbranch_scc1 %s" % Lh)
        for k in range(4): a("ds_write_b128 v%d, v[%d:%d] offset:%d" % (t, KA + 16 + 4 * k, KA + 19 + 4 * k, 1024 * k))
        a("s_branch %s" % Lj)
        a.label(Lh)
        for k in range(4): a("ds_write_b128 v%d, v[%d:%d] offset:%d" % (t, KA + 4 * k, KA + 3 + 4 * k, 1024 * k))
        a("s_nop 0")
        for k in range(16): a("v_mov_b32 v%d, v%d" % (KA + k, KA + 16 + k))
        a.label(Lj)
        a("s_waitcnt lgkmcnt(0)"); self.ds = []
        self.s_bar_maybe(force=True)
        for k in range(4): self.dsop("ds_read_b128 v[%d:%d], v%d offset:%d" % (KA + 16 + 4 * k, KA + 19 + 4 * k, t + 1, 1024 * k), "kx%d" % k)
        self.dsop("ds_write_b32 v%d, v%d offset:4096" % (t + 5, W))
        Lz = a.newlabel("kz")
        a("s_cmp_lg_u32 s%d, 0" % sT1)
        a("s_cbranch_scc1 %s" % Lz)
        a("ds_write_b32 v%d, v%d offset:%d" % (t + 5, W, 4160 + 4092))
        a.label(Lz)
        self.get_nonce()
        a("s_waitcnt lgkmcnt(0)"); self.ds = []
        for k in range(4):
            D = KA + 4 * k
            a("v_add_f32 v%d, v%d, v%d\nv_add_f32 v%d, v%d, v%d" % (D, D, D + 16, D + 1, D + 1, D + 17))
            a("v_add_f32 v%d, v%d, v%d\nv_add_f32 v%d, v%d, v%d" % (D + 2, D + 2, D + 18, D + 3, D + 3, D + 19))
            Q = AF + 4 * k
            a("v_cvt_pk_bf16_f32 v%d, v%d, v%d" % (Q, D + 3, D + 2))
            a("v_cvt_pk_bf16_f32 v%d, v%d, v%d" % (Q + 1, D + 1, D))
            a("v_cvt_pk_bf16_f32 v%d, v%d, v%d" % (Q + 2, D + 2, D + 1))
        for k in range(4):
            self.s_bar_maybe(force=True)
            Q = AF + 4 * k
            o = 512 * (3 - k)
            self.dsop("ds_write_b64 v%d, v[%d:%d] offset:%d" % (t + 2, Q, Q + 1, o))
            self.dsop("ds_write_b32 v%d, v%d offset:%d" % (t + 2, Q + 2, o + 4160))
            self.dsop("ds_write_b16_d16_hi v%d, v%d offset:%d" % (t + 2, Q + 1, o + 4164))
            self.dsop("ds_write_b16 v%d, v%d offset:%d" % (t + 2, Q, o + 4158))
            if k == 0: self.dsop("ds_write_b128 v%d, v[%d:%d]" % (t + 4, W, W + 3))
            if k == 1: self.dsop("ds_write_b128 v%d, v[%d:%d] offset:4608" % (t + 4, W, W + 3))
            if k == 2: self.dsop("ds_write_b32 v22, v%d" % W)
        self.wait_ds()
        self.ts()
        print("kgen barriers placed before the end:", self.nb)
        self.o["sts"] = 0
    def stage_u(self):
        a = self.a
        t = vT
        late = self.o["fxlate"]
        a.c("==== stage the normalised channel pair (first look at the flags is squeezed between the last GEMM1 barriers)")
        assert self.nb <= 6 + late
        while self.nb < 6 + late: self.s_bar_maybe(force=True)
        a("v_and_b32 v%d, 7, v1" % t)
        a("v_lshlrev_b32 v%d, 2, v%d" % (t, t))
        a("s_and_b32 s%d, s2, 7" % sT0)
        a("s_lshl_b32 s%d, s%d, 2" % (sT0, sT0))
        a("s_add_u32 s%d, s%d, s%d" % (sT0, sT0, sSL))
        a("s_lshl_b32 s%d, s%d, 5" % (sT0, sT0))
        a("s_add_u32 s%d, s%d, 0x%x" % (sT2, sT0, WS_FX))
        ld = "buffer_load_dword v%d, v%d, s[%d:%d], s%d offen sc1" % (vFL, t, SRD_WS, SRD_WS + 3, sT2)
        self.vmem(ld, "poll")
        self.conv_addr()
        a("s_barrier")
        self.wait_vm("poll")
        a("v_cmp_ne_u32 vcc, s%d, v%d" % (sNONCE, vFL))
        a("s_mov_b32 s%d, 1" % sJ)
        a("s_nop 0")
        a("s_cmp_eq_u64 vcc, 0")
        Lf = a.newlabel("fxfast")
        a("s_cbranch_scc1 %s" % Lf)
        a("s_mov_b32 s%d, 0" % sJ)
        for k in range(2 - late): a("s_barrier")
        if self.o.get("sprio"): a("s_setprio %d" % self.o["sprio"])
        self.poll(ld)
        a.label(Lf)
        self.ts()
        D, S_, W = 128, 136, 144
        a("v_lshlrev_b32 v%d, 4, v1" % t)
        a("s_lshl_b32 s%d, s2, 13" % sT0)
        a("s_lshl_b32 s%d, s%d, 11" % (sT1, sSL))
        a("s_add_u32 s%d, s%d, s%d" % (sT0, sT0, sT1))
        a("s_add_u32 s%d, s%d, 0x%x" % (sT0, sT0, WS_XN))
        a("s_add_u32 s%d, s%d, 0x%x" % (sT1, sT1, WS_ST))
        for h in range(2):
            self.vmem("buffer_load_dwordx4 v[%d:%d], v%d, s[%d:%d], s%d offen offset:%d sc1" % (D + 4 * h, D + 4 * h + 3, t, SRD_WS, SRD_WS + 3, sT0, 1024 * h), "u%d" % h)
            self.vmem("buffer_load_dwordx4 v[%d:%d], v%d, s[%d:%d], s%d offen offset:%d sc1" % (S_ + 4 * h, S_ + 4 * h + 3, t, SRD_WS, SRD_WS + 3, sT1, 1024 * h), "u%d" % h)
        a("s_lshl_b32 s%d, s%d, 10" % (sT1, sSL))
        a("s_add_u32 s%d, s%d, %d" % (sT1, sT1, L_U + 512))
        a("v_lshl_add_u32 v%d, v1, 3, s%d" % (t + 1, sT1))
        def cond_barrier():
            L = a.newlabel("nb")
            a("s_cmp_eq_u32 s%d, 0" % sJ)
            a("s_cbranch_scc1 %s" % L)
            a("s_barrier")
            a.label(L)
        cond_barrier()
        if late and self.o.get("sprio"): a("s_setprio %d" % self.o["sprio"])
        for h in range(2):
            self.wait_vm("u%d" % h)
            if h == 1 and self.o.get("fine"): self.ts()
            for r in range(4):
                d, st, w = D + 4 * h + r, S_ + 4 * h + r, W + 4 * r
                a("v_and_b32 v%d, 0xffff0000, v%d" % (w + 2, st))
                a("v_rcp_f32 v%d, v%d" % (w + 2, w + 2))
                a("v_lshlrev_b32 v%d, 16, v%d" % (w + 3, st))
                a("v_lshlrev_b32 v%d, 16, v%d\nv_and_b32 v%d, 0xffff0000, v%d" % (w, d, w + 1, d))
                a("v_sub_f32 v%d, v%d, v%d\nv_sub_f32 v%d, v%d, v%d" % (w, w, w + 3, w + 1, w + 1, w + 3))
                a("v_cvt_pk_bf16_f32 v%d, v%d, v%d" % (d, w, w + 1))
                a("v_lshlrev_b32 v%d, 16, v%d\nv_and_b32 v%d, 0xffff0000, v%d" % (w, d, w + 1, d))
                a("v_mul_f32 v%d, v%d, v%d\nv_mul_f32 v%d, v%d, v%d" % (w, w, w + 2, w + 1, w + 1, w + 2))
            for ch in range(2):
                O = D + 4 * h + 2 * ch
                a("v_cvt_pk_bf16_f32 v%d, v%d, v%d" % (O, W + ch, W + 4 + ch))
                a("v_cvt_pk_bf16_f32 v%d, v%d, v%d" % (O + 1, W + 8 + ch, W + 12 + ch))
            for ch in range(2):
                O = D + 4 * h + 2 * ch
                self.dsop("ds_write_b64 v%d, v[%d:%d] offset:%d" % (t + 1, O, O + 1, 512 * h + 4608 * ch))
        self.sbar(None if late else cond_barrier)
        if not late and self.o.get("sprio"): a("s_setprio %d" % self.o["sprio"])
    CA = 96
    def conv_addr(self):
        a = self.a
        t = vT + 2
        AA = self.CA
        a("s_lshr_b32 s%d, s%d, 1" % (sSOX, sSL))
        a("s_and_b32 s%d, s%d, 1" % (sSOW, sSL))
        a("v_and_b32 v%d, 15, v1" % t)
        a("v_lshrrev_b32 v%d, 4, v1" % (t + 1))
        a("v_and_b32 v%d, 1, v1" % (t + 2))
        a("v_mul_u32_u24 v%d, %d, v%d" % (t + 2, 4160 - 2, t + 2))
        a("v_lshl_add_u32 v%d, v%d, 1, v%d" % (t + 2, t, t + 2))
        a("v_lshlrev_b32 v%d, 4, v%d" % (t + 3, t + 1))
        a("v_sub_u32 v%d, v%d, v%d" % (t + 2, t + 3, t + 2))
        a("s_mul_i32 s%d, s%d, 8320" % (sT0, sSOX))
        a("s_lshl_b32 s%d, s%d, 8" % (sT1, sSOW))
        a("s_sub_u32 s%d, s%d, s%d" % (sT0, sT0, sT1))
        a("s_add_u32 s%d, s%d, %d" % (sT0, sT0, L_K + 4160 + 4060 - 192 - 512))
        a("v_add_u32 v%d, s%d, v%d" % (AA, sT0, t + 2))
        for ap in range(1, 4): a("v_subrev_u32 v%d, %d, v%d" % (AA + ap, 1024 * ap, AA))
        a("v_lshl_add_u32 v%d, v%d, 5, v%d" % (t + 2, t, t + 3))
        a("s_mul_i32 s%d, s%d, 4608" % (sT0, sSOX))
        a("s_sub_u32 s%d, s%d, s%d" % (sT0, sT0, sT1))
        a("s_add_u32 s%d, s%d, %d" % (sT0, sT0, L_U + 512 - 32 - 192))
        a("v_add_u32 v%d, s%d, v%d" % (AA + 4, sT0, t + 2))
        a("s_lshl_b32 s%d, s%d, 12" % (sT0, sSL))
        a("s_add_u32 s%d, s%d, %d" % (sT0, sT0, L_K))
        a("v_lshl_add_u32 v%d, v1, 4, s%d" % (AA + 5, sT0))
        a("s_xor_b32 s%d, s%d, 1" % (sT0, sSL))
        a("s_lshl_b32 s%d, s%d, 12" % (sT0, sT0))
        a("s_add_u32 s%d, s%d, %d" % (sT0, sT0, L_K))
        a("v_lshl_add_u32 v%d, v1, 4, s%d" % (AA + 6, sT0))
        a("v_lshlrev_b32 v%d, 5, v%d" % (AA + 7, t))
        a("v_lshl_add_u32 v%d, v%d, 3, v%d" % (AA + 7, t + 1, AA + 7))
        a("s_mul_i32 s%d, s%d, 4608" % (sT0, sSOX))
        a("s_lshl_b32 s%d, s%d, 11" % (sT1, sSOW))
        a("s_add_u32 s%d, s%d, s%d" % (sT0, sT0, sT1))
        a("s_add_u32 s%d, s%d, %d" % (sT0, sT0, L_U + 512))
        a("v_add_u32 v%d, s%d, v%d" % (AA + 8, sT0, AA + 7))
    def conv(self):
        a = self.a
        a.c("==== causal convolution, Hankel(K) x windows(u)")
        t = vT
        YA, AA, FA_, FB_ = 64, self.CA, 128, 160
        self.ts()
        def rdA(it, aa):
            o = 16 * (3 - it) + 128 * (1 - (aa & 1))
            self.dsop("ds_read2_b32 v[%d:%d], v%d offset0:%d offset1:%d" % (FA_ + 4 * aa, FA_ + 4 * aa + 1, AA + (aa >> 1), o, o + 1))
            self.dsop("ds_read2_b32 v[%d:%d], v%d offset0:%d offset1:%d" % (FA_ + 4 * aa + 2, FA_ + 4 * aa + 3, AA + (aa >> 1), o + 2, o + 3), "A%d_%d" % (it, aa))
        def rdB(it, b):
            self.dsop("ds_read_b128 v[%d:%d], v%d offset:%d" % (FB_ + 4 * b, FB_ + 4 * b + 3, AA + 4, 512 * b + 64 * (3 - it)), "B%d_%d" % (it, b))
        rdA(0, 0)
        for b in range(7, -1, -1): rdB(0, b)
        rdA(0, 1)
        for it in range(4):
            for aa in range(8):
                for b in range(7 - aa, -1, -1):
                    self.wait_ds("A%d_%d" % (it, aa)); self.wait_ds("B%d_%d" % (it, b))
                    D = YA + 4 * (aa + b)
                    a("v_mfma_f32_16x16x32_bf16 v[%d:%d], v[%d:%d], v[%d:%d], %s" % (D, D + 3, FA_ + 4 * aa, FA_ + 4 * aa + 3, FB_ + 4 * b, FB_ + 4 * b + 3,
                                                                                  "0" if (it == 0 and aa == 0) else "v[%d:%d]" % (D, D + 3)))
                    if b == 7 - aa:
                        if it == 0 and aa + 2 < 8: rdA(0, aa + 2)
                        if it < 3: rdB(it + 1, b)
                    if b == 0 and it < 3: rdA(it + 1, aa)
        self.ts()
        for k in range(4): self.dsop("ds_read_b64 v[%d:%d], v%d offset:%d" % (FA_ + 2 * k, FA_ + 2 * k + 1, AA + 8, 512 * k))
        self.sbar()
        if self.o.get("fine"): self.ts()
        Lh, Lj = a.newlabel("yhi"), a.newlabel("yj")
        a("s_cmp_lg_u32 s%d, 0" % sSOW)
        a("s_cbranch_scc1 %s" % Lh)
        for k in range(4): a("ds_write_b128 v%d, v[%d:%d] offset:%d" % (AA + 5, YA + 16 + 4 * k, YA + 19 + 4 * k, 1024 * k))
        a("s_branch %s" % Lj)
        a.label(Lh)
        for k in range(4): a("ds_write_b128 v%d, v[%d:%d] offset:%d" % (AA + 5, YA + 4 * k, YA + 3 + 4 * k, 1024 * k))
        a("s_nop 0")
        for k in range(16): a("v_mov_b32 v%d, v%d" % (YA + k, YA + 16 + k))
        a.label(Lj)
        W = FB_
        for k in range(4):
            D = YA + 4 * k
            for q in range(2):
                a("v_lshlrev_b32 v%d, 16, v%d\nv_and_b32 v%d, 0xffff0000, v%d" % (W + 2 * q, FA_ + 2 * k + q, W + 2 * q + 1, FA_ + 2 * k + q))
            for q in range(4): a("v_fmac_f32 v%d, s%d, v%d" % (D + q, sDSK, W + q))
        a("s_lshl_b32 s%d, s2, 1" % sT2)
        a("s_add_u32 s%d, s%d, s%d" % (sT2, sT2, sSOX))
        a("s_lshl_b32 s%d, s%d, 9" % (sT0, sSOW))
        a("s_add_u32 s%d, s%d, s%d" % (sT0, sT0, sT2))
        a("s_lshr_b32 s%d, s%d, 4" % (sT1, sT0))
        a("s_lshl_b32 s%d, s%d, 7" % (sT1, sT1))
        a("s_and_b32 s%d, s%d, 15" % (sT0, sT0))
        a("s_lshl_b32 s%d, s%d, 2" % (sT0, sT0))
        a("s_add_u32 s%d, s%d, s%d" % (sT0, sT0, sT1))
        a("s_add_u32 s%d, s%d, 0x%x" % (sFLG, sT0, WS_FY))
        a("s_lshl_b32 s%d, s%d, 12" % (sT2, sT2))
        a("s_lshl_b32 s%d, s%d, 11" % (sT3, sSOW))
        a("s_add_u32 s%d, s%d, s%d" % (sT2, sT2, sT3))
        a("s_add_u32 s%d, s%d, 0x%x" % (sT2, sT2, WS_YT))
        self.sbar()
        if self.o.get("fine"): self.ts()
        for k in range(4): self.dsop("ds_read_b128 v[%d:%d], v%d offset:%d" % (YA + 16 + 4 * k, YA + 19 + 4 * k, AA + 6, 1024 * k), "yx%d" % k)
        for k in range(4):
            D = YA + 4 * k
            self.wait_ds("yx%d" % k)
            a("v_pk_add_f32 v[%d:%d], v[%d:%d], v[%d:%d]" % (D, D + 1, D, D + 1, D + 16, D + 17))
            a("v_pk_add_f32 v[%d:%d], v[%d:%d], v[%d:%d]" % (D + 2, D + 3, D + 2, D + 3, D + 18, D + 19))
            Q = W + 4 + 2 * k
            a("v_cvt_pk_bf16_f32 v%d, v%d, v%d\nv_cvt_pk_bf16_f32 v%d, v%d, v%d" % (Q, D, D + 1, Q + 1, D + 2, D + 3))
            self.vmem("buffer_store_dwordx2 v[%d:%d], v%d, s[%d:%d], s%d offen offset:%d sc1" % (Q, Q + 1, AA + 7, SRD_WS, SRD_WS + 3, sT2, 512 * k), "y")
    def s_final(self):
        a = self.a
        t = vT
        a.c("==== output: x + y + rstd * (sum of the four partial products)")
        EX, EY, ESD, AD, T1, W = 128, 136, 144, 148, 160, 176
        a("v_and_b32 v%d, 15, v1" % t)
        a("v_lshrrev_b32 v%d, 4, v1" % (t + 1))
        a("s_lshl_b32 s%d, s%d, 2" % (sT3, sMB))
        a("s_add_u32 s%d, s%d, s%d" % (sT3, sT3, sSL))
        a("s_lshl_b32 s%d, s%d, 6" % (sT2, sT3))
        a("s_add_u32 s%d, s%d, 0x%x" % (sT2, sT2, WS_ST))
        a("v_lshlrev_b32 v%d, 2, v%d" % (t + 2, t))
        self.vmem("buffer_load_dword v%d, v%d, s[%d:%d], s%d offen sc1" % (ESD, t + 2, SRD_WS, SRD_WS + 3, sT2), "ex")
        a("v_lshlrev_b32 v%d, 10, v%d" % (t + 2, t))
        a("v_lshl_add_u32 v%d, v%d, 4, v%d" % (ESD + 2, t + 1, t + 2))
        a("s_lshl_b32 s%d, s%d, 14" % (sT3, sT3))
        a("s_lshl_b32 s%d, s%d, 7" % (sT2, sDB))
        a("s_add_u32 s%d, s%d, s%d" % (sSOX, sT3, sT2))
        self.vmem("buffer_load_dwordx4 v[%d:%d], v%d, s[%d:%d], s%d offen" % (EX, EX + 3, ESD + 2, SRD_X, SRD_X + 3, sSOX), "ex")
        self.vmem("buffer_load_dwordx4 v[%d:%d], v%d, s[%d:%d], s%d offen offset:64" % (EX + 4, EX + 7, ESD + 2, SRD_X, SRD_X + 3, sSOX), "ex")
        if self.o.get("fine"): self.ts()
        self.wait_vm("y")
        self.publish(sFLG, t + 2)
        self.ts()
        a("s_lshr_b32 s%d, s%d, 4" % (sT3, sMB))
        a("s_lshl_b32 s%d, s%d, 3" % (sT3, sT3))
        a("s_add_u32 s%d, s%d, s%d" % (sT3, sT3, sDB))
        a("s_lshl_b32 s%d, s%d, 2" % (sT3, sT3))
        a("s_add_u32 s%d, s%d, s%d" % (sT3, sT3, sSL))
        a("s_lshl_b32 s%d, s%d, 7" % (sT3, sT3))
        a("s_add_u32 s%d, s%d, 0x%x" % (sT3, sT3, WS_FY))
        a("v_lshlrev_b32 v%d, 2, v%d" % (t + 2, t))
        a("v_lshlrev_b32 v%d, 1, v%d" % (t + 3, t + 1))
        a("v_xor_b32 v%d, v%d, v%d" % (t + 3, t + 3, t))
        a("v_lshlrev_b32 v%d, 4, v%d" % (t + 3, t + 3))
        a("v_lshl_add_u32 v%d, v%d, 8, v%d" % (t + 3, t, t + 3))
        a("s_and_b32 s%d, s%d, 1" % (sT0, sSL))
        a("s_lshl_b32 s%d, s%d, 12" % (sT0, sT0))
        a("s_cmp_ge_u32 s%d, 2" % sSL)
        a("s_cselect_b32 s%d, 0, %d" % (sT1, W2BASE[3] - W2BASE[0]))
        a("s_add_u32 s%d, s%d, %d" % (sT1, sT1, W2BASE[0]))
        a("s_add_u32 s%d, s%d, s%d" % (sT0, sT0, sT1))
        a("v_add_u32 v%d, s%d, v%d" % (AD, sT0, t + 3))
        a("v_xor_b32 v%d, 16, v%d\nv_xor_b32 v%d, 128, v%d\nv_xor_b32 v%d, 144, v%d" % (AD + 1, AD, AD + 2, AD, AD + 3, AD))
        a("v_bfe_u32 v%d, v1, 2, 2" % (t + 3))
        a("v_lshl_add_u32 v%d, v%d, 3, v%d" % (t + 3, t + 1, t + 3))
        a("v_mul_u32_u24 v%d, 144, v%d" % (t + 3, t + 3))
        a("v_and_b32 v%d, 3, v1" % (t + 4))
        a("v_lshl_add_u32 v%d, v%d, 3, v%d" % (t + 3, t + 4, t + 3))
        a("s_lshl_b32 s%d, s%d, 5" % (sT0, sSL))
        a("s_add_u32 s%d, s%d, %d" % (sT0, sT0, L_YS))
        a("v_add_u32 v%d, s%d, v%d" % (AD + 4, sT0, t + 3))
        a("v_lshrrev_b32 v%d, 2, v1" % (t + 3))
        a("v_lshlrev_b32 v%d, 4, v%d" % (t + 4, t + 4))
        a("v_lshl_add_u32 v%d, v%d, 12, v%d" % (AD + 5, t + 3, t + 4))
        a("v_mul_u32_u24 v%d, 144, v%d" % (t + 3, t + 3))
        a("s_mul_i32 s%d, s%d, %d" % (sT0, sSL, 16 * 144))
        a("s_add_u32 s%d, s%d, %d" % (sT0, sT0, L_YS))
        a("v_add3_u32 v%d, v%d, v%d, s%d" % (AD + 6, t + 3, t + 4, sT0))
        a("s_lshl_b32 s%d, s%d, 2" % (sT0, sDB))
        a("s_add_u32 s%d, s%d, s%d" % (sT0, sT0, sSL))
        a("s_lshl_b32 s%d, s%d, 16" % (sT0, sT0))
        a("s_lshl_b32 s%d, s%d, 7" % (sT1, sMB))
        a("s_add_u32 s%d, s%d, s%d" % (sT0, sT0, sT1))
        a("s_add_u32 s%d, s%d, 0x%x" % (sSOW, sT0, WS_YT))
        self.wait_vm("ex")
        a("v_and_b32 v%d, 0xffff0000, v%d" % (ESD, ESD))
        a("v_rcp_f32 v%d, v%d" % (ESD, ESD))
        for k in range(8):
            a("v_lshlrev_b32 v%d, 16, v%d\nv_and_b32 v%d, 0xffff0000, v%d" % (T1 + 2 * k, EX + k, T1 + 2 * k + 1, EX + k))
        self.poll("buffer_load_dword v%d, v%d, s[%d:%d], s%d offen sc1" % (vFL, t + 2, SRD_WS, SRD_WS + 3, sT3))
        self.ts()
        self.vmem("buffer_load_dwordx4 v[%d:%d], v%d, s[%d:%d], s%d offen sc1" % (EY, EY + 3, AD + 5, SRD_WS, SRD_WS + 3, sSOW), "ey")
        self.vmem("buffer_load_dwordx4 v[%d:%d], v%d, s[%d:%d], s%d offen offset:64 sc1" % (EY + 4, EY + 7, AD + 5, SRD_WS, SRD_WS + 3, sSOW), "ey")
        self.wait_vm("ey")
        if self.o.get("fine"): self.ts()
        self.dsop("ds_write_b128 v%d, v[%d:%d]" % (AD + 6, EY, EY + 3))
        self.dsop("ds_write_b128 v%d, v[%d:%d] offset:64" % (AD + 6, EY + 4, EY + 7))
        self.sbar()
        for j in range(4):
            self.dsop("ds_read_b64_tr_b16 v[%d:%d], v%d offset:%d" % (EY + 2 * j, EY + 2 * j + 1, AD + 4, ((j & 1) * 4 + (j >> 1) * 32) * 144), "yt")
        self.wait_ds("yt")
        for k in range(8):
            a("v_lshlrev_b32 v%d, 16, v%d\nv_and_b32 v%d, 0xffff0000, v%d" % (W, EY + k, W + 1, EY + k))
            a("v_pk_add_f32 v[%d:%d], v[%d:%d], v[%d:%d]" % (T1 + 2 * k, T1 + 2 * k + 1, T1 + 2 * k, T1 + 2 * k + 1, W, W + 1))
        self.ts()
        a("s_barrier")
        self.ts()
        for P in range(4):
            for j in range(4):
                self.dsop("ds_read_b128 v[%d:%d], v%d offset:%d" % (vACC + 16 * P + 4 * j, vACC + 16 * P + 4 * j + 3, AD + j, 8192 * P), "p%d" % P)
        for P in range(1, 4):
            self.wait_ds("p%d" % P)
            for k in range(8):
                a("v_pk_add_f32 v[%d:%d], v[%d:%d], v[%d:%d]" % (vACC + 2 * k, vACC + 2 * k + 1, vACC + 2 * k, vACC + 2 * k + 1, vACC + 16 * P + 2 * k, vACC + 16 * P + 2 * k + 1))
        for h in range(2):
            for k in range(4 * h, 4 * h + 4):
                a("v_pk_fma_f32 v[%d:%d], v[%d:%d], v[%d:%d], v[%d:%d] op_sel_hi:[1,0,1]" % (T1 + 2 * k, T1 + 2 * k + 1, vACC + 2 * k, vACC + 2 * k + 1, ESD, ESD + 1, T1 + 2 * k, T1 + 2 * k + 1))
            for k in range(4 * h, 4 * h + 4):
                a("v_cvt_pk_bf16_f32 v%d, v%d, v%d" % (EX + k, T1 + 2 * k, T1 + 2 * k + 1))
            self.vmem("buffer_store_dwordx4 v[%d:%d], v%d, s[%d:%d], s%d offen offset:%d" % (EX + 4 * h, EX + 4 * h + 3, ESD + 2, SRD_OUT, SRD_OUT + 3, sSOX, 64 * h))

    def dump(self, wave):
        a = self.a
        if not self.diag: return
        a("s_waitcnt vmcnt(0)")
        self.ts()
        a("s_memrealtime s[%d:%d]" % (sM0, sM1)); a("s_waitcnt lgkmcnt(0)"); a("s_mov_b32 s98, s%d" % sM0)
        a("s_cmp_lg_u32 s%d, %d" % (sWAVE, wave)); a("s_cbranch_scc1 L_END")
        a("s_lshl_b32 s%d, s2, 8" % sT0); a("s_add_u32 s%d, s%d, 0x%x" % (sT0, sT0, WS_TS + (128 if wave else 0)))
        a("s_mov_b64 exec, 1")
        for k in range(20):
            a("v_mov_b32 v2, s%d" % (sTS + k))
            a("buffer_store_dword v2, off, s[%d:%d], s%d offset:%d" % (SRD_WS, SRD_WS + 3, sT0, 4 * k))
        a("s_waitcnt vmcnt(0)")

    def build(self):
        a = self.a
        if self.diag:
            for k in range(20): a("s_mov_b32 s%d, 0" % (sTS + k))
        self.setup()
        nts0 = self.nts
        if self.o["fprio"]: a("s_setprio %d" % self.o["fprio"])
        vm_s = list(self.vm)
        self.srds(["x"])
        a("s_cmp_eq_u32 s%d, 7" % sDB)
        a("s_cbranch_scc1 L_SPARE0")
        self.srds(["w1"])
        for f in self.g1_dma_ops(0, "c0"): f()
        self.chunk_soffsets()
        for f in self.g1_dma_ops(1, "c1"): f()
        a.label("L_FCOMMON")
        self.srds(["ws", "dbg", "w2"])
        self.f_vrows()
        a("s_cmp_eq_u32 s%d, 7" % sDB)
        a("s_cbranch_scc1 L_SPARE")
        self.g1_addr()
        self.wait_ds()
        a("s_barrier")
        self.gemm1()
        self.ts()
        self.g1_epilogue()
        self.ts()
        self.gemm2("L_JOIN")
        self.dump(0)
        a("s_endpgm")
        a.label("L_SPARE0")
        self.vm, self.ds = list(vm_s), []
        self.spare_loads()
        a("s_branch L_FCOMMON")
        a.label("L_SPARE")
        self.nts = nts0
        self.spare_path()
        a("s_branch L_JOIN")
        self.vm, self.ds, self.nts = list(vm_s), [], nts0
        self.s_entry()
        self.kgen()
        self.stage_u()
        self.conv()
        self.s_final()
        self.dump(4)
        a.label("L_END")
        a("s_endpgm")
        a.label("L_CODE_END")
        return a

def full_text(a, header=""):
    return header + """; @launch grid=(256,1,1) block=(%d,1,1) lds=%d
.amdgcn_target "amdgcn-amd-amdhsa--gfx950"
.text
.globl %s
.p2align 8
.type %s,@function
%s:
""" % (BLOCK, LDS_BYTES, NAME, NAME, NAME) + a.text() + """.section .rodata,"a"
.p2align 6
.amdhsa_kernel %s
  .amdhsa_next_free_vgpr 256
  .amdhsa_next_free_sgpr 102
  .amdhsa_accum_offset 256
  .amdhsa_group_segment_fixed_size 0
  .amdhsa_kernarg_size 120
  .amdhsa_user_sgpr_count 2
  .amdhsa_user_sgpr_kernarg_segment_ptr 1
  .amdhsa_system_sgpr_workgroup_id_x 1
  .amdhsa_float_denorm_mode_32 3
.end_amdhsa_kernel
""" % NAME

if __name__ == "__main__":
    import argparse
    HEADER = open("parallel_sum__ssm_conv_s4__dense_activation_relu__prompt.s.ref").read().split("; Override launch")[0]
    ap = argparse.ArgumentParser()
    ap.add_argument("-o", default="k2.s")
    ap.add_argument("--diag", action="store_true")
    ap.add_argument("--opt", default="")
    args = ap.parse_args()
    opt = {}
    for kv in args.opt.split(","):
        if kv: k, v = kv.split("="); opt[k] = int(v)
    g = Gen(diag=args.diag, opt=opt)
    a = g.build()
    check_hazards(a.lines)
    open(args.o, "w").write(full_text(a, HEADER))
    print("wrote", args.o, "instructions:", sum(1 for l in a.lines if parse(l)))
```

```python
import sys
from asmlib import *

NAME = "parallel_sum__ssm_conv_s4__dense_activation_relu__prompt_kernel"
BLOCK = 512
WS_H, WS_XN, WS_YT = 0, 0x700000, 0x900000
WS_ST = 0xB00000
WS_FX, WS_FY, WS_TS, WS_FH = 0xB04000, 0xB06000, 0xB10000, 0xB20000
WS_SIZE = 0xB40000
XPART = 16 * 1040
SLOT1 = XPART + 16384
L_TAB = 3 * SLOT1
L_TABU = L_TAB + 16384 - 4096
TABW = 47 * 256
L_SUM = 136960
L_U = L_SUM + 1024
L_K = L_U + 9216
L_CNT = L_SUM - 16
L_YS = SLOT1 + 16384
LDS_BYTES = 163840
W2BASE = [3 * SLOT1, 2 * SLOT1, 0]
L_YX = SLOT1

LNROW = 1040
L_LNS = 66560
SRD_X, SRD_W1, SRD_W2, SRD_OUT, SRD_WS, SRD_DBG = 36, 40, 44, 48, 52, 56
sWAVE, sMT, sSL, sJ, sC, sNONCE, sMB, sDB = 60, 61, 62, 63, 64, 65, 66, 67
sSOX, sSOW, sLDT, sDSK, sONES, sT0, sT1, sT2, sT3, sCNT = 68, 69, 70, 71, 72, 73, 74, 75, 76, 77
sW2A, sW2B, sHA, sHB, sW2Z, sHZ = 78, 79, 34, 35, 9, 10
sH00 = 4
sFLG = 8
sTS = 80
sM0, sM1 = 100, 101
vT = 2
vD2, vA2, vH0, vH1, vNON, vFL = 10, 14, 18, 19, 20, 21
vDX, vDW, vAX, vAW, vRS, vCSUM, vONE = 24, 28, 32, 40, 44, 48, 52
vACC, vFR, vCS, vMEAN = 64, 128, 160, 192
vPAR = 56

class Gen:
    def __init__(self, diag=False, opt=None):
        self.a = Asm(); self.diag = diag
        self.vm, self.ds, self.seen = [], [], set()
        self.nts = 0
        self.nsb = 0
        self.nb = 0
        self.w2next = 0
        self.o = dict(w2early=3, mark=12, ah=9, hsleep=3, sprio1=2, col1=2, colpf=3, bv=0, epidma=0, cprio=3, l2pf=0, l2first=0, kwper=1, mc=0, wtouch=0, ctouch=1, pkc=1, sprio0=2, sprio=3, fxlate=3, ra=1, rb=0, rg=4, rot2=0, dbgts=0, hold=0, tsw=0, quota0=150, quota=70, fprio=1, sleep=12, hsplit=0)
        if opt: self.o.update(opt)
        self.o['mcut'] = {0: (), 1: (13,), 2: (7, 19)}[self.o['mc']]
    def vmem(self, s, tag="x"):
        self.a(s); self.vm.append(tag); self.seen.add(tag)
    def dsop(self, s, tag="x"):
        self.a(s); self.ds.append(tag); self.seen.add(tag)
    def _n(self, lst, tag):
        return len(lst) - 1 - max(i for i, t in enumerate(lst) if t == tag)
    def wait_vm(self, tag=None):
        if tag is not None:
            assert tag in self.seen, tag
            if tag not in self.vm: return
        n = 0 if tag is None else self._n(self.vm, tag)
        assert n <= 63, (tag, n)
        self.a("s_waitcnt vmcnt(%d)" % n)
        self.vm = self.vm[len(self.vm) - n:] if n else []
    def wait_ds(self, tag=None):
        if tag is not None:
            assert tag in self.seen, tag
            if tag not in self.ds: return
        n = 0 if tag is None else self._n(self.ds, tag)
        n = min(n, 15)
        self.a("s_waitcnt lgkmcnt(%d)" % n)
        self.ds = self.ds[len(self.ds) - n:] if n else []
    def ts(self):
        if not self.diag: return
        assert self.nts < 18
        self.a("s_memtime s[%d:%d]" % (sM0, sM1)); self.a("s_waitcnt lgkmcnt(0)"); self.ds = []
        self.a("s_mov_b32 s%d, s%d" % (sTS + self.nts, sM0)); self.nts += 1
    def srd(self, r, p, size):
        self.a("s_mov_b32 s%d, s%d\ns_mov_b32 s%d, s%d\ns_mov_b32 s%d, 0x%x\ns_mov_b32 s%d, 0x20000" % (r, p, r + 1, p + 1, r + 2, size, r + 3))
    def ninstr(self): return len(self.a.lines)
    def poll(self, load, issued=None, sleep=None):
        a = self.a
        Lr, Ld = a.newlabel("retry"), a.newlabel("ok")
        a("s_mov_b32 s%d, 0" % sCNT)
        if issued is None:
            self.vmem(load, "poll"); self.wait_vm("poll")
        else:
            self.wait_vm(issued)
        a.label(Lr)
        a("v_cmp_ne_u32 vcc, s%d, v%d" % (sNONCE, vFL))
        a("s_add_u32 s%d, s%d, 1" % (sCNT, sCNT))
        a("s_nop 0")
        a("s_cmp_eq_u64 vcc, 0")
        a("s_cbranch_scc1 %s" % Ld)
        a("s_cmp_ge_u32 s%d, 20000" % sCNT)
        a("s_cbranch_scc1 %s" % Ld)
        sleep = self.o["sleep"] if sleep is None else sleep
        if sleep: a("s_sleep %d" % sleep)
        a(load)
        a("s_waitcnt vmcnt(0)")
        a("s_branch %s" % Lr)
        a.label(Ld)
    def nonce_load(self):
        self.vmem("buffer_load_dword v%d, off, s[%d:%d], 0 sc1" % (vNON, SRD_DBG, SRD_DBG + 3), "non")
    def get_nonce(self):
        a = self.a
        Lr, Ld = a.newlabel("nretry"), a.newlabel("nok")
        a("s_mov_b32 s%d, 0" % sCNT)
        self.wait_vm("non")
        a.label(Lr)
        a("v_readfirstlane_b32 s%d, v%d" % (sNONCE, vNON))
        a("s_add_u32 s%d, s%d, 1" % (sCNT, sCNT))
        a("s_nop 0")
        a("s_cmp_lg_u32 s%d, 0" % sNONCE)
        a("s_cbranch_scc1 %s" % Ld)
        a("s_cmp_ge_u32 s%d, 20000" % sCNT)
        a("s_cbranch_scc1 %s" % Ld)
        a("buffer_load_dword v%d, off, s[%d:%d], 0 sc1" % (vNON, SRD_DBG, SRD_DBG + 3))
        a("s_waitcnt vmcnt(0)")
        a("s_branch %s" % Lr)
        a.label(Ld)
    def publish(self, soff_reg, tmpv):
        a = self.a
        a("v_mov_b32 v%d, s%d" % (tmpv, sNONCE))
        a("s_mov_b64 exec, 1")
        self.vmem("buffer_store_dword v%d, off, s[%d:%d], s%d sc1" % (tmpv, SRD_WS, SRD_WS + 3, soff_reg), "flag")
        a("s_mov_b64 exec, -1")
    def sbar_arrive(self, addr=22):
        a = self.a
        a("s_mov_b64 exec, 1")
        self.dsop("ds_add_u32 v%d, v23" % addr)
        a("s_mov_b64 exec, -1")
    def lds_wait(self, addr, need, off=0, sleep=0, behind=()):
        a = self.a
        Lr, Ld = a.newlabel("sb"), a.newlabel("sbok")
        a("s_mov_b32 s%d, 0" % sCNT)
        a.label(Lr)
        if sleep: a("s_sleep %d" % sleep)
        a("ds_read_b32 v%d, v%d offset:%d" % (vFL, addr, off))
        for r in behind: a(r)
        a("s_add_u32 s%d, s%d, 1" % (sCNT, sCNT))
        a("s_waitcnt lgkmcnt(0)"); self.ds = []
        a("v_readfirstlane_b32 s%d, v%d" % (sM0, vFL))
        a("s_cmp_ge_u32 s%d, 200000" % sCNT)
        a("s_cbranch_scc1 %s" % Ld)
        a("s_cmp_lt_u32 s%d, %d" % (sM0, need))
        a("s_cbranch_scc1 %s" % Lr)
        a.label(Ld)
    def sbar(self, between=None, behind=()):
        self.sbar_arrive()
        if between: between()
        self.nsb += 1
        self.lds_wait(22, 4 * self.nsb, behind=behind)

    def setup(self):
        a = self.a
        o = self.o
        a("s_cmp_ge_u32 s2, 256\ns_cbranch_scc1 L_END")
        if self.diag:
            a("s_memrealtime s[%d:%d]" % (sM0, sM1)); a("s_waitcnt lgkmcnt(0)"); a("s_mov_b32 s99, s%d" % sM0)
            self.ts()
        a("""s_load_dwordx16 s[4:19], s[0:1], 0
             s_load_dwordx8 s[20:27], s[0:1], 64
             s_load_dwordx4 s[28:31], s[0:1], 96
             s_load_dwordx2 s[32:33], s[0:1], 112
             v_and_b32 v1, 63, v0
             v_lshrrev_b32 v2, 6, v0
             s_and_b32 s%d, s2, 7""" % sT0)
        a("v_readfirstlane_b32 s%d, v2" % sWAVE)
        a("s_lshr_b32 s%d, s2, 3" % sT1)
        Lp = a.newlabel("noprio")
        a("s_cmp_lt_u32 s%d, 4" % sWAVE)
        a("s_cbranch_scc1 %s" % Lp)
        a("s_setprio 3")
        a.label(Lp)
        a("s_lshr_b32 s%d, s%d, 3" % (sT2, sT1))
        a("s_and_b32 s%d, s%d, 7" % (sDB, sT1))
        a("s_lshl_b32 s%d, s%d, 2" % (sMB, sT0))
        a("s_add_u32 s%d, s%d, s%d" % (sMB, sMB, sT2))
        a("s_lshr_b32 s%d, s%d, 1" % (sT3, sT0))
        a("s_lshl_b32 s%d, s%d, 2" % (sMT, sT3))
        a("s_add_u32 s%d, s%d, s%d" % (sMT, sMT, sT2))
        a("s_and_b32 s%d, s%d, 1" % (sJ, sT0))
        a("s_mul_i32 s%d, s%d, 7" % (sSL, sJ))
        a("s_add_u32 s%d, s%d, s%d" % (sSL, sSL, sDB))
        a("s_add_u32 s%d, s%d, s%d" % (sT2, sT2, sDB))
        a("s_and_b32 s%d, s%d, 1" % (sT2, sT2))
        a("s_mul_i32 s%d, s%d, %d" % (sC, sT2, o["rg"]))
        a("s_mul_i32 s%d, s%d, %d" % (sT3, sT3, o["ra"]))
        a("s_add_u32 s%d, s%d, s%d" % (sC, sC, sT3))
        a("s_mul_i32 s%d, s%d, %d" % (sT3, sJ, o["rb"]))
        a("s_add_u32 s%d, s%d, s%d" % (sC, sC, sT3))
        a("s_and_b32 s%d, s%d, 7" % (sC, sC))
        a("s_and_b32 s%d, s%d, %d" % (sHA, sDB, {0: 0, 1: 2, 2: 3}[o["rot2"]]))
        a("s_lshl_b32 s%d, s%d, 3" % (sHA, sHA))
        a("s_lshr_b32 s%d, 0x160e0800, s%d" % (sHA, sHA))
        a("s_and_b32 s%d, s%d, 0xff" % (sHA, sHA))
        if o.get("swap23"):
            a("s_and_b32 s%d, s%d, 6" % (sT3, sDB))
            a("s_cmp_eq_u32 s%d, 2" % sT3)
            a("s_cselect_b32 s%d, 1, 0" % sT3)
            a("s_xor_b32 s%d, s%d, s%d" % (sDB, sDB, sT3))
        t = vT
        for k in range(6): a("v_mov_b32 v%d, 0" % (vPAR + k))
        a("v_and_b32 v%d, 255, v0" % (t + 7))
        a("s_lshl_b32 s%d, s2, 9" % sT0)
        a("v_lshl_add_u32 v%d, v%d, 1, s%d" % (t + 7, t + 7, sT0))
        self.f_dma_setup()
        self.chunk_soffsets()
        a("s_lshl_b32 s%d, s2, 2" % sT2)
        a("s_waitcnt lgkmcnt(0)")
        if o.get("tsstart"): self.ts()
        for k in range(6):
            self.vmem("global_load_short_d16_hi v%d, v%d, s[%d:%d]" % (vPAR + k, t + 7, 6 + 2 * k, 7 + 2 * k), "par")
        a("s_load_dword s%d, s[18:19], s%d" % (sLDT, sT2))
        a("s_load_dword s%d, s[20:21], s%d" % (sDSK, sT2))
        a("s_cmp_ge_u32 s%d, 4" % sWAVE)
        a("s_cbranch_scc1 L_SWAVE")
    def srds(self, which):
        m = dict(x=(SRD_X, 4, 2097152), w1=(SRD_W1, 24, 1835008), w2=(SRD_W2, 26, 1835008), out=(SRD_OUT, 28, 2097152), ws=(SRD_WS, 32, 0x2000000 if self.o.get('hoff') else WS_SIZE), dbg=(SRD_DBG, 30, 256))
        for w in which: self.srd(*m[w])
    def tag_store(self):
        a = self.a
        L = a.newlabel("notag")
        a("s_cmp_lg_u32 s2, 0")
        a("s_cbranch_scc1 %s" % L)
        a("s_cmp_lg_u32 s%d, 4" % sWAVE)
        a("s_cbranch_scc1 %s" % L)
        a("s_memrealtime s[%d:%d]" % (sM0, sM1))
        a("s_waitcnt lgkmcnt(0)")
        a("s_or_b32 s%d, s%d, 1" % (sT0, sM0))
        a("v_mov_b32 v%d, s%d" % (vNON, sT0))
        a("s_mov_b64 exec, 1")
        a("buffer_store_dword v%d, off, s[%d:%d], 0 sc1" % (vNON, SRD_DBG, SRD_DBG + 3))
        a("s_mov_b64 exec, -1")
        a.label(L)

    def f_dma_setup(self):
        a = self.a
        t = vT
        a("v_lshrrev_b32 v%d, 3, v1" % t)
        a("v_lshrrev_b32 v%d, 4, v1" % (t + 1))
        a("v_and_b32 v%d, 7, v1" % (t + 2))
        a("s_lshl_b32 s%d, s%d, 15" % (sT0, sWAVE))
        a("v_lshl_add_u32 v%d, v%d, 10, s%d" % (t + 3, t, sT0))
        a("v_bfe_u32 v%d, v1, 4, 1" % (t + 4))
        a("v_lshlrev_b32 v%d, 2, v%d" % (t + 4, t + 4))
        a("v_xor_b32 v%d, v%d, v%d" % (t + 4, t + 2, t + 4))
        a("v_lshl_add_u32 v%d, v%d, 4, v%d" % (vDX, t + 4, t + 3))
        for i in range(1, 4): a("v_add_u32 v%d, %d, v%d" % (vDX + i, i * (8192 - 1040), vDX))
        a("s_lshl_b32 s%d, s%d, 4" % (sT0, sWAVE))
        a("v_add_u32 v%d, s%d, v%d" % (t + 3, sT0, t + 1))
        a("v_mul_u32_u24 v%d, 3584, v%d" % (t + 3, t + 3))
        a("v_and_b32 v%d, 15, v1" % (t + 4))
        a("v_lshlrev_b32 v%d, 2, v%d" % (t + 5, t + 1))
        a("v_xor_b32 v%d, v%d, v%d" % (t + 4, t + 4, t + 5))
        a("v_lshl_add_u32 v%d, v%d, 4, v%d" % (vDW, t + 4, t + 3))
        for i in range(1, 4): a("v_add_u32 v%d, %d, v%d" % (vDW + i, i * (14336 - 1024), vDW))
        a("s_lshl_b32 s%d, s%d, 17" % (sSOX, sMT))
        a("s_lshl_b32 s%d, s%d, 8" % (sSOW, sSL))
    def chunk_soffsets(self):
        a = self.a
        a("s_lshl_b32 s%d, s%d, 7" % (sT0, sC))
        a("s_add_u32 s%d, s%d, s%d" % (sT0, sT0, sSOX))
        a("s_mul_i32 s%d, s%d, %d" % (sT1, sC, 64 * 3584))
        a("s_add_u32 s%d, s%d, s%d" % (sT1, sT1, sSOW))
        a("s_add_u32 s%d, s%d, 1" % (sC, sC))
        a("s_and_b32 s%d, s%d, 7" % (sC, sC))
    def g1_dma_ops(self, slot, tag):
        ops = []
        def mk(kind, i):
            def f():
                a = self.a
                if i == 0:
                    a("s_mul_i32 s%d, s%d, %d" % (sT3, sWAVE, 4096 if kind else 4160))
                    a("s_add_u32 m0, s%d, %d" % (sT3, slot * SLOT1 + (XPART if kind else 0)))
                    a("s_nop 0")
                if kind == 0:
                    self.vmem("buffer_load_dwordx4 v%d, s[%d:%d], s%d offen offset:%d lds" % (vDX + i, SRD_X, SRD_X + 3, sT0, 1040 * i), tag)
                else:
                    self.vmem("buffer_load_dwordx4 v%d, s[%d:%d], s%d offen offset:%d lds" % (vDW + i, SRD_W1, SRD_W1 + 3, sT1, 1024 * i), tag)
            return f
        for kind in (0, 1):
            for i in range(4): ops.append(mk(kind, i))
        return ops
    def w2_dma_ops(self, ks0, nks=4):
        ops = []
        def mk(ks, j):
            def f():
                a = self.a
                if j == 0:
                    a("s_lshl_b32 s%d, s%d, 13" % (sT3, sWAVE))
                    a("s_add_u32 m0, s%d, %d" % (sT3, W2BASE[(ks >> 2) % 3] + (ks & 3) * 2048))
                    assert ks == self.w2next, (ks, self.w2next)
                    self.w2next += 2
                    a("s_nop 0")
                self.vmem("buffer_load_dwordx4 v%d, s[%d:%d], s%d offen offset:%d lds" % (vD2 + j, SRD_W2, SRD_W2 + 3, sW2A, 1024 * j), "w2_%d" % (ks + (j >> 1)))
                if j == 3 and ks < 26:
                    a("s_add_u32 s%d, s%d, 32768" % (sW2A, sW2A))
                    a("s_cmp_eq_u32 s%d, s%d" % (sW2A, sW2B))
                    a("s_cselect_b32 s%d, s%d, s%d" % (sW2A, sW2Z, sW2A))
            return f
        for ks in range(ks0, ks0 + nks, 2):
            for j in range(4): ops.append(mk(ks, j))
        return ops
    def w2_setup(self):
        a = self.a
        t = vT
        a("v_lshrrev_b32 v%d, 3, v1" % t)
        a("v_and_b32 v%d, 7, v1" % (t + 1))
        a("v_bfe_u32 v%d, v1, 4, 1" % (t + 2))
        a("v_lshlrev_b32 v%d, 2, v%d" % (t + 2, t + 2))
        a("v_xor_b32 v%d, v%d, v%d" % (t + 1, t + 1, t + 2))
        a("v_lshlrev_b32 v%d, 4, v%d" % (t + 1, t + 1))
        a("v_lshl_add_u32 v%d, v%d, 10, v%d" % (vD2, t, t + 1))
        for j in range(1, 4): a("v_add_u32 v%d, %d, v%d" % (vD2 + j, j * 7168, vD2))
        a("s_mul_i32 s%d, s%d, 28" % (sT3, sWAVE))
        a("s_lshl_b32 s%d, s%d, 14" % (sW2Z, sT3))
        a("s_lshl_b32 s%d, s%d, 7" % (sW2A, sDB))
        a("s_add_u32 s%d, s%d, s%d" % (sW2Z, sW2Z, sW2A))
        a("s_add_u32 s%d, s%d, %d" % (sW2B, sW2Z, 28 * 16384))
        a("s_lshl_b32 s%d, s%d, 14" % (sW2A, sHA))
        a("s_add_u32 s%d, s%d, s%d" % (sW2A, sW2A, sW2Z))
        a("s_mul_i32 s%d, s%d, 224" % (sHZ, sMB))
        a("s_add_u32 s%d, s%d, s%d" % (sHZ, sHZ, sT3))
        a("s_lshl_b32 s%d, s%d, 10" % (sHZ, sHZ))
        a("s_add_u32 s%d, s%d, %d" % (sHB, sHZ, 28 * 1024))
        a("s_lshl_b32 s%d, s%d, 10" % (sHA, sHA))
        a("s_add_u32 s%d, s%d, s%d" % (sHA, sHA, sHZ))
        a("v_bfe_u32 v%d, v1, 2, 2" % t)
        a("v_lshrrev_b32 v%d, 5, v1" % (t + 1))
        a("v_lshl_add_u32 v%d, v%d, 2, v%d" % (t + 1, t + 1, t))
        a("v_lshlrev_b32 v%d, 7, v%d" % (t + 1, t + 1))
        a("v_lshrrev_b32 v%d, 1, v%d" % (t, t))
        a("v_lshl_add_u32 v%d, v%d, 6, v%d" % (t + 1, t, t + 1))
        a("v_bfe_u32 v%d, v1, 4, 1" % t)
        a("v_lshl_add_u32 v%d, v%d, 5, v%d" % (t + 1, t, t + 1))
        a("v_and_b32 v%d, 3, v1" % t)
        a("v_lshl_add_u32 v%d, v%d, 3, v%d" % (t + 1, t, t + 1))
        a("s_lshl_b32 s%d, s%d, 13" % (sT3, sWAVE))
        a("v_add_u32 v%d, s%d, v%d" % (vA2, sT3, t + 1))
        a("v_xor_b32 v%d, 64, v%d" % (vA2 + 1, vA2))
        a("v_add_u32 v%d, %d, v%d\nv_add_u32 v%d, %d, v%d" % (vA2 + 2, 2 * SLOT1, vA2, vA2 + 3, 2 * SLOT1, vA2 + 1))
        a("v_lshlrev_b32 v%d, 4, v1" % vH0)
        a("v_add_u32 v%d, %d, v%d" % (vH1, 112 * 1024, vH0))
    def g1_addr(self):
        a = self.a
        t = vT
        a("v_lshrrev_b32 v%d, 5, v1" % (t + 1))
        a("v_bfe_u32 v%d, v1, 3, 2" % t)
        a("v_mul_u32_u24 v%d, 1040, v%d" % (t, t))
        a("v_and_b32 v%d, 7, v1" % (t + 2))
        a("v_lshl_add_u32 v%d, v%d, 7, v%d" % (t, t + 2, t))
        a("v_lshl_add_u32 v%d, v%d, 4, v%d" % (t, t + 1, t))
        a("s_and_b32 s%d, s%d, 1" % (sT3, sWAVE))
        a("s_mul_i32 s%d, s%d, 8320" % (sT3, sT3))
        a("s_lshr_b32 s%d, s%d, 1" % (sT2, sWAVE))
        a("s_mul_i32 s%d, s%d, 4160" % (sT2, sT2))
        a("s_add_u32 s%d, s%d, s%d" % (sM0, sT3, sT2))
        a("s_sub_u32 s%d, s%d, s%d" % (sM1, sT3, sT2))
        a("s_add_u32 s%d, s%d, 4160" % (sM1, sM1))
        a("v_bfe_u32 v%d, v1, 1, 1" % (t + 2))
        a("v_lshlrev_b32 v%d, 6, v%d" % (t + 2, t + 2))
        a("v_xor_b32 v%d, 64, v%d" % (t + 3, t + 2))
        for x, s in ((0, sM0), (1, sM1)):
            a("v_add3_u32 v%d, v%d, v%d, s%d" % (vAX + 4 * x, t, t + 2, s))
            a("v_add3_u32 v%d, v%d, v%d, s%d" % (vAX + 4 * x + 1, t, t + 3, s))
            a("v_add_u32 v%d, %d, v%d\nv_add_u32 v%d, %d, v%d" % (vAX + 4 * x + 2, 2 * SLOT1, vAX + 4 * x, vAX + 4 * x + 3, 2 * SLOT1, vAX + 4 * x + 1))
        a("v_bfe_u32 v%d, v1, 2, 2" % t)
        a("v_lshl_add_u32 v%d, v%d, 3, v%d" % (t + 3, t + 1, t))
        a("v_lshlrev_b32 v%d, 8, v%d" % (t + 3, t + 3))
        a("v_xor_b32 v%d, s%d, v%d" % (t, sWAVE, t))
        a("v_lshl_add_u32 v%d, v%d, 6, v%d" % (t + 3, t, t + 3))
        a("v_bfe_u32 v%d, v1, 4, 1" % t)
        a("v_lshl_add_u32 v%d, v%d, 5, v%d" % (t + 3, t, t + 3))
        a("v_and_b32 v%d, 3, v1" % t)
        a("v_lshl_add_u32 v%d, v%d, 3, v%d" % (t + 3, t, t + 3))
        a("v_add_u32 v%d, %d, v%d" % (vAW, XPART, t + 3))
        a("v_xor_b32 v%d, 64, v%d" % (t + 3, t + 3))
        a("v_add_u32 v%d, %d, v%d" % (vAW + 2, XPART, t + 3))
        a("v_add_u32 v%d, %d, v%d\nv_add_u32 v%d, %d, v%d" % (vAW + 1, 2 * SLOT1, vAW, vAW + 3, 2 * SLOT1, vAW + 2))
        a("v_lshrrev_b32 v%d, 4, v1" % t)
        a("v_xor_b32 v%d, v%d, v1" % (t, t))
        a("v_and_b32 v%d, 1, v%d" % (t, t))
        a("v_subrev_u32 v%d, 1, v%d" % (t, t))
        for k in range(4): a("v_and_b32 v%d, 0x3f803f80, v%d" % (vONE + k, t))
    def g1_reads(self, g):
        c, ks = g >> 2, g & 3
        slot = c % 3
        hi, so = slot >> 1, (slot & 1) * SLOT1
        B = vFR + 16 * (g & 1)
        X0, X1, W0, W1 = B, B + 4, B + 8, B + 12
        ax = vAX + 2 * hi + (ks >> 1)
        xo = so + 32 * (ks & 1)
        aw = vAW + hi
        t = "g%d" % g
        return [
            ("ds_read_b128 v[%d:%d], v%d offset:%d" % (X0, X0 + 3, ax, xo), t + "a"),
            ("ds_read_b64_tr_b16 v[%d:%d], v%d offset:%d" % (W0, W0 + 1, aw, so + ks * 4096), t + "a"),
            ("ds_read_b64_tr_b16 v[%d:%d], v%d offset:%d" % (W0 + 2, W0 + 3, aw, so + ks * 4096 + 1024), t + "a"),
            ("ds_read_b128 v[%d:%d], v%d offset:%d" % (X1, X1 + 3, ax + 4, xo), t + "b"),
            ("ds_read_b64_tr_b16 v[%d:%d], v%d offset:%d" % (W1, W1 + 1, aw + 2, so + ks * 4096), t + "c"),
            ("ds_read_b64_tr_b16 v[%d:%d], v%d offset:%d" % (W1 + 2, W1 + 3, aw + 2, so + ks * 4096 + 1024), t + "c"),
        ]
    def g1_mfma(self, g, i):
        B = vFR + 16 * (g & 1)
        ws, xs = i >> 1, i & 1
        D = vACC + 16 * i
        C = "0" if g == 0 else "v[%d:%d]" % (D, D + 15)
        self.a("v_mfma_f32_32x32x16_bf16 v[%d:%d], v[%d:%d], v[%d:%d], %s" % (D, D + 15, B + 8 + 4 * ws, B + 11 + 4 * ws, B + 4 * xs, B + 3 + 4 * xs, C))
    def g1_dots(self, g):
        B = vFR + 16 * (g & 1)
        r = []
        if self.o.get("nodots"): return r
        r.append("v_mfma_f32_16x16x32_bf16 v[%d:%d], v[%d:%d], v[%d:%d], %s" % (vRS, vRS + 3, vONE, vONE + 3, B, B + 3, "0" if g == 0 else "v[%d:%d]" % (vRS, vRS + 3)))
        r.append("v_mfma_f32_16x16x32_bf16 v[%d:%d], v[%d:%d], v[%d:%d], %s" % (vCSUM, vCSUM + 3, vONE, vONE + 3, B + 8, B + 11, "0" if g == 0 else "v[%d:%d]" % (vCSUM, vCSUM + 3)))
        return r
    def gemm1(self):
        a = self.a
        a.c("==== GEMM1")
        self.wait_vm("c0"); a("s_barrier")
        self.ts()
        for r, tg in self.g1_reads(0): self.dsop(r, tg)
        for c in range(8):
            if c <= 5:
                dma = self.g1_dma_ops((c + 2) % 3, "c%d" % (c + 2)); self.chunk_soffsets()
                if self.o["w2early"] == 4 and c >= 4: dma = dma + self.w2_dma_ops(2 * (c - 4), 2)
                if self.o["w2early"] == 3 and c in (3, 5): dma = dma + self.w2_dma_ops(c - 3, 2)
            else:
                dma = self.w2_dma_ops(4 * (c - 5))
            early = []
            if c == 7:
                self.wait_vm("w2_3")
                for q in range(4): early += self.rdW(q)
            if c == 1: self.nonce_load()
            for ks in range(4):
                g = 4 * c + ks
                t = "g%d" % g
                nxt = self.g1_reads(g + 1) if g < 31 else []
                dots = self.g1_dots(g)
                if g == 31:
                    self.wait_ds()
                    for d in dots: a(d)
                    self.g1_mfma(g, 0); self.g1_mfma(g, 1)
                    self.g1_sums_out()
                    self.g1_mfma(g, 2); self.g1_mfma(g, 3)
                    continue
                if ks == 3:
                    self.wait_ds()
                    self.wait_vm("c%d" % (c + 1)); a("s_barrier")
                    if self.o.get("g1ts"): self.ts()
                for i in range(4):
                    if i < 3: self.wait_ds(t + "abc"[i])
                    self.g1_mfma(g, i)
                    for r, tg in nxt[2 * i:2 * i + 2]: self.dsop(r, tg)
                    for d in (dots[(i >> 1):(i >> 1) + 1] if (i & 1) == 0 else []): a(d)
                    if ks < 3 and (i < 3 or len(dma) > 3 * (2 - ks)) and dma: dma.pop(0)()
                    if i in (0, 3) or ks == 0:
                        for r, tg in early[:2]: self.dsop(r, tg)
                        early = early[2:]
            assert not dma and not early
    def g1_sums_out(self):
        a = self.a
        t = vT
        a("v_and_b32 v%d, 31, v1" % (t + 2))
        a("v_lshlrev_b32 v%d, 2, v%d" % (t + 2, t + 2))
        a("v_and_b32 v%d, 16, v1" % t)
        a("v_cmp_ne_u32 vcc, 0, v%d" % t)
        a("s_and_b32 s%d, s%d, 1" % (sT0, sWAVE))
        a("s_lshr_b32 s%d, s%d, 1" % (sT1, sWAVE))
        a("s_lshl_b32 s%d, s%d, 1" % (sT2, sT0))
        a("s_add_u32 s%d, s%d, s%d" % (sT2, sT2, sT1))
        a("s_lshl_b32 s%d, s%d, 7" % (sT2, sT2))
        a("s_add_u32 s%d, s%d, %d" % (sT2, sT2, L_SUM))
        a("s_lshl_b32 s%d, s%d, 7" % (sT3, sWAVE))
        a("s_add_u32 s%d, s%d, %d" % (sT3, sT3, L_SUM + 512))
        a("v_cndmask_b32 v%d, v%d, v%d, vcc" % (t, vRS, vRS + 1))
        a("v_cndmask_b32 v%d, v%d, v%d, vcc" % (t + 1, vCSUM, vCSUM + 1))
        a("v_mul_f32 v%d, 0x3b000000, v%d" % (t, t))
        a("v_add_u32 v%d, s%d, v%d" % (t + 4, sT3, t + 2))
        a("v_cvt_pk_bf16_f32 v%d, v%d, v%d" % (t, t, t))
        a("v_add_u32 v%d, s%d, v%d" % (t + 3, sT2, t + 2))
        a("v_and_b32 v%d, 0xffff0000, v%d" % (vMEAN, t))
        self.dsop("ds_write_b32 v%d, v%d" % (t + 4, t + 1))
        self.dsop("ds_write_b32 v%d, v%d" % (t + 3, vMEAN))
        a("v_xor_b32 v%d, 128, v%d" % (t + 3, t + 3))
        a("v_lshrrev_b32 v%d, 5, v1" % (t + 5))
        a("v_lshl_add_u32 v%d, v%d, 4, s%d" % (t + 4, t + 5, sT3))
        a("v_xor_b32 v%d, 128, v%d" % (t + 5, t + 4))
    def g1_epilogue(self):
        a = self.a
        t = vT
        a.c("==== GEMM1 epilogue: h = relu(acc - mean*colsum) in fragment order")
        self.wait_ds()
        a("s_barrier")
        self.dsop("ds_read_b32 v%d, v%d" % (vMEAN + 2, t + 3), "cs0")
        for k in range(8):
            self.dsop("ds_read_b128 v[%d:%d], v%d offset:%d" % (vCS + 4 * k, vCS + 4 * k + 3, t + 4 + (k >> 2), 32 * (k & 3)), "cs%d" % (k >> 1))
        self.ts() if self.o.get("g1ts") else None
        a("s_lshl_b32 s%d, s%d, 1" % (sT3, sMT))
        a("s_add_u32 s%d, s%d, s%d" % (sT3, sT3, sT0))
        a("s_lshl_b32 s%d, s%d, 1" % (sT2, sSL))
        a("s_add_u32 s%d, s%d, s%d" % (sT2, sT2, sT1))
        a("s_mul_i32 s%d, s%d, 28" % (sFLG, sT3))
        a("s_add_u32 s%d, s%d, s%d" % (sFLG, sFLG, sT2))
        a("s_lshl_b32 s%d, s%d, 7" % (sFLG, sFLG))
        a("s_add_u32 s%d, s%d, 0x%x" % (sFLG, sFLG, WS_FH))
        a("s_mul_i32 s%d, s%d, 56" % (sT3, sT3))
        a("s_add_u32 s%d, s%d, s%d" % (sT3, sT3, sT2))
        a("s_lshl_b32 s%d, s%d, 12" % (sT3, sT3))
        a("s_mul_i32 s%d, s%d, %d" % (sT1, sT1, 112 * 1024))
        a("s_lshl_b32 s%d, s%d, 11" % (sT0, sT0))
        a("s_add_u32 s%d, s%d, s%d" % (sH00, sT3, sT1))
        a("s_sub_u32 s%d, s%d, s%d" % (sH00 + 1, sT3, sT1))
        a("s_add_u32 s%d, s%d, %d" % (sH00 + 1, sH00 + 1, 112 * 1024))
        for x in range(2):
            a("s_sub_u32 s%d, s%d, s%d" % (sH00 + 2 + x, sH00 + x, sT0))
            a("s_add_u32 s%d, s%d, 2048" % (sH00 + 2 + x, sH00 + 2 + x))
            a("s_add_u32 s%d, s%d, s%d" % (sH00 + x, sH00 + x, sT0))
        n = 0
        w2 = self.w2_dma_ops(12)[:self.o["epidma"]]
        for ws in range(2):
            for sp in range(2):
                for xs in range(2):
                    D = vACC + 16 * (2 * ws + xs)
                    Q = vFR + 4 * n; n += 1
                    self.wait_ds("cs%d" % (2 * ws + sp))
                    for k in range(4):
                        r = 8 * sp + 2 * k
                        a("v_pk_fma_f32 v[%d:%d], v[%d:%d], v[%d:%d], v[%d:%d] op_sel_hi:[1,0,1] neg_lo:[0,1,0] neg_hi:[0,1,0]" %
                          (D + r, D + r + 1, vCS + 16 * ws + r, vCS + 16 * ws + r + 1, vMEAN + 2 * xs, vMEAN + 2 * xs + 1, D + r, D + r + 1))
                    for k in range(4):
                        r = 8 * sp + 2 * k
                        a("v_cvt_pk_bf16_f32 v%d, v%d, v%d" % (Q + k, D + r, D + r + 1))
                    for k in range(4):
                        a("v_pk_max_i16 v%d, v%d, 0" % (Q + k, Q + k))
                    self.vmem("buffer_store_dwordx4 v[%d:%d], v%d, s[%d:%d], s%d offen offset:%d sc1" %
                              (Q, Q + 3, vH0, SRD_WS, SRD_WS + 3, sH00 + 2 * ws + xs, sp * 1024), "h")
                    for _ in range(-(-self.o["epidma"] // 8)):
                        if w2: w2.pop(0)()
                    if self.o.get("hst"): self.a.lines[-1] = self.a.lines[-1].replace(" sc1", ["", "", " nt"][self.o["hst"]])
    def wreg(self, s):
        return 128 + 8 * (((s if s < 16 else (s & 1)) + 12) % 16)
    def rdW(self, s):
        base = W2BASE[(s >> 2) % 3]
        hi = 1 if base >= 2 * SLOT1 else 0
        o = base - hi * 2 * SLOT1 + (s & 3) * 2048
        R = self.wreg(s)
        return [("ds_read_b64_tr_b16 v[%d:%d], v%d offset:%d" % (R + 4 * dt + 2 * tt, R + 4 * dt + 2 * tt + 1, vA2 + 2 * hi + dt, o + 1024 * tt), "W%d_%d" % (s, dt))
                for dt in range(2) for tt in range(2)]
    def toregs(self, s0, s1):
        for s in range(s0, s1):
            self.wait_vm("w2_%d" % s)
            for r, tg in self.rdW(s): self.dsop(r, tg)
        self.wait_ds()
    def gemm2(self, spare_join):
        a = self.a
        t = vT
        a.c("==== publish h, bring the rest of w2 on chip (k-steps 0..15 end up in registers, 16..27 in LDS)")
        for k in range(self.w2next, 16, 2):
            for f in self.w2_dma_ops(k, 2): f()
        a.label(spare_join)
        self.toregs(4, 8)
        ops = self.w2_dma_ops(16)
        hs = self.o["hsplit"]
        for f in ops[:hs]: f()
        Ls = a.newlabel("nopub")
        a("s_cmp_eq_u32 s%d, 7" % sDB)
        a("s_cbranch_scc1 %s" % Ls)
        save = list(self.vm)
        self.get_nonce()
        self.wait_vm("h")
        self.publish(sFLG, vT)
        self.vm = save
        a.label(Ls)
        self.ts()
        for f in ops[hs:]: f()
        self.toregs(8, 12)
        for f in self.w2_dma_ops(20): f()
        self.toregs(12, 16)
        for f in self.w2_dma_ops(24): f()
        a("v_min_u32 v%d, 6, v1" % t)
        a("v_lshlrev_b32 v%d, 7, v%d" % (t, t))
        a("s_mul_i32 s%d, s%d, 28" % (sT3, sMB))
        a("s_mul_i32 s%d, s%d, 7" % (sT2, sWAVE))
        a("s_add_u32 s%d, s%d, s%d" % (sT3, sT3, sT2))
        a("s_lshl_b32 s%d, s%d, 7" % (sT3, sT3))
        a("s_add_u32 s%d, s%d, 0x%x" % (sT3, sT3, WS_FH))
        self.ts()
        self.poll("buffer_load_dword v%d, v%d, s[%d:%d], s%d offen sc1" % (vFL, t, SRD_WS, SRD_WS + 3, sT3), sleep=self.o["hsleep"])
        self.ts()
        a.c("==== GEMM2")
        AH = self.o["ah"]
        free = [24 + 8 * k for k in range(5)]
        hslot = {}
        def hreg(s):
            if s not in hslot:
                ok = [r for r in free if not (r in (self.wreg(0), self.wreg(1)) and s >= 15) and not (r in (128, 136) and s >= 20)]
                hslot[s] = ok[0]; free.remove(ok[0])
            return hslot[s]
        def ldH(s):
            R = hreg(s)
            fl = ["sc1", "", "nt", "sc0 sc1"][self.o.get("hfl", 0)]
            self.vmem("buffer_load_dwordx4 v[%d:%d], v%d, s[%d:%d], s%d offen %s" % (R, R + 3, vH0, SRD_WS, SRD_WS + 3, sHA, fl), "h%d" % s)
            self.vmem("buffer_load_dwordx4 v[%d:%d], v%d, s[%d:%d], s%d offen %s" % (R + 4, R + 7, vH1, SRD_WS, SRD_WS + 3, sHA, fl), "h%d" % s)
            if s < 27 or self.o.get("twice"):
                a("s_add_u32 s%d, s%d, 1024" % (sHA, sHA))
                a("s_cmp_eq_u32 s%d, s%d" % (sHA, sHB))
                a("s_cselect_b32 s%d, s%d, s%d" % (sHA, sHZ, sHA))
        nxtH = 5
        for s in range(5): ldH(s)
        for s in range(28):
            R = hreg(s)
            Wr = self.wreg(s)
            nxt = self.rdW(s + 1) if 16 <= s + 1 < 28 else []
            self.wait_vm("h%d" % s)
            if self.o.get("g2ts") and s % 4 == 0: self.ts()
            for i in range(4):
                dt, tt = i >> 1, i & 1
                if tt == 0: self.wait_ds("W%d_%d" % (s, dt))
                D = vACC + 16 * i
                if not self.o.get("nog2m"): a("v_mfma_f32_32x32x16_bf16 v[%d:%d], v[%d:%d], v[%d:%d], %s" % (D, D + 15, Wr + 4 * dt, Wr + 4 * dt + 3, R + 4 * tt, R + 4 * tt + 3,
                                                                              "0" if s == 0 else "v[%d:%d]" % (D, D + 15)))
                if i < 2:
                    for r, tg in nxt[2 * i:2 * i + 2]: self.dsop(r, tg)
            if s == self.o["mark"]:
                a("v_mov_b32 v%d, %d\nv_mov_b32 v%d, 1" % (t, L_CNT + 12, t + 1))
                self.dsop("ds_write_b32 v%d, v%d" % (t, t + 1))
            free.append(R)
            if s < 16: free.append(self.wreg(s))
            for _ in range(2):
                if nxtH < 28 and nxtH - s <= AH:
                    ldH(nxtH); nxtH += 1
            if s == 20:
                a("v_and_b32 v%d, 31, v1" % t)
                a("v_lshrrev_b32 v%d, 5, v1" % (t + 1))
                a("v_and_b32 v%d, 15, v1" % (t + 2))
                a("v_xor_b32 v%d, v%d, v%d" % (t + 1, t + 1, t + 2))
                a("v_lshlrev_b32 v%d, 4, v%d" % (t + 1, t + 1))
                a("v_lshl_add_u32 v%d, v%d, 8, v%d" % (t + 1, t, t + 1))
                a("s_lshl_b32 s%d, s%d, 13" % (sT3, sWAVE))
                a("v_add_u32 v%d, s%d, v%d" % (128, sT3, t + 1))
                for k in range(1, 8): a("v_xor_b32 v%d, %d, v%d" % (128 + k, 32 * k, 128))
                for k in range(8): a("v_add_u32 v%d, %d, v%d" % (136 + k, W2BASE[1], 128 + k))
        self.ts()
        a("s_nop 7")
        for i in range(4):
            dt, tt = i >> 1, i & 1
            for g in range(4):
                D = vACC + 16 * i + 4 * g
                self.dsop("ds_write_b128 v%d, v[%d:%d] offset:%d" % (128 + 8 * tt + 4 * dt + g, D, D + 3, 0))
        self.wait_ds()
        a("s_barrier")
        self.ts()

    def spare_loads(self):
        a = self.a
        a.c("==== spare workgroup: 64 rows of x into LDS (row r at r*1040; wave loads rows 16w..16w+15)")
        if self.o["ctouch"]: self.code_touch()
        a("v_lshlrev_b32 v%d, 4, v1" % vDX)
        a("s_lshl_b32 s%d, s%d, 1" % (sT0, sMT))
        a("s_add_u32 s%d, s%d, s%d" % (sT0, sT0, sJ))
        a("s_mov_b32 s%d, s%d" % (sSL, sT0))
        a("s_lshl_b32 s%d, s%d, 16" % (sT0, sT0))
        a("s_lshl_b32 s%d, s%d, 14" % (sT1, sWAVE))
        a("s_add_u32 s%d, s%d, s%d" % (sT0, sT0, sT1))
        a("s_mul_i32 s%d, s%d, %d" % (sT1, sWAVE, 16 * LNROW))
        for i in range(16):
            a("s_add_u32 m0, s%d, %d" % (sT1, i * LNROW))
            a("s_add_u32 s%d, s%d, %d" % (sT2, sT0, i * 1024))
            self.vmem("buffer_load_dwordx4 v%d, s[%d:%d], s%d offen lds" % (vDX, SRD_X, SRD_X + 3, sT2), "ln")
    def w2_touch(self):
        a = self.a
        a("v_lshlrev_b32 v%d, 7, v1" % (vDX + 1))
        a("s_mul_i32 s%d, s%d, %d" % (sT0, sSL, 56 * 1024))
        a("s_lshl_b32 s%d, s%d, 14" % (sT1, sWAVE))
        a("s_add_u32 s%d, s%d, s%d" % (sT0, sT0, sT1))
        a("s_add_u32 s%d, s%d, 8192" % (sT1, sT0))
        a("s_cmp_eq_u32 s%d, 3" % sWAVE)
        a("s_cselect_b32 s%d, 0x7ff00000, s%d" % (sT1, sT1))
        self.vmem("buffer_load_dword v%d, v%d, s[%d:%d], s%d offen" % (vDX + 2, vDX + 1, SRD_W2, SRD_W2 + 3, sT0), "wt")
        self.vmem("buffer_load_dword v%d, v%d, s[%d:%d], s%d offen" % (vDX + 3, vDX + 1, SRD_W2, SRD_W2 + 3, sT1), "wt")
    def code_touch(self):
        a = self.a
        a("s_getpc_b64 s[%d:%d]" % (SRD_W1, SRD_W1 + 1))
        a.label("L_PCREF")
        a("s_sub_u32 s%d, s%d, L_PCREF - %s" % (SRD_W1, SRD_W1, NAME))
        a("s_subb_u32 s%d, s%d, 0" % (SRD_W1 + 1, SRD_W1 + 1))
        a("s_mov_b32 s%d, L_CODE_END - %s" % (SRD_W1 + 2, NAME))
        a("s_mov_b32 s%d, 0x20000" % (SRD_W1 + 3))
        a("v_lshlrev_b32 v%d, 7, v1" % (vT + 6))
        a("s_lshr_b32 s%d, s2, 6" % sT0)
        a("s_lshl_b32 s%d, s%d, 13" % (sT0, sT0))
        a("s_cmp_eq_u32 s%d, 0" % sWAVE)
        a("s_cselect_b32 s%d, s%d, 0x7ff00000" % (sT0, sT0))
        a("buffer_load_dword v%d, v%d, s[%d:%d], s%d offen" % (vT + 5, vT + 6, SRD_W1, SRD_W1 + 3, sT0))
    def spare_path(self):
        a = self.a
        t = vT
        a.c("==== spare workgroup: statistics and transposed rows")
        if self.o["wtouch"]: self.w2_touch()
        a("v_and_b32 v%d, 15, v1" % t)
        a("v_lshrrev_b32 v%d, 4, v1" % (t + 1))
        a("v_lshl_add_u32 v%d, v%d, 2, v%d" % (t + 2, t, t + 1))
        a("v_mul_u32_u24 v%d, %d, v%d" % (t + 3, LNROW, t + 2))
        a("s_lshl_b32 s%d, s%d, 8" % (sT2, sWAVE))
        a("v_add_u32 v%d, s%d, v%d" % (t + 3, sT2, t + 3))
        a("v_mov_b32 v%d, 0\nv_mov_b32 v%d, 0" % (vRS, (vRS + 1)))
        a("s_mov_b32 s%d, 0x3f803f80" % sONES)
        self.wait_ds()
        if self.o["bv"]: a("s_barrier")
        self.wait_vm("ln"); a("s_barrier")
        self.ts()
        self.nonce_load()
        X = vACC
        for k in range(16): self.dsop("ds_read_b128 v[%d:%d], v%d offset:%d" % (X + 4 * k, X + 4 * k + 3, t + 3, 16 * k), "x%d" % k)
        a("v_lshlrev_b32 v%d, 13, v%d" % (t + 1, t + 1))
        a("v_lshl_add_u32 v%d, v%d, 4, v%d" % (t + 1, t, t + 1))
        a("s_lshl_b32 s%d, s%d, 19" % (sT0, sWAVE))
        a("s_lshl_b32 s%d, s%d, 8" % (sT1, sSL))
        a("s_add_u32 s%d, s%d, s%d" % (sT0, sT0, sT1))
        a("s_add_u32 s%d, s%d, 0x%x" % (sT0, sT0, WS_XN))
        for k in range(16):
            R = X + 4 * k
            self.wait_ds("x%d" % k)
            for q in range(4):
                a("v_dot2_f32_bf16 v%d, v%d, s%d, v%d" % (vRS, R + q, sONES, vRS))
                a("v_dot2_f32_bf16 v%d, v%d, v%d, v%d" % (vRS + 1, R + q, R + q, vRS + 1))
            a("v_permlane32_swap_b32 v%d, v%d" % (R, R + 2))
            a("v_permlane32_swap_b32 v%d, v%d" % (R + 1, R + 3))
            if k: a("s_add_u32 s%d, s%d, 32768" % (sT0, sT0))
            a("s_nop %d" % (0 if k else 1))
            a("v_permlane16_swap_b32 v%d, v%d" % (R, R + 1))
            a("v_permlane16_swap_b32 v%d, v%d" % (R + 2, R + 3))
            self.vmem("buffer_store_dwordx4 v[%d:%d], v%d, s[%d:%d], s%d offen sc1" % (R, R + 3, t + 1, SRD_WS, SRD_WS + 3, sT0), "lnst")
        a("v_lshlrev_b32 v%d, 3, v1" % (t + 4))
        a("s_lshl_b32 s%d, s%d, 9" % (sT2, sWAVE))
        a("s_add_u32 s%d, s%d, %d" % (sT2, sT2, L_LNS))
        a("v_add_u32 v%d, s%d, v%d" % (t + 5, sT2, t + 4))
        a("v_add_u32 v%d, %d, v%d" % (t + 4, L_LNS, t + 4))
        self.dsop("ds_write_b64 v%d, v[%d:%d]" % (t + 5, vRS, vRS + 1))
        self.wait_ds()
        a("s_barrier")
        self.ts()
        P = vFR
        for k in range(4): self.dsop("ds_read_b64 v[%d:%d], v%d offset:%d" % (P + 2 * k, P + 2 * k + 1, t + 4, 512 * k))
        self.wait_ds()
        a("v_pk_add_f32 v[%d:%d], v[%d:%d], v[%d:%d]" % (P, P + 1, P, P + 1, P + 2, P + 3))
        a("v_pk_add_f32 v[%d:%d], v[%d:%d], v[%d:%d]" % (P + 4, P + 5, P + 4, P + 5, P + 6, P + 7))
        a("v_pk_add_f32 v[%d:%d], v[%d:%d], v[%d:%d]" % (P, P + 1, P, P + 1, P + 4, P + 5))
        a("v_mul_f32 v%d, 0x3b000000, v%d\nv_mul_f32 v%d, 0x3b000000, v%d" % (P, P, P + 1, P + 1))
        a("v_fma_f32 v%d, -v%d, v%d, v%d" % (P + 1, P, P, P + 1))
        a("v_max_f32 v%d, 0, v%d" % (P + 1, P + 1))
        a("v_cvt_pk_bf16_f32 v%d, v%d, v%d" % (P + 2, P, P + 1))
        a("v_and_b32 v%d, 0xffff0000, v%d" % (P + 1, P + 2))
        a("v_add_f32 v%d, 0x3727c5ac, v%d" % (P + 1, P + 1))
        a("v_cvt_pk_bf16_f32 v%d, v%d, v%d" % (P + 1, P + 1, P + 1))
        a("v_and_b32 v%d, 0xffff0000, v%d" % (P + 1, P + 1))
        a("v_sqrt_f32 v%d, v%d" % (P + 1, P + 1))
        a("v_lshlrev_b32 v%d, 16, v%d" % (P, P + 2))
        a("v_cvt_pk_bf16_f32 v%d, v%d, v%d" % (P + 3, P, P + 1))
        a("v_lshlrev_b32 v%d, 2, v%d" % (t + 2, t + 2))
        a("s_lshl_b32 s%d, s%d, 8" % (sT2, sSL))
        a("s_add_u32 s%d, s%d, 0x%x" % (sT2, sT2, WS_ST))
        a("s_cmp_eq_u32 s%d, 0" % sWAVE)
        a("s_cselect_b32 s%d, s%d, 0x7ff00000" % (sT2, sT2))
        self.vmem("buffer_store_dword v%d, v%d, s[%d:%d], s%d offen sc1" % (P + 3, t + 2, SRD_WS, SRD_WS + 3, sT2), "lnst")
        self.get_nonce()
        self.wait_vm()
        self.ts()
        a("s_barrier")
        L = a.newlabel("noX")
        a("s_cmp_lg_u32 s%d, 0" % sWAVE)
        a("s_cbranch_scc1 %s" % L)
        a("v_lshlrev_b32 v%d, 7, v1" % t)
        a("v_mov_b32 v%d, s%d" % (t + 1, sNONCE))
        a("s_lshl_b32 s%d, s%d, 2" % (sT0, sSL))
        a("s_add_u32 s%d, s%d, 0x%x" % (sT0, sT0, WS_FX))
        a("s_mov_b64 exec, 0xff")
        a("buffer_store_dword v%d, v%d, s[%d:%d], s%d offen sc1" % (t + 1, t, SRD_WS, SRD_WS + 3, sT0))
        a("s_mov_b64 exec, -1")
        a.label(L)
        self.ts()
        for k in range(6): a("s_barrier")
        for k in range(0, 12, 4):
            for f in self.w2_dma_ops(k): f()
        self.toregs(0, 4)
        for f in self.w2_dma_ops(12): f()
        self.wait_vm()

    def cmul(self, d, x, y):
        a = self.a
        if not (self.o.get("pkc") == 2 or (self.o.get("pkc") == 1 and self.nb == 0)):
            a("v_mul_f32 v%d, v%d, v%d\nv_mul_f32 v%d, v%d, v%d" % (d, x, y, d + 1, x, y + 1))
            a("v_fma_f32 v%d, -v%d, v%d, v%d\nv_fmac_f32 v%d, v%d, v%d" % (d, x + 1, y + 1, d, d + 1, x + 1, y))
            return
        a("v_pk_mul_f32 v[%d:%d], v[%d:%d], v[%d:%d] op_sel_hi:[0,1]" % (d, d + 1, x, x + 1, y, y + 1))
        a("v_pk_fma_f32 v[%d:%d], v[%d:%d], v[%d:%d], v[%d:%d] op_sel:[1,1,0] op_sel_hi:[1,0,1] neg_lo:[0,1,0]" % (d, d + 1, x, x + 1, y, y + 1, d, d + 1))
    def k_poles(self, sidx, evals, full):
        a = self.a
        t = vT
        a("s_waitcnt lgkmcnt(0)"); self.ds = []
        a("s_lshr_b32 s%d, s%d, 1" % (sT1, sidx))
        a("s_lshl_b32 s%d, s%d, 4" % (sT1, sT1))
        a("s_lshr_b32 s%d, s%d, s%d" % (sT2, sLDT, sT1))
        a("s_lshl_b32 s%d, s%d, 16" % (sT2, sT2))
        if full:
            a("s_lshr_b32 s%d, s%d, s%d" % (sDSK, sDSK, sT1))
            a("s_lshl_b32 s%d, s%d, 16" % (sDSK, sDSK))
        a("v_mov_b32 v%d, 0x3fb8aa3b" % t)
        a("v_mul_f32 v%d, s%d, v%d" % (t, sT2, t))
        a("v_exp_f32 v%d, v%d" % (t, t))
        a("s_nop 0")
        a("v_cvt_pk_bf16_f32 v%d, v%d, v%d" % (t, t, t))
        a("v_and_b32 v%d, 0xffff0000, v%d" % (t, t))
        self.wait_vm("par")
        if full: self.ts()
        for k in range(4): a("v_mul_f32 v%d, v%d, v%d" % (vPAR + k, t, vPAR + k))
        a("v_mul_f32 v%d, 0x3fb8aa3b, v%d" % (vPAR, vPAR))
        a("v_mul_f32 v%d, 0.15915494, v%d" % (vPAR + 1, vPAR + 1))
        for Z, sc in evals:
            if sc:
                a("v_mul_f32 v%d, %s, v%d\nv_mul_f32 v%d, %s, v%d" % (t, sc, vPAR, t + 1, sc, vPAR + 1))
                e, p = t, t + 1
            else: e, p = vPAR, vPAR + 1
            a("v_fract_f32 v%d, v%d" % (t + 1, p))
            a("v_exp_f32 v%d, v%d" % (t, e))
            a("v_cos_f32 v%d, v%d" % (Z, t + 1))
            a("v_sin_f32 v%d, v%d" % (Z + 1, t + 1))
            a("s_nop 0")
            a("v_pk_mul_f32 v[%d:%d], v[%d:%d], v[%d:%d] op_sel_hi:[1,0]" % (Z, Z + 1, Z, Z + 1, t, t + 1))
    def f_vrows(self):
        a = self.a
        a.c("---- V rows and far rows of the kernel-generation table")
        AD, Z8, Z16, Z256, ZK, VV, PK, W = 64, 80, 82, 84, 86, 90, 94, 100
        a("s_lshl_b32 s%d, s%d, 12" % (sT3, sWAVE))
        a("s_add_u32 s%d, s%d, %d" % (sT3, sT3, L_TAB))
        a("v_lshl_add_u32 v%d, v1, 2, s%d" % (AD, sT3))
        for k in range(1, 16): a("v_xor_b32 v%d, %d, v%d" % (AD + k, 16 * k, AD))
        AU = 112
        a("s_mul_i32 s%d, s%d, %d" % (sT3, sWAVE, TABW - 4096))
        a("s_add_u32 s%d, s%d, %d" % (sT3, sT3, L_TABU - L_TAB))
        for k in range(12): a("v_add_u32 v%d, s%d, v%d" % (AU + k, sT3, AD + ((51 + k) & 15)))
        self.k_poles(sWAVE, ((Z8, "0x41000000"), (Z256, "0x43800000")), False)
        save = self.o.get("pkc"); self.o["pkc"] = 2
        self.cmul(Z16, Z8, Z8)
        self.cmul(ZK + 2, Z256, Z256)
        self.cmul(W, vPAR + 4, vPAR + 2)
        self.cmul(ZK, ZK + 2, ZK + 2)
        self.cmul(W + 2, W, Z8)
        a("v_mov_b32 v%d, 0x3f80" % PK)
        a("v_cvt_pk_bf16_f32 v%d, v%d, -v%d" % (PK + 1, Z16, Z16 + 1))
        self.cmul(W + 4, W + 2, Z8)
        self.dsop("ds_write_b32 v%d, v%d" % (AD, PK))
        pend = ["ds_write_b32 v%d, v%d offset:256" % (AD + 1, PK + 1)]
        prev = Z16
        for r in range(2, 16):
            cur = VV + 2 * (r & 1)
            self.cmul(cur, prev, Z16); prev = cur
            far = r - 2
            if far < 12:
                T, n = far // 3, far % 3
                src, dst = W + 6 * (T & 1) + 2 * n, W + 6 * ((T + 1) & 1) + 2 * n
                self.cmul(dst, src, ZK if T == 0 else Z256)
            while pend: self.dsop(pend.pop(0))
            p = PK + 2 * (r & 1)
            a("v_cvt_pk_bf16_f32 v%d, v%d, -v%d" % (p, cur, cur + 1))
            pend.append("ds_write_b32 v%d, v%d offset:%d" % (AD + r, p, 256 * r))
            if far < 12:
                a("v_cvt_pk_bf16_f32 v%d, v%d, v%d" % (p + 1, dst, dst + 1))
                pend.append("ds_write_b32 v%d, v%d offset:%d" % (AU + far, p + 1, 256 * (51 + far)))
        a("s_nop 0")
        while pend: self.dsop(pend.pop(0))
        self.o["pkc"] = save
    def s_bar_maybe(self, force=False):
        q = self.o["quota0"] if self.nb == 0 else self.o["quota"]
        if force or (self.ninstr() - self.lastb >= q and self.nb < self.nb_cap):
            self.a("s_barrier"); self.nb += 1; self.lastb = self.ninstr()
            k = self.nb - 1 - self.o["l2first"]
            if self.o["l2pf"] and 0 <= k < 7: self.l2_touch()

            if self.o.get("sts"): self.ts()
    def l2_touch(self):
        a = self.a
        self.vmem("buffer_load_dword v17, v16, s[%d:%d], s%d offen" % (SRD_W2, SRD_W2 + 3, sW2A), "l2")
        a("s_add_u32 s%d, s%d, 8192" % (sW2A, sW2A))
        a("s_cmp_eq_u32 s%d, s%d" % (sW2A, sW2B))
        a("s_cselect_b32 s%d, s%d, s%d" % (sW2A, sW2Z, sW2A))
    def s_entry(self):
        a = self.a
        t = vT
        a.label("L_SWAVE")
        a("s_sub_u32 s%d, s%d, 4" % (sSL, sWAVE))
        a("s_setprio %d" % self.o["sprio0"])
        self.srds(["dbg"])
        self.tag_store()
        self.srds(["ws", "x", "out", "w2"])
        if self.o["l2pf"]:
            a("v_lshlrev_b32 v16, 7, v1")
            a("s_lshr_b32 s%d, s2, 3" % sW2Z)
            a("s_mul_i32 s%d, s%d, %d" % (sW2Z, sW2Z, 56 * 1024))
            a("s_cmp_eq_u32 s%d, 3" % sSL)
            a("s_cselect_b32 s%d, s%d, 0x7ff00000" % (sW2Z, sW2Z))
            a("s_add_u32 s%d, s%d, %d" % (sW2B, sW2Z, 56 * 1024))
            a("s_and_b32 s%d, s2, 7" % sW2A)
            a("s_min_u32 s%d, s%d, 6" % (sW2A, sW2A))
            a("s_lshl_b32 s%d, s%d, 13" % (sW2A, sW2A))
            a("s_add_u32 s%d, s%d, s%d" % (sW2A, sW2A, sW2Z))
        if self.o["colpf"] >= 0:
            a("v_lshlrev_b32 v16, 10, v1")
            a("s_lshr_b32 s%d, s2, 6" % sW2A)
            a("s_mul_i32 s%d, s%d, %d" % (sW2A, sW2A, 448 * 1024))
            a("s_add_u32 s%d, s%d, %d" % (sW2A, sW2A, 128 * self.o["colpf"]))
            a("s_lshl_b32 s%d, s%d, 2" % (sT0, sDB))
            a("s_add_u32 s%d, s%d, s%d" % (sT0, sT0, sSL))
            a("s_cmp_eq_u32 s%d, 31" % sT0)
            a("s_cselect_b32 s%d, s%d, 0x7ff00000" % (sW2A, sW2A))
        a("v_mov_b32 v22, %d\nv_mov_b32 v23, 1" % L_CNT)
        a("s_waitcnt lgkmcnt(0)")
    def kgen(self):
        a = self.a
        a.c("==== kernel generation: K[l] = Re sum_n CB_n z_n^bf16(l)")
        self.nb, self.nb_cap, self.lastb = 0, 0, self.ninstr()
        AD = 128
        Z1, Z256 = 144, 148
        WR, VV, PK = 152, 186, 190
        KA, AA, BF, AF = 64, 96, 196, 212
        t = vT
        a("s_mul_i32 s%d, s%d, %d" % (sC, sSL, TABW))
        a("s_add_u32 s%d, s%d, %d" % (sC, sC, L_TABU))
        a("v_lshl_add_u32 v%d, v1, 2, s%d" % (AD, sC))
        for k in range(1, 16): a("v_xor_b32 v%d, %d, v%d" % (AD + k, 16 * k, AD))
        base = {0: 16, 1: 32, 2: 41, 3: 46}
        kk = [0, 1, 2, 2]
        a("v_and_b32 v%d, 15, v1" % t)
        a("v_lshrrev_b32 v%d, 4, v1" % (t + 1))
        def addr(dst, rowreg):
            a("v_and_b32 v%d, 15, v%d" % (t + 5, rowreg))
            a("v_xor_b32 v%d, v%d, v%d" % (t + 5, t + 5, t + 1))
            a("v_lshlrev_b32 v%d, 4, v%d" % (t + 5, t + 5))
            a("v_lshl_add_u32 v%d, v%d, 8, v%d" % (t + 5, rowreg, t + 5))
            a("v_add_u32 v%d, s%d, v%d" % (dst, sC, t + 5))
        addr(AA + 1, t)
        a("s_lshl_b32 s%d, s%d, 12" % (sT2, sSL))
        a("s_add_u32 s%d, s%d, %d" % (sT2, sT2, L_TAB))
        a("v_add_u32 v%d, s%d, v%d" % (AA, sT2, t + 5))
        a("v_add_u32 v%d, 4096, v%d" % (AA + 1, AA + 1))
        a("v_bfe_u32 v%d, v%d, 1, 1" % (t + 2, t))
        a("v_add_u32 v%d, v%d, v%d" % (t + 2, t + 2, t))
        a("v_lshrrev_b32 v%d, 1, v%d" % (t + 2, t + 2))
        a("v_add_u32 v%d, 32, v%d" % (t + 3, t + 2))
        addr(AA + 2, t + 3)
        a("v_and_b32 v%d, 3, v1" % (t + 2))
        a("v_min_u32 v%d, 2, v%d" % (t + 2, t + 2))
        a("v_bfe_u32 v%d, v1, 2, 1" % (t + 3))
        a("v_lshl_add_u32 v%d, v%d, 1, v%d" % (t + 3, t + 3, t + 2))
        a("v_bfe_u32 v%d, v1, 3, 1" % (t + 4))
        a("v_mul_u32_u24 v%d, 5, v%d" % (t + 4, t + 4))
        a("v_add3_u32 v%d, v%d, v%d, 41" % (t + 3, t + 3, t + 4))
        addr(AA + 3, t + 3)
        a("v_bfe_u32 v%d, v1, 2, 2" % (t + 3))
        a("v_mul_u32_u24 v%d, 3, v%d" % (t + 3, t + 3))
        a("v_add3_u32 v%d, v%d, v%d, 51" % (t + 3, t + 3, t + 2))
        addr(AA + 4, t + 3)
        XA, W = 106, 116
        a("s_and_b32 s%d, s%d, 1" % (sJ, sSL))
        a("v_lshl_add_u32 v%d, v1, 4, s%d" % (XA, sT2))
        a("s_xor_b32 s%d, s%d, 1" % (sT2, sSL))
        a("s_lshl_b32 s%d, s%d, 12" % (sT2, sT2))
        a("s_add_u32 s%d, s%d, %d" % (sT2, sT2, L_TAB))
        a("v_lshl_add_u32 v%d, v1, 4, s%d" % (XA + 1, sT2))
        for k in range(4): a("v_mov_b32 v%d, 0" % (W + k))
        a("v_and_b32 v%d, 31, v1" % (XA + 4))
        a("v_lshlrev_b32 v%d, 4, v%d" % (XA + 4, XA + 4))
        a("v_add_u32 v%d, %d, v%d" % (XA + 4, L_U, XA + 4))
        a("v_min_u32 v%d, 8, v1" % (XA + 5))
        a("v_lshlrev_b32 v%d, 2, v%d" % (XA + 5, XA + 5))
        a("s_lshr_b32 s%d, s%d, 1" % (sT2, sSL))
        a("s_mul_i32 s%d, s%d, 8320" % (sT2, sT2))
        a("s_add_u32 s%d, s%d, %d" % (sT2, sT2, L_K))
        a("v_add_u32 v%d, s%d, v%d" % (XA + 5, sT2, XA + 5))
        a("s_lshl_b32 s%d, s%d, 9" % (sT3, sJ))
        a("s_sub_u32 s%d, s%d, s%d" % (sT3, sT2, sT3))
        a("s_add_u32 s%d, s%d, 4088" % (sT3, sT3))
        a("v_lshlrev_b32 v%d, 5, v%d" % (t + 2, t))
        a("v_lshl_add_u32 v%d, v%d, 3, v%d" % (XA + 2, t + 1, t + 2))
        a("v_sub_u32 v%d, s%d, v%d" % (XA + 2, sT3, XA + 2))
        a("v_add_u32 v%d, 4158, v%d" % (XA + 6, XA + 2))
        a("s_lshl_b32 s%d, s%d, 6" % (sT3, sJ))
        a("s_sub_u32 s%d, s%d, 1" % (sT3, sT3))
        a("s_add_u32 s%d, s%d, 4144" % (sT1, sT2))
        a("v_mov_b32 v%d, s%d" % (t + 3, sT1))
        a("v_cmp_eq_u32 vcc, s%d, v1" % sT3)
        a("v_lshrrev_b32 v%d, s%d, v%d" % (t + 4, sJ, t + 1))
        a("v_lshl_add_u32 v%d, v%d, 9, v%d" % (t + 2, t + 4, t + 2))
        a("v_cndmask_b32 v%d, v%d, v%d, vcc" % (XA + 6, XA + 6, t + 3))
        a("v_and_b32 v%d, s%d, v%d" % (t + 4, sJ, t + 1))
        a("v_lshl_add_u32 v%d, v%d, 4, v%d" % (t + 2, t + 4, t + 2))
        a("s_mul_i32 s%d, s%d, 1040" % (sT3, sJ))
        a("s_add_u32 s%d, s%d, s%d" % (sT3, sT3, sT2))
        a("s_add_u32 s%d, s%d, 2016" % (sT3, sT3))
        a("v_sub_u32 v%d, s%d, v%d" % (XA + 3, sT3, t + 2))
        self.k_poles(sSL, ((Z1, None), (Z256, "0x43800000")), True)
        self.cmul(WR, vPAR + 4, vPAR + 2)
        self.nonce_load()
        pend = []
        for r in range(17):
            if r: self.cmul(WR + 2 * r, WR + 2 * (r - 1), Z1)
            if pend: self.dsop(pend.pop(0))
            if r < 16:
                p = PK + (r & 1)
                a("v_cvt_pk_bf16_f32 v%d, v%d, v%d" % (p, WR + 2 * r, WR + 2 * r + 1))
                pend.append("ds_write_b32 v%d, v%d offset:%d" % (AD + r, p, (16 + r) * 256))
        loc = {r: WR + 2 * r for r in range(17)}
        npk = 0
        for T in range(1, 4):
            for n, r in enumerate(range(0, 17, 1 << kk[T])):
                alt = (WR + 2 * (r + 1)) if r < 16 else VV
                dst = alt if loc[r] == WR + 2 * r else WR + 2 * r
                self.cmul(dst, loc[r], Z256); loc[r] = dst
                if pend: self.dsop(pend.pop(0))
                p = PK + (npk & 1); npk += 1
                a("v_cvt_pk_bf16_f32 v%d, v%d, v%d" % (p, dst, dst + 1))
                pend.append("ds_write_b32 v%d, v%d offset:%d" % (AD + ((base[T] + n) & 15), p, (base[T] + n) * 256))
        for ks in range(1, 4): a("v_xor_b32 v%d, %d, v%d" % (t + 1 + ks, 64 * ks, AA))
        self.dsop(pend.pop(0))
        self.wait_ds()
        if self.o.get("fine"): self.ts()
        if self.o["bv"]: a("s_barrier")
        else: self.s_bar_maybe(force=True)
        a("s_setprio %d" % self.o["sprio1"])
        seq = [(T, ks) for ks in range(4) for T in range(4)]
        NA = 11
        def rd(n):
            T, ks = seq[n]
            r = AA + 1 + T
            if T == 0: self.dsop("ds_read_b128 v[%d:%d], v%d" % (BF + 4 * ks, BF + 4 * ks + 3, t + 1 + ks if ks else AA))
            if ks: a("v_xor_b32 v%d, %d, v%d" % (r, 64 * (ks ^ (ks - 1)), r))
            k = AF + 4 * (n % NA)
            self.dsop("ds_read_b128 v[%d:%d], v%d" % (k, k + 3, r), "ka%d" % n)
        for n in range(NA): rd(n)
        for n in range(16):
            T, ks = seq[n]
            self.wait_ds("ka%d" % n)
            D = KA + 4 * T
            k = AF + 4 * (n % NA)
            a("v_mfma_f32_16x16x32_bf16 v[%d:%d], v[%d:%d], v[%d:%d], %s" % (D, D + 3, k, k + 3, BF + 4 * ks, BF + 4 * ks + 3,
                                                                          "0" if ks == 0 else "v[%d:%d]" % (D, D + 3)))
            if n + NA < 16: rd(n + NA)
        Lh, Lj = a.newlabel("khi"), a.newlabel("kj")
        self.colpf(0, self.o['col1'])
        a("s_cmp_lg_u32 s%d, 0" % sJ)
        a("s_nop 4")
        a("s_cbranch_scc1 %s" % Lh)
        for k in range(2): a("ds_write_b128 v%d, v[%d:%d] offset:%d" % (XA, KA + 4 + 4 * k, KA + 7 + 4 * k, 1024 * k))
        for k in range(4): a("v_mov_b32 v%d, v%d" % (KA + 4 + k + 16, KA + 12 + k))
        for k in range(4): a("v_mov_b32 v%d, v%d" % (KA + k + 16, KA + k))
        a("s_branch %s" % Lj)
        a.label(Lh)
        for k in range(2): a("ds_write_b128 v%d, v[%d:%d] offset:%d" % (XA, KA + 12 * k, KA + 3 + 12 * k, 1024 * k))
        for k in range(8): a("v_mov_b32 v%d, v%d" % (KA + k + 16, KA + 4 + k))
        a.label(Lj)
        a("s_waitcnt lgkmcnt(0)"); self.ds = []
        if self.o.get("fine"): self.ts()
        self.s_bar_maybe(force=True)
        for k in range(2): self.dsop("ds_read_b128 v[%d:%d], v%d offset:%d" % (KA + 4 * k, KA + 3 + 4 * k, XA + 1, 1024 * k))
        self.dsop("ds_write_b32 v%d, v%d offset:4096" % (XA + 5, W))
        Lz = a.newlabel("kz")
        a("s_cmp_lg_u32 s%d, 0" % sJ)
        a("s_cbranch_scc1 %s" % Lz)
        a("ds_write_b32 v%d, v%d offset:%d" % (XA + 5, W, 4160 + 4092))
        a.label(Lz)
        self.get_nonce()
        a("s_waitcnt lgkmcnt(0)"); self.ds = []
        for k in range(8): a("v_add_f32 v%d, v%d, v%d" % (KA + k, KA + k, KA + 16 + k))
        Q = AF
        a("v_cvt_pk_bf16_f32 v%d, v%d, v%d" % (Q, KA + 3, KA + 2))
        a("v_cvt_pk_bf16_f32 v%d, v%d, v%d" % (Q + 1, KA + 1, KA))
        a("v_cvt_pk_bf16_f32 v%d, v%d, v%d" % (Q + 2, KA + 2, KA + 1))
        if self.o["kwper"] == 1: self.s_bar_maybe(force=True)
        self.dsop("ds_write_b64 v%d, v[%d:%d]" % (XA + 2, Q, Q + 1))
        self.dsop("ds_write_b32 v%d, v%d offset:4160" % (XA + 2, Q + 2))
        self.dsop("ds_write_b16_d16_hi v%d, v%d offset:4164" % (XA + 2, Q + 1))
        self.dsop("ds_write_b16 v%d, v%d" % (XA + 6, Q))
        if self.o["kwper"] <= 2: self.s_bar_maybe(force=True)
        va, vb, vc = KA + 4, KA + 5, KA + 6
        Lh, Lj = a.newlabel("kfh"), a.newlabel("kfj")
        a("s_cmp_lg_u32 s%d, 0" % sJ)
        a("s_cbranch_scc1 %s" % Lh)
        Q = AF + 4
        for k, (lo, hi) in enumerate([(vc, vc), (vc, vc), (vb, vb), (vb, vb), (vb, vb), (vb, va), (va, va), (va, va),
                                      (vc, vc), (vc, vb), (vb, vb), (vb, vb), (vb, vb), (va, va), (va, va), (va, va)]):
            a("v_cvt_pk_bf16_f32 v%d, v%d, v%d" % (Q + k, lo, hi))
        for k in range(4): a("ds_write_b128 v%d, v[%d:%d] offset:%d" % (XA + 3, Q + 4 * k, Q + 4 * k + 3, 16 * (k & 1) + 4160 * (k >> 1)))
        a("s_branch %s" % Lj)
        a.label(Lh)
        for k, (lo, hi) in enumerate([(vc, vc), (vb, vb), (vb, va), (va, va), (vc, vb), (vb, vb), (va, va), (va, va)]):
            a("v_cvt_pk_bf16_f32 v%d, v%d, v%d" % (Q + k, lo, hi))
        for k in range(2): a("ds_write_b128 v%d, v[%d:%d] offset:%d" % (XA + 3, Q + 4 * k, Q + 4 * k + 3, 4160 * k))
        a.label(Lj)
        if self.o["kwper"] <= 2: self.s_bar_maybe(force=True)
        self.dsop("ds_write_b128 v%d, v[%d:%d]" % (XA + 4, W, W + 3))
        self.dsop("ds_write_b128 v%d, v[%d:%d] offset:4608" % (XA + 4, W, W + 3))
        self.dsop("ds_write_b128 v22, v[%d:%d]" % (W, W + 3))
        self.wait_ds()
        self.ts()
        self.colpf(self.o['col1'], 7)
        print("kgen barriers placed before the end:", self.nb)
        self.o["sts"] = 0
    def colpf(self, k0, k1):
        a = self.a
        if self.o["colpf"] >= 0:
            for k in range(k0, k1):
                self.vmem("buffer_load_dword v17, v16, s[%d:%d], s%d offen" % (SRD_W2, SRD_W2 + 3, sW2A), "col")
                if k < 6: a("s_add_u32 s%d, s%d, 65536" % (sW2A, sW2A))
    def stage_u(self):
        a = self.a
        t = vT
        a.c("==== stage the normalised channel pair")
        late = self.o["fxlate"]
        while self.nb < (7 if late == 3 else 6 + late): self.s_bar_maybe(force=True)
        a("s_setprio %d" % self.o["sprio"])
        a("v_and_b32 v%d, 7, v1" % t)
        a("v_lshlrev_b32 v%d, 2, v%d" % (t, t))
        a("s_and_b32 s%d, s2, 7" % sT0)
        a("s_lshl_b32 s%d, s%d, 2" % (sT0, sT0))
        a("s_add_u32 s%d, s%d, s%d" % (sT0, sT0, sSL))
        a("s_lshl_b32 s%d, s%d, 5" % (sT0, sT0))
        a("s_add_u32 s%d, s%d, 0x%x" % (sT2, sT0, WS_FX))
        ld = "buffer_load_dword v%d, v%d, s[%d:%d], s%d offen sc1" % (vFL, t, SRD_WS, SRD_WS + 3, sT2)
        self.vmem(ld, "poll")
        self.conv_addr()
        self.x_load()
        if late != 3: a("s_barrier")
        def cond_barrier():
            L = a.newlabel("nb")
            a("s_cmp_eq_u32 s%d, 0" % sJ)
            a("s_cbranch_scc1 %s" % L)
            a("s_barrier")
            a.label(L)
        if late == 2:
            self.poll(ld, "poll")
        else:
            self.wait_vm("poll")
            a("v_cmp_ne_u32 vcc, s%d, v%d" % (sNONCE, vFL))
            a("s_mov_b32 s%d, 1" % sJ)
            a("s_nop 0")
            a("s_cmp_eq_u64 vcc, 0")
            Lf = a.newlabel("fxfast")
            a("s_cbranch_scc1 %s" % Lf)
            a("s_mov_b32 s%d, 0" % sJ)
            for k in range(2 if late == 3 else 2 - late): a("s_barrier")
            save = list(self.vm)
            self.poll(ld)
            self.vm = save
            a.label(Lf)
        self.ts()
        D, S_, W = 128, 136, 144
        a("v_lshlrev_b32 v%d, 4, v1" % t)
        a("s_lshl_b32 s%d, s2, 13" % sT0)
        a("s_lshl_b32 s%d, s%d, 11" % (sT1, sSL))
        a("s_add_u32 s%d, s%d, s%d" % (sT0, sT0, sT1))
        a("s_add_u32 s%d, s%d, 0x%x" % (sT0, sT0, WS_XN))
        a("s_add_u32 s%d, s%d, 0x%x" % (sT1, sT1, WS_ST))
        for h in range(2):
            self.vmem("buffer_load_dwordx4 v[%d:%d], v%d, s[%d:%d], s%d offen offset:%d sc1" % (D + 4 * h, D + 4 * h + 3, t, SRD_WS, SRD_WS + 3, sT0, 1024 * h), "u%d" % h)
            self.vmem("buffer_load_dwordx4 v[%d:%d], v%d, s[%d:%d], s%d offen offset:%d sc1" % (S_ + 4 * h, S_ + 4 * h + 3, t, SRD_WS, SRD_WS + 3, sT1, 1024 * h), "u%d" % h)
        a("s_lshl_b32 s%d, s%d, 10" % (sT1, sSL))
        a("s_add_u32 s%d, s%d, %d" % (sT1, sT1, L_U + 512))
        a("v_lshl_add_u32 v%d, v1, 3, s%d" % (t + 1, sT1))
        if late != 2: cond_barrier()
        if late == 3: cond_barrier()
        for h in range(2):
            self.wait_vm("u%d" % h)
            if h == 1 and self.o.get("fine"): self.ts()
            for r in range(4):
                d, st, w = D + 4 * h + r, S_ + 4 * h + r, W + 4 * r
                a("v_and_b32 v%d, 0xffff0000, v%d" % (w + 2, st))
                a("v_rcp_f32 v%d, v%d" % (w + 2, w + 2))
                a("v_lshlrev_b32 v%d, 16, v%d" % (w + 3, st))
                a("v_lshlrev_b32 v%d, 16, v%d\nv_and_b32 v%d, 0xffff0000, v%d" % (w, d, w + 1, d))
                a("v_sub_f32 v%d, v%d, v%d\nv_sub_f32 v%d, v%d, v%d" % (w, w, w + 3, w + 1, w + 1, w + 3))
                a("v_cvt_pk_bf16_f32 v%d, v%d, v%d" % (d, w, w + 1))
                a("v_lshlrev_b32 v%d, 16, v%d\nv_and_b32 v%d, 0xffff0000, v%d" % (w, d, w + 1, d))
                a("v_mul_f32 v%d, v%d, v%d\nv_mul_f32 v%d, v%d, v%d" % (w, w, w + 2, w + 1, w + 1, w + 2))
            for ch in range(2):
                O = D + 4 * h + 2 * ch
                a("v_cvt_pk_bf16_f32 v%d, v%d, v%d" % (O, W + ch, W + 4 + ch))
                a("v_cvt_pk_bf16_f32 v%d, v%d, v%d" % (O + 1, W + 8 + ch, W + 12 + ch))
            for ch in range(2):
                O = D + 4 * h + 2 * ch
                self.dsop("ds_write_b64 v%d, v[%d:%d] offset:%d" % (t + 1, O, O + 1, 512 * h + 4608 * ch))
        self.sbar(cond_barrier if late == 0 else None)
        self.vmem("buffer_load_dword v%d, v%d, s[%d:%d], s%d offen sc1" % (self.ESD, self.ESD + 3, SRD_WS, SRD_WS + 3, sW2B), "ex")
    ESD, EX = 32, 24
    def x_load(self):
        a = self.a
        t = vT + 2
        ESD, EX = self.ESD, self.EX
        a("v_and_b32 v%d, 15, v1" % t)
        a("v_lshrrev_b32 v%d, 4, v1" % (t + 1))
        a("s_lshl_b32 s%d, s%d, 2" % (sT1, sMB))
        a("s_add_u32 s%d, s%d, s%d" % (sT1, sT1, sSL))
        a("s_lshl_b32 s%d, s%d, 6" % (sW2B, sT1))
        a("s_add_u32 s%d, s%d, 0x%x" % (sW2B, sW2B, WS_ST))
        a("v_lshlrev_b32 v%d, 2, v%d" % (ESD + 3, t))
        a("v_lshlrev_b32 v%d, 10, v%d" % (t + 2, t))
        a("v_lshl_add_u32 v%d, v%d, 4, v%d" % (ESD + 2, t + 1, t + 2))
        a("s_lshl_b32 s%d, s%d, 14" % (sT1, sT1))
        a("s_lshl_b32 s%d, s%d, 7" % (sT0, sDB))
        a("s_add_u32 s%d, s%d, s%d" % (sW2Z, sT1, sT0))
        self.vmem("buffer_load_dwordx4 v[%d:%d], v%d, s[%d:%d], s%d offen" % (EX, EX + 3, ESD + 2, SRD_X, SRD_X + 3, sW2Z), "ex")
        self.vmem("buffer_load_dwordx4 v[%d:%d], v%d, s[%d:%d], s%d offen offset:64" % (EX + 4, EX + 7, ESD + 2, SRD_X, SRD_X + 3, sW2Z), "ex")
    CA = 96
    def conv_addr(self):
        a = self.a
        t = vT + 2
        AA = self.CA
        a("s_lshr_b32 s%d, s%d, 1" % (sSOX, sSL))
        a("s_and_b32 s%d, s%d, 1" % (sSOW, sSL))
        a("v_and_b32 v%d, 15, v1" % t)
        a("v_lshrrev_b32 v%d, 4, v1" % (t + 1))
        a("v_and_b32 v%d, 1, v1" % (t + 2))
        a("v_mul_u32_u24 v%d, %d, v%d" % (t + 2, 4160 - 2, t + 2))
        a("v_lshl_add_u32 v%d, v%d, 1, v%d" % (t + 2, t, t + 2))
        a("v_lshlrev_b32 v%d, 4, v%d" % (t + 3, t + 1))
        a("v_sub_u32 v%d, v%d, v%d" % (t + 2, t + 3, t + 2))
        a("s_mul_i32 s%d, s%d, 8320" % (sT0, sSOX))
        a("s_lshl_b32 s%d, s%d, 8" % (sT1, sSOW))
        a("s_sub_u32 s%d, s%d, s%d" % (sT0, sT0, sT1))
        a("s_add_u32 s%d, s%d, %d" % (sT0, sT0, L_K + 4160 + 4060 - 64 - 512))
        a("v_add_u32 v%d, s%d, v%d" % (AA, sT0, t + 2))
        for ap in range(1, 4): a("v_subrev_u32 v%d, %d, v%d" % (AA + ap, 1024 * ap, AA))
        a("v_lshl_add_u32 v%d, v%d, 5, v%d" % (t + 2, t, t + 3))
        a("s_mul_i32 s%d, s%d, 4608" % (sT0, sSOX))
        a("s_sub_u32 s%d, s%d, s%d" % (sT1, sT0, sT1))
        a("s_add_u32 s%d, s%d, %d" % (sT1, sT1, L_U + 512 - 32 - 64))
        a("v_add_u32 v%d, s%d, v%d" % (AA + 4, sT1, t + 2))
        a("s_lshl_b32 s%d, s%d, 12" % (sT1, sSL))
        a("s_add_u32 s%d, s%d, %d" % (sT1, sT1, L_YX))
        a("v_lshl_add_u32 v%d, v1, 4, s%d" % (AA + 5, sT1))
        a("s_xor_b32 s%d, s%d, 1" % (sT1, sSL))
        a("s_lshl_b32 s%d, s%d, 12" % (sT1, sT1))
        a("s_add_u32 s%d, s%d, %d" % (sT1, sT1, L_YX))
        a("v_lshl_add_u32 v%d, v1, 4, s%d" % (AA + 6, sT1))
        a("v_lshlrev_b32 v%d, 5, v%d" % (AA + 7, t))
        a("v_lshl_add_u32 v%d, v%d, 3, v%d" % (AA + 7, t + 1, AA + 7))
        a("s_lshl_b32 s%d, s%d, 11" % (sT1, sSOW))
        a("s_add_u32 s%d, s%d, s%d" % (sT0, sT0, sT1))
        a("s_add_u32 s%d, s%d, %d" % (sT0, sT0, L_U + 512))
        a("v_add_u32 v%d, s%d, v%d" % (AA + 8, sT0, AA + 7))
        a("v_lshl_add_u32 v%d, v1, 4, s%d" % (AA + 9, sT0))
        a("s_lshl_b32 s%d, s%d, 2" % (sT0, sSOX))
        a("s_add_u32 s%d, s%d, %d" % (sT0, sT0, L_CNT + 4))
        a("v_mov_b32 v%d, s%d" % (AA + 10, sT0))
        a("v_lshrrev_b32 v%d, 3, v1" % (t + 2))
        a("v_and_b32 v%d, 7, v1" % (t + 3))
        a("v_lshlrev_b32 v%d, 4, v%d" % (t + 3, t + 3))
        a("v_lshl_add_u32 v%d, v%d, 13, v%d" % (AA + 7, t + 2, t + 3))
        a("v_add_u32 v%d, 65536, v%d" % (AA + 11, AA + 7))
        a("s_lshl_b32 s%d, s2, 1" % sT0)
        a("s_add_u32 s%d, s%d, s%d" % (sT0, sT0, sSOX))
        a("s_lshr_b32 s%d, s%d, 6" % (sLDT, sT0))
        a("s_lshl_b32 s%d, s%d, 1" % (sLDT, sLDT))
        a("s_add_u32 s%d, s%d, s%d" % (sLDT, sLDT, sSOW))
        a("s_lshl_b32 s%d, s%d, 10" % (sLDT, sLDT))
        a("s_and_b32 s%d, s%d, 63" % (sT1, sT0))
        a("s_add_u32 s%d, s%d, s%d" % (sLDT, sLDT, sT1))
        a("s_lshl_b32 s%d, s%d, 7" % (sLDT, sLDT))
        a("s_add_u32 s%d, s%d, 0x%x" % (sLDT, sLDT, WS_YT))
        a("s_lshl_b32 s%d, s%d, 9" % (sT1, sSOW))
        a("s_add_u32 s%d, s%d, s%d" % (sT0, sT0, sT1))
        a("s_lshr_b32 s%d, s%d, 4" % (sT1, sT0))
        a("s_lshl_b32 s%d, s%d, 7" % (sT1, sT1))
        a("s_and_b32 s%d, s%d, 15" % (sT0, sT0))
        a("s_lshl_b32 s%d, s%d, 2" % (sT0, sT0))
        a("s_add_u32 s%d, s%d, s%d" % (sT0, sT0, sT1))
        a("s_add_u32 s%d, s%d, 0x%x" % (sFLG, sT0, WS_FY))
    def conv(self):
        a = self.a
        a.c("==== causal convolution, Hankel(K) x windows(u); the two waves of a channel split the taps by residue class")
        YA, AA = 64, self.CA
        self.ts()
        a("s_setprio %d" % self.o["cprio"])
        for k in range(32): a("v_mov_b32 v%d, 0" % (YA + k))
        a("s_mov_b32 s%d, 0" % sT0)
        pairs = [(aa, b) for aa in range(8) for b in range(7 - aa, -1, -1)]
        def reads(buf):
            FA_, FB_ = 128 + 64 * buf, 160 + 64 * buf
            out, seenA, seenB = [], set(), set()
            for aa, b in pairs:
                if aa not in seenA:
                    seenA.add(aa)
                    o = 16 * (1 - buf) + 128 * (1 - (aa & 1))
                    out.append(("ds_read2_b32 v[%d:%d], v%d offset0:%d offset1:%d" % (FA_ + 4 * aa, FA_ + 4 * aa + 1, AA + (aa >> 1), o, o + 1), "x"))
                    out.append(("ds_read2_b32 v[%d:%d], v%d offset0:%d offset1:%d" % (FA_ + 4 * aa + 2, FA_ + 4 * aa + 3, AA + (aa >> 1), o + 2, o + 3), "A%d_%d" % (buf, aa)))
                if b not in seenB:
                    seenB.add(b)
                    out.append(("ds_read_b128 v[%d:%d], v%d offset:%d" % (FB_ + 4 * b, FB_ + 4 * b + 3, AA + 4, 512 * b + 64 * (1 - buf)), "B%d_%d" % (buf, b)))
            return out
        for r, tg in reads(0): self.dsop(r, tg)
        L = a.newlabel("cloop")
        a.label(L)
        for buf in range(2):
            FA_, FB_ = 128 + 64 * buf, 160 + 64 * buf
            nxt = reads(1 - buf)
            if buf == 1:
                for k in range(5): a("v_subrev_u32 v%d, 128, v%d" % (AA + k, AA + k))
            for n, (aa, b) in enumerate(pairs):
                self.wait_ds("A%d_%d" % (buf, aa)); self.wait_ds("B%d_%d" % (buf, b))
                D = YA + 4 * (aa + b)
                a("v_mfma_f32_16x16x32_bf16 v[%d:%d], v[%d:%d], v[%d:%d], v[%d:%d]" % (D, D + 3, FA_ + 4 * aa, FA_ + 4 * aa + 3, FB_ + 4 * b, FB_ + 4 * b + 3, D, D + 3))
                if n >= 4 and nxt:
                    r, tg = nxt.pop(0); self.dsop(r, tg)
            assert not nxt
        a("s_add_u32 s%d, s%d, 1" % (sT0, sT0))
        a("s_cmp_lt_u32 s%d, 2" % sT0)
        a("s_cbranch_scc1 %s" % L)
        a("s_setprio %d" % self.o["sprio"])
        U, W = 192, 200
        for k in range(4): self.dsop("ds_read_b64 v[%d:%d], v%d offset:%d" % (U + 2 * k, U + 2 * k + 1, AA + 8, 512 * k), "sk")
        self.ts()
        Lh, Lj = a.newlabel("yhi"), a.newlabel("yj")
        a("s_cmp_lg_u32 s%d, 0" % sSOW)
        a("s_cbranch_scc1 %s" % Lh)
        for k in range(4): a("ds_write_b128 v%d, v[%d:%d] offset:%d" % (AA + 5, YA + 16 + 4 * k, YA + 19 + 4 * k, 1024 * k))
        a("s_branch %s" % Lj)
        a.label(Lh)
        for k in range(4): a("ds_write_b128 v%d, v[%d:%d] offset:%d" % (AA + 5, YA + 4 * k, YA + 3 + 4 * k, 1024 * k))
        a("s_nop 0")
        for k in range(16): a("v_mov_b32 v%d, v%d" % (YA + k, YA + 16 + k))
        a.label(Lj)
        def skip_term():
            for k in range(4):
                D = YA + 4 * k
                for q in range(2):
                    a("v_lshlrev_b32 v%d, 16, v%d\nv_and_b32 v%d, 0xffff0000, v%d" % (W + 2 * q, U + 2 * k + q, W + 2 * q + 1, U + 2 * k + q))
                for q in range(4): a("v_fmac_f32 v%d, s%d, v%d" % (D + q, sDSK, W + q))
        self.sbar_arrive(AA + 10)
        a("s_waitcnt lgkmcnt(5)")
        skip_term()
        self.lds_wait(AA + 10, 2, behind=["ds_read_b128 v[%d:%d], v%d offset:%d" % (128 + 4 * k, 131 + 4 * k, AA + 6, 1024 * k) for k in range(4)])
        for k in range(4):
            D = YA + 4 * k
            for q in range(4): a("v_add_f32 v%d, v%d, v%d" % (D + q, D + q, 128 + 4 * k + q))
            Q = W + 4 + 2 * k
            a("v_cvt_pk_bf16_f32 v%d, v%d, v%d\nv_cvt_pk_bf16_f32 v%d, v%d, v%d" % (Q, D, D + 1, Q + 1, D + 2, D + 3))
            self.dsop("ds_write_b64 v%d, v[%d:%d] offset:%d" % (AA + 8, Q, Q + 1, 512 * k))
        for k in range(2): self.dsop("ds_read_b128 v[%d:%d], v%d offset:%d" % (YA + 4 * k, YA + 4 * k + 3, AA + 9, 1024 * k), "yb%d" % k)
        for k in range(2):
            self.wait_ds("yb%d" % k)
            self.vmem("buffer_store_dwordx4 v[%d:%d], v%d, s[%d:%d], s%d offen sc1" % (YA + 4 * k, YA + 4 * k + 3, AA + 7 + 4 * k, SRD_WS, SRD_WS + 3, sLDT), "y")
            if self.o.get("noyst"): a.lines[-1] = "s_nop 0"
    def s_final(self):
        a = self.a
        t = vT
        a.c("==== output: x + y + rstd * (sum of the four partial products)")
        EX, ESD = self.EX, self.ESD
        EY, AD, T1, W = 136, 148, 160, 176
        a("v_and_b32 v%d, 15, v1" % t)
        a("v_lshrrev_b32 v%d, 4, v1" % (t + 1))
        if self.o.get("fine"): self.ts()
        self.wait_vm("y")
        if not self.o.get("noyflag"): self.publish(sFLG, t + 2)
        self.ts()
        a("s_lshr_b32 s%d, s%d, 4" % (sT3, sMB))
        a("s_lshl_b32 s%d, s%d, 3" % (sT3, sT3))
        a("s_add_u32 s%d, s%d, s%d" % (sT3, sT3, sDB))
        a("s_lshl_b32 s%d, s%d, 2" % (sT3, sT3))
        a("s_add_u32 s%d, s%d, s%d" % (sT3, sT3, sSL))
        a("s_lshl_b32 s%d, s%d, 7" % (sT3, sT3))
        a("s_add_u32 s%d, s%d, 0x%x" % (sT3, sT3, WS_FY))
        a("v_lshlrev_b32 v%d, 2, v%d" % (t + 2, t))
        a("v_lshlrev_b32 v%d, 1, v%d" % (t + 3, t + 1))
        a("v_xor_b32 v%d, v%d, v%d" % (t + 3, t + 3, t))
        a("v_lshlrev_b32 v%d, 4, v%d" % (t + 3, t + 3))
        a("v_lshl_add_u32 v%d, v%d, 8, v%d" % (t + 3, t, t + 3))
        a("s_and_b32 s%d, s%d, 1" % (sT0, sSL))
        a("s_lshl_b32 s%d, s%d, 12" % (sT0, sT0))
        a("s_cmp_ge_u32 s%d, 2" % sSL)
        a("s_cselect_b32 s%d, %d, 0" % (sT1, W2BASE[1]))
        a("s_add_u32 s%d, s%d, s%d" % (sT0, sT0, sT1))
        a("v_add_u32 v%d, s%d, v%d" % (AD, sT0, t + 3))
        a("v_xor_b32 v%d, 16, v%d\nv_xor_b32 v%d, 128, v%d\nv_xor_b32 v%d, 144, v%d" % (AD + 1, AD, AD + 2, AD, AD + 3, AD))
        a("v_bfe_u32 v%d, v1, 2, 2" % (t + 3))
        a("v_lshl_add_u32 v%d, v%d, 3, v%d" % (t + 3, t + 1, t + 3))
        a("v_mul_u32_u24 v%d, 144, v%d" % (t + 3, t + 3))
        a("v_and_b32 v%d, 3, v1" % (t + 4))
        a("v_lshl_add_u32 v%d, v%d, 3, v%d" % (t + 3, t + 4, t + 3))
        a("s_lshl_b32 s%d, s%d, 5" % (sT0, sSL))
        a("s_add_u32 s%d, s%d, %d" % (sT0, sT0, L_YS))
        a("v_add_u32 v%d, s%d, v%d" % (AD + 4, sT0, t + 3))
        a("v_lshrrev_b32 v%d, 3, v1" % (t + 3))
        a("v_and_b32 v%d, 7, v1" % (t + 4))
        a("v_lshlrev_b32 v%d, 4, v%d" % (t + 4, t + 4))
        a("v_lshlrev_b32 v%d, 4, v1" % (AD + 5))
        a("v_mul_u32_u24 v%d, 144, v%d" % (t + 3, t + 3))
        a("s_mul_i32 s%d, s%d, %d" % (sT0, sSL, 16 * 144))
        a("s_add_u32 s%d, s%d, %d" % (sT0, sT0, L_YS))
        a("v_add3_u32 v%d, v%d, v%d, s%d" % (AD + 6, t + 3, t + 4, sT0))
        a("s_lshl_b32 s%d, s%d, 5" % (sT0, sDB))
        a("s_add_u32 s%d, s%d, s%d" % (sT0, sT0, sMB))
        a("s_lshl_b32 s%d, s%d, 2" % (sT0, sT0))
        a("s_add_u32 s%d, s%d, s%d" % (sT0, sT0, sSL))
        a("s_lshl_b32 s%d, s%d, 11" % (sT0, sT0))
        a("s_add_u32 s%d, s%d, 0x%x" % (sSOW, sT0, WS_YT))
        self.wait_vm("ex")
        a("v_and_b32 v%d, 0xffff0000, v%d" % (ESD, ESD))
        a("v_rcp_f32 v%d, v%d" % (ESD, ESD))
        for k in range(8):
            a("v_lshlrev_b32 v%d, 16, v%d\nv_and_b32 v%d, 0xffff0000, v%d" % (T1 + 2 * k, EX + k, T1 + 2 * k + 1, EX + k))
        if self.o["mark"] >= 0: self.lds_wait(22, 1, off=12, sleep=2)
        if not self.o.get("nofy"): self.poll("buffer_load_dword v%d, v%d, s[%d:%d], s%d offen sc1" % (vFL, t + 2, SRD_WS, SRD_WS + 3, sT3), sleep=self.o.get("ysleep"))
        self.ts()
        self.vmem("buffer_load_dwordx4 v[%d:%d], v%d, s[%d:%d], s%d offen sc1" % (EY, EY + 3, AD + 5, SRD_WS, SRD_WS + 3, sSOW), "ey")
        self.vmem("buffer_load_dwordx4 v[%d:%d], v%d, s[%d:%d], s%d offen offset:1024 sc1" % (EY + 4, EY + 7, AD + 5, SRD_WS, SRD_WS + 3, sSOW), "ey")
        if self.o.get("noyld"): a.lines[-1] = "s_nop 0"; a.lines[-2] = "s_nop 0"
        self.wait_vm("ey")
        if self.o.get("fine"): self.ts()
        self.dsop("ds_write_b128 v%d, v[%d:%d]" % (AD + 6, EY, EY + 3))
        self.dsop("ds_write_b128 v%d, v[%d:%d] offset:%d" % (AD + 6, EY + 4, EY + 7, 8 * 144))
        EY2 = 184
        self.sbar(behind=["ds_read_b64_tr_b16 v[%d:%d], v%d offset:%d" % (EY2 + 2 * j, EY2 + 2 * j + 1, AD + 4, ((j & 1) * 4 + (j >> 1) * 32) * 144) for j in range(4)])
        EY = EY2
        for k in range(8):
            a("v_lshlrev_b32 v%d, 16, v%d\nv_and_b32 v%d, 0xffff0000, v%d" % (W, EY + k, W + 1, EY + k))
            a("v_pk_add_f32 v[%d:%d], v[%d:%d], v[%d:%d]" % (T1 + 2 * k, T1 + 2 * k + 1, T1 + 2 * k, T1 + 2 * k + 1, W, W + 1))
        self.ts()
        a("s_barrier")
        self.ts()
        for P in range(4):
            for j in range(4):
                self.dsop("ds_read_b128 v[%d:%d], v%d offset:%d" % (vACC + 16 * P + 4 * j, vACC + 16 * P + 4 * j + 3, AD + j, 8192 * P), "p%d" % P)
        for P in range(1, 4):
            self.wait_ds("p%d" % P)
            for k in range(8):
                a("v_pk_add_f32 v[%d:%d], v[%d:%d], v[%d:%d]" % (vACC + 2 * k, vACC + 2 * k + 1, vACC + 2 * k, vACC + 2 * k + 1, vACC + 16 * P + 2 * k, vACC + 16 * P + 2 * k + 1))
        for h in range(2):
            for k in range(4 * h, 4 * h + 4):
                a("v_pk_fma_f32 v[%d:%d], v[%d:%d], v[%d:%d], v[%d:%d] op_sel_hi:[1,0,1]" % (T1 + 2 * k, T1 + 2 * k + 1, vACC + 2 * k, vACC + 2 * k + 1, ESD, ESD + 1, T1 + 2 * k, T1 + 2 * k + 1))
            for k in range(4 * h, 4 * h + 4):
                a("v_cvt_pk_bf16_f32 v%d, v%d, v%d" % (EX + k, T1 + 2 * k, T1 + 2 * k + 1))
            self.vmem("buffer_store_dwordx4 v[%d:%d], v%d, s[%d:%d], s%d offen offset:%d" % (EX + 4 * h, EX + 4 * h + 3, ESD + 2, SRD_OUT, SRD_OUT + 3, sW2Z, 64 * h))

    def dump(self, wave):
        a = self.a
        if not self.diag: return
        a("s_waitcnt vmcnt(0)")
        self.ts()
        a("s_memrealtime s[%d:%d]" % (sM0, sM1)); a("s_waitcnt lgkmcnt(0)"); a("s_mov_b32 s98, s%d" % sM0)
        a("s_cmp_lg_u32 s%d, %d" % (sWAVE, wave)); a("s_cbranch_scc1 L_END")
        a("s_lshl_b32 s%d, s2, 8" % sT0); a("s_add_u32 s%d, s%d, 0x%x" % (sT0, sT0, WS_TS + (128 if wave else 0)))
        a("s_mov_b64 exec, 1")
        for k in range(20):
            a("v_mov_b32 v2, s%d" % (sTS + k))
            a("buffer_store_dword v2, off, s[%d:%d], s%d offset:%d" % (SRD_WS, SRD_WS + 3, sT0, 4 * k))
        a("s_waitcnt vmcnt(0)")

    def build(self):
        a = self.a
        if self.diag:
            for k in range(20): a("s_mov_b32 s%d, 0" % (sTS + k))
        self.setup()
        nts0 = self.nts
        if self.o["fprio"]: a("s_setprio %d" % self.o["fprio"])
        vm_s = list(self.vm)
        self.srds(["x"])
        a("s_cmp_eq_u32 s%d, 7" % sDB)
        a("s_cbranch_scc1 L_SPARE0")
        self.srds(["w1"])
        for f in self.g1_dma_ops(0, "c0"): f()
        self.chunk_soffsets()
        for f in self.g1_dma_ops(1, "c1"): f()
        a.label("L_FCOMMON")
        self.srds(["ws", "dbg", "w2"])
        self.w2_setup()
        self.g1_addr()
        self.f_vrows()
        a("s_cmp_eq_u32 s%d, 7" % sDB)
        a("s_cbranch_scc1 L_SPARE")
        self.wait_ds()
        if self.o["bv"]: a("s_barrier")
        self.gemm1()
        self.ts()
        self.g1_epilogue()
        self.ts()
        self.gemm2("L_JOIN")
        self.dump(0)
        a("s_endpgm")
        a.label("L_SPARE0")
        self.vm, self.ds = list(vm_s), []
        self.spare_loads()
        a("s_branch L_FCOMMON")
        a.label("L_SPARE")
        self.w2next = 0
        self.nts = nts0
        self.spare_path()
        a("s_branch L_JOIN")
        self.vm, self.ds, self.nts = list(vm_s), [], nts0
        self.s_entry()
        self.kgen()
        if self.o.get("nos"):
            while self.nb < 9: self.s_bar_maybe(force=True)
            a("s_barrier"); self.dump(4); a("s_endpgm")
            self.diag = False
        self.stage_u()
        self.conv()
        self.s_final()
        self.dump(4)
        a.label("L_END")
        a("s_endpgm")
        a.label("L_CODE_END")
        return a

def full_text(a, header=""):
    return header + """; @launch grid=(256,1,1) block=(%d,1,1) lds=%d
.amdgcn_target "amdgcn-amd-amdhsa--gfx950"
.text
.globl %s
.p2align 8
.type %s,@function
%s:
""" % (BLOCK, LDS_BYTES, NAME, NAME, NAME) + a.text() + """.section .rodata,"a"
.p2align 6
.amdhsa_kernel %s
  .amdhsa_next_free_vgpr 256
  .amdhsa_next_free_sgpr 102
  .amdhsa_accum_offset 256
  .amdhsa_group_segment_fixed_size 0
  .amdhsa_kernarg_size 120
  .amdhsa_user_sgpr_count 2
  .amdhsa_user_sgpr_kernarg_segment_ptr 1
  .amdhsa_system_sgpr_workgroup_id_x 1
  .amdhsa_float_denorm_mode_32 3
.end_amdhsa_kernel
""" % NAME

if __name__ == "__main__":
    import argparse
    HEADER = open("parallel_sum__ssm_conv_s4__dense_activation_relu__prompt.s.ref").read().split("; Override launch")[0]
    ap = argparse.ArgumentParser()
    ap.add_argument("-o", default="k2.s")
    ap.add_argument("--diag", action="store_true")
    ap.add_argument("--opt", default="")
    args = ap.parse_args()
    opt = {}
    for kv in args.opt.split(","):
        if kv: k, v = kv.split("="); opt[k] = int(v)
    g = Gen(diag=args.diag, opt=opt)
    a = g.build()
    check_hazards(a.lines)
    open(args.o, "w").write(full_text(a, HEADER))
    print("wrote", args.o, "instructions:", sum(1 for l in a.lines if parse(l)))
```

```python
import sys
from asmlib import *

NAME = "parallel_sum__ssm_conv_s4__dense_activation_relu__prompt_kernel"
BLOCK = 512
WS_H, WS_XN, WS_YT = 0, 0x700000, 0x900000
WS_ST = 0xB00000
WS_FX, WS_FY, WS_TS, WS_FH = 0xB04000, 0xB06000, 0xB10000, 0xB20000
WS_SIZE = 0xB40000
XPART = 16 * 1040
SLOT1 = XPART + 16384
L_TAB = 3 * SLOT1
L_TABU = L_TAB + 16384 - 4096
TABW = 47 * 256
L_SUM = 136960
L_U = L_SUM + 1024
L_K = L_U + 9216
L_CNT = L_SUM - 16
L_YS = SLOT1 + 16384
LDS_BYTES = 163840
W2BASE = [3 * SLOT1, 2 * SLOT1, 0]
L_YX = SLOT1

LNROW = 1040
L_LNS = 66560
SRD_X, SRD_W1, SRD_W2, SRD_OUT, SRD_WS, SRD_DBG = 36, 40, 44, 48, 52, 56
sWAVE, sMT, sSL, sJ, sC, sNONCE, sMB, sDB = 60, 61, 62, 63, 64, 65, 66, 67
sSOX, sSOW, sLDT, sDSK, sONES, sT0, sT1, sT2, sT3, sCNT = 68, 69, 70, 71, 72, 73, 74, 75, 76, 77
sW2A, sW2B, sHA, sHB, sW2Z, sHZ = 78, 79, 34, 35, 9, 10
sH00 = 4
sFLG = 8
sTS = 80
sM0, sM1 = 100, 101
vT = 2
vD2, vA2, vH0, vH1, vNON, vFL = 10, 14, 18, 19, 20, 21
vDX, vDW, vAX, vAW, vRS, vCSUM, vONE = 24, 28, 32, 40, 44, 48, 52
vACC, vFR, vCS, vMEAN = 64, 128, 160, 192
vPAR = 56

class Gen:
    def __init__(self, diag=False, opt=None):
        self.a = Asm(); self.diag = diag
        self.vm, self.ds, self.seen = [], [], set()
        self.nts = 0
        self.nsb = 0
        self.nb = 0
        self.w2next = 0
        self.o = dict(w2early=3, mark=12, ah=9, hsleep=3, sprio1=2, col1=2, colpf=3, bv=0, epidma=0, cprio=3, l2pf=0, l2first=0, kwper=1, mc=0, wtouch=0, ctouch=1, pkc=1, sprio0=2, sprio=3, fxlate=3, ra=1, rb=0, rg=4, rot2=0, dbgts=0, hold=0, tsw=0, quota0=150, quota=70, fprio=1, sleep=12, hsplit=0)
        if opt: self.o.update(opt)
        self.o['mcut'] = {0: (), 1: (13,), 2: (7, 19)}[self.o['mc']]
    def vmem(self, s, tag="x"):
        self.a(s); self.vm.append(tag); self.seen.add(tag)
    def dsop(self, s, tag="x"):
        self.a(s); self.ds.append(tag); self.seen.add(tag)
    def _n(self, lst, tag):
        return len(lst) - 1 - max(i for i, t in enumerate(lst) if t == tag)
    def wait_vm(self, tag=None):
        if tag is not None:
            assert tag in self.seen, tag
            if tag not in self.vm: return
        n = 0 if tag is None else self._n(self.vm, tag)
        assert n <= 63, (tag, n)
        self.a("s_waitcnt vmcnt(%d)" % n)
        self.vm = self.vm[len(self.vm) - n:] if n else []
    def wait_ds(self, tag=None):
        if tag is not None:
            assert tag in self.seen, tag
            if tag not in self.ds: return
        n = 0 if tag is None else self._n(self.ds, tag)
        n = min(n, 15)
        self.a("s_waitcnt lgkmcnt(%d)" % n)
        self.ds = self.ds[len(self.ds) - n:] if n else []
    def ts(self):
        if not self.diag: return
        assert self.nts < 18
        self.a("s_memtime s[%d:%d]" % (sM0, sM1)); self.a("s_waitcnt lgkmcnt(0)"); self.ds = []
        self.a("s_mov_b32 s%d, s%d" % (sTS + self.nts, sM0)); self.nts += 1
    def srd(self, r, p, size):
        self.a("s_mov_b32 s%d, s%d\ns_mov_b32 s%d, s%d\ns_mov_b32 s%d, 0x%x\ns_mov_b32 s%d, 0x20000" % (r, p, r + 1, p + 1, r + 2, size, r + 3))
    def ninstr(self): return len(self.a.lines)
    def poll(self, load, issued=None, sleep=None):
        a = self.a
        Lr, Ld = a.newlabel("retry"), a.newlabel("ok")
        a("s_mov_b32 s%d, 0" % sCNT)
        if issued is None:
            self.vmem(load, "poll"); self.wait_vm("poll")
        else:
            self.wait_vm(issued)
        a.label(Lr)
        a("v_cmp_ne_u32 vcc, s%d, v%d" % (sNONCE, vFL))
        a("s_add_u32 s%d, s%d, 1" % (sCNT, sCNT))
        a("s_nop 0")
        a("s_cmp_eq_u64 vcc, 0")
        a("s_cbranch_scc1 %s" % Ld)
        a("s_cmp_ge_u32 s%d, 20000" % sCNT)
        a("s_cbranch_scc1 %s" % Ld)
        sleep = self.o["sleep"] if sleep is None else sleep
        if sleep: a("s_sleep %d" % sleep)
        a(load)
        a("s_waitcnt vmcnt(0)")
        a("s_branch %s" % Lr)
        a.label(Ld)
    def nonce_load(self):
        self.vmem("buffer_load_dword v%d, off, s[%d:%d], 0 sc1" % (vNON, SRD_DBG, SRD_DBG + 3), "non")
    def get_nonce(self):
        a = self.a
        Lr, Ld = a.newlabel("nretry"), a.newlabel("nok")
        a("s_mov_b32 s%d, 0" % sCNT)
        self.wait_vm("non")
        a.label(Lr)
        a("v_readfirstlane_b32 s%d, v%d" % (sNONCE, vNON))
        a("s_add_u32 s%d, s%d, 1" % (sCNT, sCNT))
        a("s_nop 0")
        a("s_cmp_lg_u32 s%d, 0" % sNONCE)
        a("s_cbranch_scc1 %s" % Ld)
        a("s_cmp_ge_u32 s%d, 20000" % sCNT)
        a("s_cbranch_scc1 %s" % Ld)
        a("buffer_load_dword v%d, off, s[%d:%d], 0 sc1" % (vNON, SRD_DBG, SRD_DBG + 3))
        a("s_waitcnt vmcnt(0)")
        a("s_branch %s" % Lr)
        a.label(Ld)
    def publish(self, soff_reg, tmpv):
        a = self.a
        a("v_mov_b32 v%d, s%d" % (tmpv, sNONCE))
        a("s_mov_b64 exec, 1")
        self.vmem("buffer_store_dword v%d, off, s[%d:%d], s%d sc1" % (tmpv, SRD_WS, SRD_WS + 3, soff_reg), "flag")
        a("s_mov_b64 exec, -1")
    def sbar_arrive(self, addr=22):
        a = self.a
        a("s_mov_b64 exec, 1")
        self.dsop("ds_add_u32 v%d, v23" % addr)
        a("s_mov_b64 exec, -1")
    def lds_wait(self, addr, need, off=0, sleep=0, behind=()):
        a = self.a
        Lr, Ld = a.newlabel("sb"), a.newlabel("sbok")
        a("s_mov_b32 s%d, 0" % sCNT)
        a.label(Lr)
        if sleep: a("s_sleep %d" % sleep)
        a("ds_read_b32 v%d, v%d offset:%d" % (vFL, addr, off))
        for r in behind: a(r)
        a("s_add_u32 s%d, s%d, 1" % (sCNT, sCNT))
        a("s_waitcnt lgkmcnt(0)"); self.ds = []
        a("v_readfirstlane_b32 s%d, v%d" % (sM0, vFL))
        a("s_cmp_ge_u32 s%d, 200000" % sCNT)
        a("s_cbranch_scc1 %s" % Ld)
        a("s_cmp_lt_u32 s%d, %d" % (sM0, need))
        a("s_cbranch_scc1 %s" % Lr)
        a.label(Ld)
    def sbar(self, between=None, behind=()):
        self.sbar_arrive()
        if between: between()
        self.nsb += 1
        self.lds_wait(22, 4 * self.nsb, behind=behind)

    def setup(self):
        a = self.a
        o = self.o
        a("s_cmp_ge_u32 s2, 256\ns_cbranch_scc1 L_END")
        if self.diag:
            a("s_memrealtime s[%d:%d]" % (sM0, sM1)); a("s_waitcnt lgkmcnt(0)"); a("s_mov_b32 s99, s%d" % sM0)
            self.ts()
        a("""s_load_dwordx16 s[4:19], s[0:1], 0
             s_load_dwordx8 s[20:27], s[0:1], 64
             s_load_dwordx4 s[28:31], s[0:1], 96
             s_load_dwordx2 s[32:33], s[0:1], 112
             v_and_b32 v1, 63, v0
             v_lshrrev_b32 v2, 6, v0
             s_and_b32 s%d, s2, 7""" % sT0)
        a("v_readfirstlane_b32 s%d, v2" % sWAVE)
        a("s_lshr_b32 s%d, s2, 3" % sT1)
        Lp = a.newlabel("noprio")
        a("s_cmp_lt_u32 s%d, 4" % sWAVE)
        a("s_cbranch_scc1 %s" % Lp)
        a("s_setprio 3")
        a.label(Lp)
        a("s_lshr_b32 s%d, s%d, 3" % (sT2, sT1))
        a("s_and_b32 s%d, s%d, 7" % (sDB, sT1))
        a("s_lshl_b32 s%d, s%d, 2" % (sMB, sT0))
        a("s_add_u32 s%d, s%d, s%d" % (sMB, sMB, sT2))
        a("s_lshr_b32 s%d, s%d, 1" % (sT3, sT0))
        a("s_lshl_b32 s%d, s%d, 2" % (sMT, sT3))
        a("s_add_u32 s%d, s%d, s%d" % (sMT, sMT, sT2))
        a("s_and_b32 s%d, s%d, 1" % (sJ, sT0))
        a("s_mul_i32 s%d, s%d, 7" % (sSL, sJ))
        a("s_add_u32 s%d, s%d, s%d" % (sSL, sSL, sDB))
        a("s_add_u32 s%d, s%d, s%d" % (sT2, sT2, sDB))
        a("s_and_b32 s%d, s%d, 1" % (sT2, sT2))
        a("s_mul_i32 s%d, s%d, %d" % (sC, sT2, o["rg"]))
        a("s_mul_i32 s%d, s%d, %d" % (sT3, sT3, o["ra"]))
        a("s_add_u32 s%d, s%d, s%d" % (sC, sC, sT3))
        a("s_mul_i32 s%d, s%d, %d" % (sT3, sJ, o["rb"]))
        a("s_add_u32 s%d, s%d, s%d" % (sC, sC, sT3))
        a("s_and_b32 s%d, s%d, 7" % (sC, sC))
        a("s_and_b32 s%d, s%d, %d" % (sHA, sDB, {0: 0, 1: 2, 2: 3}[o["rot2"]]))
        a("s_lshl_b32 s%d, s%d, 3" % (sHA, sHA))
        a("s_lshr_b32 s%d, 0x160e0800, s%d" % (sHA, sHA))
        a("s_and_b32 s%d, s%d, 0xff" % (sHA, sHA))
        if o.get("swap23"):
            a("s_and_b32 s%d, s%d, 6" % (sT3, sDB))
            a("s_cmp_eq_u32 s%d, 2" % sT3)
            a("s_cselect_b32 s%d, 1, 0" % sT3)
            a("s_xor_b32 s%d, s%d, s%d" % (sDB, sDB, sT3))
        t = vT
        for k in range(6): a("v_mov_b32 v%d, 0" % (vPAR + k))
        a("v_and_b32 v%d, 255, v0" % (t + 7))
        a("s_lshl_b32 s%d, s2, 9" % sT0)
        a("v_lshl_add_u32 v%d, v%d, 1, s%d" % (t + 7, t + 7, sT0))
        self.f_dma_setup()
        self.chunk_soffsets()
        a("s_lshl_b32 s%d, s2, 2" % sT2)
        a("s_waitcnt lgkmcnt(0)")
        if o.get("tsstart"): self.ts()
        for k in range(6):
            self.vmem("global_load_short_d16_hi v%d, v%d, s[%d:%d]" % (vPAR + k, t + 7, 6 + 2 * k, 7 + 2 * k), "par")
        a("s_load_dword s%d, s[18:19], s%d" % (sLDT, sT2))
        a("s_load_dword s%d, s[20:21], s%d" % (sDSK, sT2))
        a("s_cmp_ge_u32 s%d, 4" % sWAVE)
        a("s_cbranch_scc1 L_SWAVE")
    def srds(self, which):
        m = dict(x=(SRD_X, 4, 2097152), w1=(SRD_W1, 24, 1835008), w2=(SRD_W2, 26, 1835008), out=(SRD_OUT, 28, 2097152), ws=(SRD_WS, 32, 0x2000000 if self.o.get('hoff') else WS_SIZE), dbg=(SRD_DBG, 30, 256))
        for w in which: self.srd(*m[w])
    def tag_store(self):
        a = self.a
        L = a.newlabel("notag")
        a("s_cmp_lg_u32 s2, 0")
        a("s_cbranch_scc1 %s" % L)
        a("s_cmp_lg_u32 s%d, 4" % sWAVE)
        a("s_cbranch_scc1 %s" % L)
        a("s_memrealtime s[%d:%d]" % (sM0, sM1))
        a("s_waitcnt lgkmcnt(0)")
        a("s_or_b32 s%d, s%d, 1" % (sT0, sM0))
        a("v_mov_b32 v%d, s%d" % (vNON, sT0))
        a("s_mov_b64 exec, 1")
        a("buffer_store_dword v%d, off, s[%d:%d], 0 sc1" % (vNON, SRD_DBG, SRD_DBG + 3))
        a("s_mov_b64 exec, -1")
        a.label(L)

    def f_dma_setup(self):
        a = self.a
        t = vT
        a("v_lshrrev_b32 v%d, 3, v1" % t)
        a("v_lshrrev_b32 v%d, 4, v1" % (t + 1))
        a("v_and_b32 v%d, 7, v1" % (t + 2))
        a("s_lshl_b32 s%d, s%d, 15" % (sT0, sWAVE))
        a("v_lshl_add_u32 v%d, v%d, 10, s%d" % (t + 3, t, sT0))
        a("v_bfe_u32 v%d, v1, 4, 1" % (t + 4))
        a("v_lshlrev_b32 v%d, 2, v%d" % (t + 4, t + 4))
        a("v_xor_b32 v%d, v%d, v%d" % (t + 4, t + 2, t + 4))
        a("v_lshl_add_u32 v%d, v%d, 4, v%d" % (vDX, t + 4, t + 3))
        for i in range(1, 4): a("v_add_u32 v%d, %d, v%d" % (vDX + i, i * (8192 - 1040), vDX))
        a("s_lshl_b32 s%d, s%d, 4" % (sT0, sWAVE))
        a("v_add_u32 v%d, s%d, v%d" % (t + 3, sT0, t + 1))
        a("v_mul_u32_u24 v%d, 3584, v%d" % (t + 3, t + 3))
        a("v_and_b32 v%d, 15, v1" % (t + 4))
        a("v_lshlrev_b32 v%d, 2, v%d" % (t + 5, t + 1))
        a("v_xor_b32 v%d, v%d, v%d" % (t + 4, t + 4, t + 5))
        a("v_lshl_add_u32 v%d, v%d, 4, v%d" % (vDW, t + 4, t + 3))
        for i in range(1, 4): a("v_add_u32 v%d, %d, v%d" % (vDW + i, i * (14336 - 1024), vDW))
        a("s_lshl_b32 s%d, s%d, 17" % (sSOX, sMT))
        a("s_lshl_b32 s%d, s%d, 8" % (sSOW, sSL))
    def chunk_soffsets(self):
        a = self.a
        a("s_lshl_b32 s%d, s%d, 7" % (sT0, sC))
        a("s_add_u32 s%d, s%d, s%d" % (sT0, sT0, sSOX))
        a("s_mul_i32 s%d, s%d, %d" % (sT1, sC, 64 * 3584))
        a("s_add_u32 s%d, s%d, s%d" % (sT1, sT1, sSOW))
        a("s_add_u32 s%d, s%d, 1" % (sC, sC))
        a("s_and_b32 s%d, s%d, 7" % (sC, sC))
    def g1_dma_ops(self, slot, tag):
        ops = []
        def mk(kind, i):
            def f():
                a = self.a
                if i == 0:
                    a("s_mul_i32 s%d, s%d, %d" % (sT3, sWAVE, 4096 if kind else 4160))
                    a("s_add_u32 m0, s%d, %d" % (sT3, slot * SLOT1 + (XPART if kind else 0)))
                    a("s_nop 0")
                if kind == 0:
                    self.vmem("buffer_load_dwordx4 v%d, s[%d:%d], s%d offen offset:%d lds" % (vDX + i, SRD_X, SRD_X + 3, sT0, 1040 * i), tag)
                else:
                    self.vmem("buffer_load_dwordx4 v%d, s[%d:%d], s%d offen offset:%d lds" % (vDW + i, SRD_W1, SRD_W1 + 3, sT1, 1024 * i), tag)
            return f
        for kind in (0, 1):
            for i in range(4): ops.append(mk(kind, i))
        return ops
    def w2_dma_ops(self, ks0, nks=4):
        ops = []
        def mk(ks, j):
            def f():
                a = self.a
                if j == 0:
                    a("s_lshl_b32 s%d, s%d, 13" % (sT3, sWAVE))
                    a("s_add_u32 m0, s%d, %d" % (sT3, W2BASE[(ks >> 2) % 3] + (ks & 3) * 2048))
                    assert ks == self.w2next, (ks, self.w2next)
                    self.w2next += 2
                    a("s_nop 0")
                self.vmem("buffer_load_dwordx4 v%d, s[%d:%d], s%d offen offset:%d lds" % (vD2 + j, SRD_W2, SRD_W2 + 3, sW2A, 1024 * j), "w2_%d" % (ks + (j >> 1)))
                if j == 3 and ks < 26:
                    a("s_add_u32 s%d, s%d, 32768" % (sW2A, sW2A))
                    a("s_cmp_eq_u32 s%d, s%d" % (sW2A, sW2B))
                    a("s_cselect_b32 s%d, s%d, s%d" % (sW2A, sW2Z, sW2A))
            return f
        for ks in range(ks0, ks0 + nks, 2):
            for j in range(4): ops.append(mk(ks, j))
        return ops
    def w2_setup(self):
        a = self.a
        t = vT
        a("v_lshrrev_b32 v%d, 3, v1" % t)
        a("v_and_b32 v%d, 7, v1" % (t + 1))
        a("v_bfe_u32 v%d, v1, 4, 1" % (t + 2))
        a("v_lshlrev_b32 v%d, 2, v%d" % (t + 2, t + 2))
        a("v_xor_b32 v%d, v%d, v%d" % (t + 1, t + 1, t + 2))
        a("v_lshlrev_b32 v%d, 4, v%d" % (t + 1, t + 1))
        a("v_lshl_add_u32 v%d, v%d, 10, v%d" % (vD2, t, t + 1))
        for j in range(1, 4): a("v_add_u32 v%d, %d, v%d" % (vD2 + j, j * 7168, vD2))
        a("s_mul_i32 s%d, s%d, 28" % (sT3, sWAVE))
        a("s_lshl_b32 s%d, s%d, 14" % (sW2Z, sT3))
        a("s_lshl_b32 s%d, s%d, 7" % (sW2A, sDB))
        a("s_add_u32 s%d, s%d, s%d" % (sW2Z, sW2Z, sW2A))
        a("s_add_u32 s%d, s%d, %d" % (sW2B, sW2Z, 28 * 16384))
        a("s_lshl_b32 s%d, s%d, 14" % (sW2A, sHA))
        a("s_add_u32 s%d, s%d, s%d" % (sW2A, sW2A, sW2Z))
        a("s_mul_i32 s%d, s%d, 224" % (sHZ, sMB))
        a("s_add_u32 s%d, s%d, s%d" % (sHZ, sHZ, sT3))
        a("s_lshl_b32 s%d, s%d, 10" % (sHZ, sHZ))
        a("s_add_u32 s%d, s%d, %d" % (sHB, sHZ, 28 * 1024))
        a("s_lshl_b32 s%d, s%d, 10" % (sHA, sHA))
        a("s_add_u32 s%d, s%d, s%d" % (sHA, sHA, sHZ))
        a("v_bfe_u32 v%d, v1, 2, 2" % t)
        a("v_lshrrev_b32 v%d, 5, v1" % (t + 1))
        a("v_lshl_add_u32 v%d, v%d, 2, v%d" % (t + 1, t + 1, t))
        a("v_lshlrev_b32 v%d, 7, v%d" % (t + 1, t + 1))
        a("v_lshrrev_b32 v%d, 1, v%d" % (t, t))
        a("v_lshl_add_u32 v%d, v%d, 6, v%d" % (t + 1, t, t + 1))
        a("v_bfe_u32 v%d, v1, 4, 1" % t)
        a("v_lshl_add_u32 v%d, v%d, 5, v%d" % (t + 1, t, t + 1))
        a("v_and_b32 v%d, 3, v1" % t)
        a("v_lshl_add_u32 v%d, v%d, 3, v%d" % (t + 1, t, t + 1))
        a("s_lshl_b32 s%d, s%d, 13" % (sT3, sWAVE))
        a("v_add_u32 v%d, s%d, v%d" % (vA2, sT3, t + 1))
        a("v_xor_b32 v%d, 64, v%d" % (vA2 + 1, vA2))
        a("v_add_u32 v%d, %d, v%d\nv_add_u32 v%d, %d, v%d" % (vA2 + 2, 2 * SLOT1, vA2, vA2 + 3, 2 * SLOT1, vA2 + 1))
        a("v_lshlrev_b32 v%d, 4, v1" % vH0)
        a("v_add_u32 v%d, %d, v%d" % (vH1, 112 * 1024, vH0))
    def g1_addr(self):
        a = self.a
        t = vT
        a("v_lshrrev_b32 v%d, 5, v1" % (t + 1))
        a("v_bfe_u32 v%d, v1, 3, 2" % t)
        a("v_mul_u32_u24 v%d, 1040, v%d" % (t, t))
        a("v_and_b32 v%d, 7, v1" % (t + 2))
        a("v_lshl_add_u32 v%d, v%d, 7, v%d" % (t, t + 2, t))
        a("v_lshl_add_u32 v%d, v%d, 4, v%d" % (t, t + 1, t))
        a("s_and_b32 s%d, s%d, 1" % (sT3, sWAVE))
        a("s_mul_i32 s%d, s%d, 8320" % (sT3, sT3))
        a("s_lshr_b32 s%d, s%d, 1" % (sT2, sWAVE))
        a("s_mul_i32 s%d, s%d, 4160" % (sT2, sT2))
        a("s_add_u32 s%d, s%d, s%d" % (sM0, sT3, sT2))
        a("s_sub_u32 s%d, s%d, s%d" % (sM1, sT3, sT2))
        a("s_add_u32 s%d, s%d, 4160" % (sM1, sM1))
        a("v_bfe_u32 v%d, v1, 1, 1" % (t + 2))
        a("v_lshlrev_b32 v%d, 6, v%d" % (t + 2, t + 2))
        a("v_xor_b32 v%d, 64, v%d" % (t + 3, t + 2))
        for x, s in ((0, sM0), (1, sM1)):
            a("v_add3_u32 v%d, v%d, v%d, s%d" % (vAX + 4 * x, t, t + 2, s))
            a("v_add3_u32 v%d, v%d, v%d, s%d" % (vAX + 4 * x + 1, t, t + 3, s))
            a("v_add_u32 v%d, %d, v%d\nv_add_u32 v%d, %d, v%d" % (vAX + 4 * x + 2, 2 * SLOT1, vAX + 4 * x, vAX + 4 * x + 3, 2 * SLOT1, vAX + 4 * x + 1))
        a("v_bfe_u32 v%d, v1, 2, 2" % t)
        a("v_lshl_add_u32 v%d, v%d, 3, v%d" % (t + 3, t + 1, t))
        a("v_lshlrev_b32 v%d, 8, v%d" % (t + 3, t + 3))
        a("v_xor_b32 v%d, s%d, v%d" % (t, sWAVE, t))
        a("v_lshl_add_u32 v%d, v%d, 6, v%d" % (t + 3, t, t + 3))
        a("v_bfe_u32 v%d, v1, 4, 1" % t)
        a("v_lshl_add_u32 v%d, v%d, 5, v%d" % (t + 3, t, t + 3))
        a("v_and_b32 v%d, 3, v1" % t)
        a("v_lshl_add_u32 v%d, v%d, 3, v%d" % (t + 3, t, t + 3))
        a("v_add_u32 v%d, %d, v%d" % (vAW, XPART, t + 3))
        a("v_xor_b32 v%d, 64, v%d" % (t + 3, t + 3))
        a("v_add_u32 v%d, %d, v%d" % (vAW + 2, XPART, t + 3))
        a("v_add_u32 v%d, %d, v%d\nv_add_u32 v%d, %d, v%d" % (vAW + 1, 2 * SLOT1, vAW, vAW + 3, 2 * SLOT1, vAW + 2))
        a("v_lshrrev_b32 v%d, 4, v1" % t)
        a("v_xor_b32 v%d, v%d, v1" % (t, t))
        a("v_and_b32 v%d, 1, v%d" % (t, t))
        a("v_subrev_u32 v%d, 1, v%d" % (t, t))
        for k in range(4): a("v_and_b32 v%d, 0x3f803f80, v%d" % (vONE + k, t))
    def g1_reads(self, g):
        c, ks = g >> 2, g & 3
        slot = c % 3
        hi, so = slot >> 1, (slot & 1) * SLOT1
        B = vFR + 16 * (g & 1)
        X0, X1, W0, W1 = B, B + 4, B + 8, B + 12
        ax = vAX + 2 * hi + (ks >> 1)
        xo = so + 32 * (ks & 1)
        aw = vAW + hi
        t = "g%d" % g
        return [
            ("ds_read_b128 v[%d:%d], v%d offset:%d" % (X0, X0 + 3, ax, xo), t + "a"),
            ("ds_read_b64_tr_b16 v[%d:%d], v%d offset:%d" % (W0, W0 + 1, aw, so + ks * 4096), t + "a"),
            ("ds_read_b64_tr_b16 v[%d:%d], v%d offset:%d" % (W0 + 2, W0 + 3, aw, so + ks * 4096 + 1024), t + "a"),
            ("ds_read_b128 v[%d:%d], v%d offset:%d" % (X1, X1 + 3, ax + 4, xo), t + "b"),
            ("ds_read_b64_tr_b16 v[%d:%d], v%d offset:%d" % (W1, W1 + 1, aw + 2, so + ks * 4096), t + "c"),
            ("ds_read_b64_tr_b16 v[%d:%d], v%d offset:%d" % (W1 + 2, W1 + 3, aw + 2, so + ks * 4096 + 1024), t + "c"),
        ]
    def g1_mfma(self, g, i):
        B = vFR + 16 * (g & 1)
        ws, xs = i >> 1, i & 1
        D = vACC + 16 * i
        C = "0" if g == 0 else "v[%d:%d]" % (D, D + 15)
        self.a("v_mfma_f32_32x32x16_bf16 v[%d:%d], v[%d:%d], v[%d:%d], %s" % (D, D + 15, B + 8 + 4 * ws, B + 11 + 4 * ws, B + 4 * xs, B + 3 + 4 * xs, C))
    def g1_dots(self, g):
        B = vFR + 16 * (g & 1)
        r = []
        if self.o.get("nodots"): return r
        r.append("v_mfma_f32_16x16x32_bf16 v[%d:%d], v[%d:%d], v[%d:%d], %s" % (vRS, vRS + 3, vONE, vONE + 3, B, B + 3, "0" if g == 0 else "v[%d:%d]" % (vRS, vRS + 3)))
        r.append("v_mfma_f32_16x16x32_bf16 v[%d:%d], v[%d:%d], v[%d:%d], %s" % (vCSUM, vCSUM + 3, vONE, vONE + 3, B + 8, B + 11, "0" if g == 0 else "v[%d:%d]" % (vCSUM, vCSUM + 3)))
        return r
    def gemm1(self):
        a = self.a
        a.c("==== GEMM1")
        self.wait_vm("c0"); a("s_barrier")
        self.ts()
        for r, tg in self.g1_reads(0): self.dsop(r, tg)
        for c in range(8):
            if c <= 5:
                dma = self.g1_dma_ops((c + 2) % 3, "c%d" % (c + 2)); self.chunk_soffsets()
                if self.o["w2early"] == 4 and c >= 4: dma = dma + self.w2_dma_ops(2 * (c - 4), 2)
                if self.o["w2early"] == 3 and c in (3, 5): dma = dma + self.w2_dma_ops(c - 3, 2)
            else:
                dma = self.w2_dma_ops(4 * (c - 5))
            early = []
            if c == 7:
                self.wait_vm("w2_3")
                for q in range(4): early += self.rdW(q)
            if c == 1: self.nonce_load()
            for ks in range(4):
                g = 4 * c + ks
                t = "g%d" % g
                nxt = self.g1_reads(g + 1) if g < 31 else []
                dots = self.g1_dots(g)
                if g == 31:
                    self.wait_ds()
                    for d in dots: a(d)
                    self.g1_mfma(g, 0); self.g1_mfma(g, 1)
                    self.g1_sums_out()
                    self.g1_mfma(g, 2); self.g1_mfma(g, 3)
                    continue
                if ks == 3:
                    self.wait_ds()
                    self.wait_vm("c%d" % (c + 1)); a("s_barrier")
                    if self.o.get("g1ts"): self.ts()
                for i in range(4):
                    if i < 3: self.wait_ds(t + "abc"[i])
                    self.g1_mfma(g, i)
                    for r, tg in nxt[2 * i:2 * i + 2]: self.dsop(r, tg)
                    for d in (dots[(i >> 1):(i >> 1) + 1] if (i & 1) == 0 else []): a(d)
                    if ks < 3 and (i < 3 or len(dma) > 3 * (2 - ks)) and dma: dma.pop(0)()
                    if i in (0, 3) or ks == 0:
                        for r, tg in early[:2]: self.dsop(r, tg)
                        early = early[2:]
            assert not dma and not early
    def g1_sums_out(self):
        a = self.a
        t = vT
        a("v_and_b32 v%d, 31, v1" % (t + 2))
        a("v_lshlrev_b32 v%d, 2, v%d" % (t + 2, t + 2))
        a("v_and_b32 v%d, 16, v1" % t)
        a("v_cmp_ne_u32 vcc, 0, v%d" % t)
        a("s_and_b32 s%d, s%d, 1" % (sT0, sWAVE))
        a("s_lshr_b32 s%d, s%d, 1" % (sT1, sWAVE))
        a("s_lshl_b32 s%d, s%d, 1" % (sT2, sT0))
        a("s_add_u32 s%d, s%d, s%d" % (sT2, sT2, sT1))
        a("s_lshl_b32 s%d, s%d, 7" % (sT2, sT2))
        a("s_add_u32 s%d, s%d, %d" % (sT2, sT2, L_SUM))
        a("s_lshl_b32 s%d, s%d, 7" % (sT3, sWAVE))
        a("s_add_u32 s%d, s%d, %d" % (sT3, sT3, L_SUM + 512))
        a("v_cndmask_b32 v%d, v%d, v%d, vcc" % (t, vRS, vRS + 1))
        a("v_cndmask_b32 v%d, v%d, v%d, vcc" % (t + 1, vCSUM, vCSUM + 1))
        a("v_mul_f32 v%d, 0x3b000000, v%d" % (t, t))
        a("v_add_u32 v%d, s%d, v%d" % (t + 4, sT3, t + 2))
        a("v_cvt_pk_bf16_f32 v%d, v%d, v%d" % (t, t, t))
        a("v_add_u32 v%d, s%d, v%d" % (t + 3, sT2, t + 2))
        a("v_and_b32 v%d, 0xffff0000, v%d" % (vMEAN, t))
        self.dsop("ds_write_b32 v%d, v%d" % (t + 4, t + 1))
        self.dsop("ds_write_b32 v%d, v%d" % (t + 3, vMEAN))
        a("v_xor_b32 v%d, 128, v%d" % (t + 3, t + 3))
        a("v_lshrrev_b32 v%d, 5, v1" % (t + 5))
        a("v_lshl_add_u32 v%d, v%d, 4, s%d" % (t + 4, t + 5, sT3))
        a("v_xor_b32 v%d, 128, v%d" % (t + 5, t + 4))
    def g1_epilogue(self):
        a = self.a
        t = vT
        a.c("==== GEMM1 epilogue: h = relu(acc - mean*colsum) in fragment order")
        self.wait_ds()
        a("s_barrier")
        self.dsop("ds_read_b32 v%d, v%d" % (vMEAN + 2, t + 3), "cs0")
        for k in range(8):
            self.dsop("ds_read_b128 v[%d:%d], v%d offset:%d" % (vCS + 4 * k, vCS + 4 * k + 3, t + 4 + (k >> 2), 32 * (k & 3)), "cs%d" % (k >> 1))
        self.ts() if self.o.get("g1ts") else None
        a("s_lshl_b32 s%d, s%d, 1" % (sT3, sMT))
        a("s_add_u32 s%d, s%d, s%d" % (sT3, sT3, sT0))
        a("s_lshl_b32 s%d, s%d, 1" % (sT2, sSL))
        a("s_add_u32 s%d, s%d, s%d" % (sT2, sT2, sT1))
        a("s_mul_i32 s%d, s%d, 28" % (sFLG, sT3))
        a("s_add_u32 s%d, s%d, s%d" % (sFLG, sFLG, sT2))
        a("s_lshl_b32 s%d, s%d, 7" % (sFLG, sFLG))
        a("s_add_u32 s%d, s%d, 0x%x" % (sFLG, sFLG, WS_FH))
        a("s_mul_i32 s%d, s%d, 56" % (sT3, sT3))
        a("s_add_u32 s%d, s%d, s%d" % (sT3, sT3, sT2))
        a("s_lshl_b32 s%d, s%d, 12" % (sT3, sT3))
        a("s_mul_i32 s%d, s%d, %d" % (sT1, sT1, 112 * 1024))
        a("s_lshl_b32 s%d, s%d, 11" % (sT0, sT0))
        a("s_add_u32 s%d, s%d, s%d" % (sH00, sT3, sT1))
        a("s_sub_u32 s%d, s%d, s%d" % (sH00 + 1, sT3, sT1))
        a("s_add_u32 s%d, s%d, %d" % (sH00 + 1, sH00 + 1, 112 * 1024))
        for x in range(2):
            a("s_sub_u32 s%d, s%d, s%d" % (sH00 + 2 + x, sH00 + x, sT0))
            a("s_add_u32 s%d, s%d, 2048" % (sH00 + 2 + x, sH00 + 2 + x))
            a("s_add_u32 s%d, s%d, s%d" % (sH00 + x, sH00 + x, sT0))
        n = 0
        w2 = self.w2_dma_ops(12)[:self.o["epidma"]]
        for ws in range(2):
            for sp in range(2):
                for xs in range(2):
                    D = vACC + 16 * (2 * ws + xs)
                    Q = vFR + 4 * n; n += 1
                    self.wait_ds("cs%d" % (2 * ws + sp))
                    for k in range(4):
                        r = 8 * sp + 2 * k
                        a("v_pk_fma_f32 v[%d:%d], v[%d:%d], v[%d:%d], v[%d:%d] op_sel_hi:[1,0,1] neg_lo:[0,1,0] neg_hi:[0,1,0]" %
                          (D + r, D + r + 1, vCS + 16 * ws + r, vCS + 16 * ws + r + 1, vMEAN + 2 * xs, vMEAN + 2 * xs + 1, D + r, D + r + 1))
                    for k in range(4):
                        r = 8 * sp + 2 * k
                        a("v_cvt_pk_bf16_f32 v%d, v%d, v%d" % (Q + k, D + r, D + r + 1))
                    for k in range(4):
                        a("v_pk_max_i16 v%d, v%d, 0" % (Q + k, Q + k))
                    self.vmem("buffer_store_dwordx4 v[%d:%d], v%d, s[%d:%d], s%d offen offset:%d sc1" %
                              (Q, Q + 3, vH0, SRD_WS, SRD_WS + 3, sH00 + 2 * ws + xs, sp * 1024), "h")
                    for _ in range(-(-self.o["epidma"] // 8)):
                        if w2: w2.pop(0)()
                    if self.o.get("hst"): self.a.lines[-1] = self.a.lines[-1].replace(" sc1", ["", "", " nt"][self.o["hst"]])
    def wreg(self, s):
        return 128 + 8 * (((s if s < 16 else (s & 1)) + 12) % 16)
    def rdW(self, s):
        base = W2BASE[(s >> 2) % 3]
        hi = 1 if base >= 2 * SLOT1 else 0
        o = base - hi * 2 * SLOT1 + (s & 3) * 2048
        R = self.wreg(s)
        return [("ds_read_b64_tr_b16 v[%d:%d], v%d offset:%d" % (R + 4 * dt + 2 * tt, R + 4 * dt + 2 * tt + 1, vA2 + 2 * hi + dt, o + 1024 * tt), "W%d_%d" % (s, dt))
                for dt in range(2) for tt in range(2)]
    def toregs(self, s0, s1):
        for s in range(s0, s1):
            self.wait_vm("w2_%d" % s)
            for r, tg in self.rdW(s): self.dsop(r, tg)
        self.wait_ds()
    def gemm2(self, spare_join):
        a = self.a
        t = vT
        a.c("==== publish h, bring the rest of w2 on chip (k-steps 0..15 end up in registers, 16..27 in LDS)")
        for k in range(self.w2next, 16, 2):
            for f in self.w2_dma_ops(k, 2): f()
        a.label(spare_join)
        self.toregs(4, 8)
        ops = self.w2_dma_ops(16)
        hs = self.o["hsplit"]
        for f in ops[:hs]: f()
        Ls = a.newlabel("nopub")
        a("s_cmp_eq_u32 s%d, 7" % sDB)
        a("s_cbranch_scc1 %s" % Ls)
        save = list(self.vm)
        self.get_nonce()
        self.wait_vm("h")
        self.publish(sFLG, vT)
        self.vm = save
        a.label(Ls)
        self.ts()
        for f in ops[hs:]: f()
        self.toregs(8, 12)
        for f in self.w2_dma_ops(20): f()
        self.toregs(12, 16)
        for f in self.w2_dma_ops(24): f()
        a("v_min_u32 v%d, 6, v1" % t)
        a("v_lshlrev_b32 v%d, 7, v%d" % (t, t))
        a("s_mul_i32 s%d, s%d, 28" % (sT3, sMB))
        a("s_mul_i32 s%d, s%d, 7" % (sT2, sWAVE))
        a("s_add_u32 s%d, s%d, s%d" % (sT3, sT3, sT2))
        a("s_lshl_b32 s%d, s%d, 7" % (sT3, sT3))
        a("s_add_u32 s%d, s%d, 0x%x" % (sT3, sT3, WS_FH))
        self.ts()
        self.poll("buffer_load_dword v%d, v%d, s[%d:%d], s%d offen sc1" % (vFL, t, SRD_WS, SRD_WS + 3, sT3), sleep=self.o["hsleep"])
        self.ts()
        a.c("==== GEMM2")
        AH = self.o["ah"]
        free = [24 + 8 * k for k in range(5)]
        hslot = {}
        def hreg(s):
            if s not in hslot:
                ok = [r for r in free if not (r in (self.wreg(0), self.wreg(1)) and s >= 15) and not (r in (128, 136) and s >= 20)]
                hslot[s] = ok[0]; free.remove(ok[0])
            return hslot[s]
        def ldH(s):
            R = hreg(s)
            fl = ["sc1", "", "nt", "sc0 sc1"][self.o.get("hfl", 0)]
            self.vmem("buffer_load_dwordx4 v[%d:%d], v%d, s[%d:%d], s%d offen %s" % (R, R + 3, vH0, SRD_WS, SRD_WS + 3, sHA, fl), "h%d" % s)
            self.vmem("buffer_load_dwordx4 v[%d:%d], v%d, s[%d:%d], s%d offen %s" % (R + 4, R + 7, vH1, SRD_WS, SRD_WS + 3, sHA, fl), "h%d" % s)
            if s < 27 or self.o.get("twice"):
                a("s_add_u32 s%d, s%d, 1024" % (sHA, sHA))
                a("s_cmp_eq_u32 s%d, s%d" % (sHA, sHB))
                a("s_cselect_b32 s%d, s%d, s%d" % (sHA, sHZ, sHA))
        nxtH = 5
        for s in range(5): ldH(s)
        for s in range(28):
            R = hreg(s)
            Wr = self.wreg(s)
            nxt = self.rdW(s + 1) if 16 <= s + 1 < 28 else []
            self.wait_vm("h%d" % s)
            if self.o.get("g2ts") and s % 4 == 0: self.ts()
            for i in range(4):
                dt, tt = i >> 1, i & 1
                if tt == 0: self.wait_ds("W%d_%d" % (s, dt))
                D = vACC + 16 * i
                if not self.o.get("nog2m"): a("v_mfma_f32_32x32x16_bf16 v[%d:%d], v[%d:%d], v[%d:%d], %s" % (D, D + 15, Wr + 4 * dt, Wr + 4 * dt + 3, R + 4 * tt, R + 4 * tt + 3,
                                                                              "0" if s == 0 else "v[%d:%d]" % (D, D + 15)))
                if i < 2:
                    for r, tg in nxt[2 * i:2 * i + 2]: self.dsop(r, tg)
            if s == self.o["mark"]:
                a("v_mov_b32 v%d, %d\nv_mov_b32 v%d, 1" % (t, L_CNT + 12, t + 1))
                self.dsop("ds_write_b32 v%d, v%d" % (t, t + 1))
            free.append(R)
            if s < 16: free.append(self.wreg(s))
            for _ in range(2):
                if nxtH < 28 and nxtH - s <= AH:
                    ldH(nxtH); nxtH += 1
            if s == 20:
                a("v_and_b32 v%d, 31, v1" % t)
                a("v_lshrrev_b32 v%d, 5, v1" % (t + 1))
                a("v_and_b32 v%d, 15, v1" % (t + 2))
                a("v_xor_b32 v%d, v%d, v%d" % (t + 1, t + 1, t + 2))
                a("v_lshlrev_b32 v%d, 4, v%d" % (t + 1, t + 1))
                a("v_lshl_add_u32 v%d, v%d, 8, v%d" % (t + 1, t, t + 1))
                a("s_lshl_b32 s%d, s%d, 13" % (sT3, sWAVE))
                a("v_add_u32 v%d, s%d, v%d" % (128, sT3, t + 1))
                for k in range(1, 8): a("v_xor_b32 v%d, %d, v%d" % (128 + k, 32 * k, 128))
                for k in range(8): a("v_add_u32 v%d, %d, v%d" % (136 + k, W2BASE[1], 128 + k))
        self.ts()
        a("s_nop 7")
        for i in range(4):
            dt, tt = i >> 1, i & 1
            for g in range(4):
                D = vACC + 16 * i + 4 * g
                self.dsop("ds_write_b128 v%d, v[%d:%d] offset:%d" % (128 + 8 * tt + 4 * dt + g, D, D + 3, 0))
        self.wait_ds()
        a("s_barrier")
        self.ts()

    def spare_loads(self):
        a = self.a
        a.c("==== spare workgroup: 64 rows of x into LDS (row r at r*1040; wave loads rows 16w..16w+15)")
        if self.o["ctouch"]: self.code_touch()
        a("v_lshlrev_b32 v%d, 4, v1" % vDX)
        a("s_lshl_b32 s%d, s%d, 1" % (sT0, sMT))
        a("s_add_u32 s%d, s%d, s%d" % (sT0, sT0, sJ))
        a("s_mov_b32 s%d, s%d" % (sSL, sT0))
        a("s_lshl_b32 s%d, s%d, 16" % (sT0, sT0))
        a("s_lshl_b32 s%d, s%d, 14" % (sT1, sWAVE))
        a("s_add_u32 s%d, s%d, s%d" % (sT0, sT0, sT1))
        a("s_mul_i32 s%d, s%d, %d" % (sT1, sWAVE, 16 * LNROW))
        for i in range(16):
            a("s_add_u32 m0, s%d, %d" % (sT1, i * LNROW))
            a("s_add_u32 s%d, s%d, %d" % (sT2, sT0, i * 1024))
            self.vmem("buffer_load_dwordx4 v%d, s[%d:%d], s%d offen lds" % (vDX, SRD_X, SRD_X + 3, sT2), "ln")
    def w2_touch(self):
        a = self.a
        a("v_lshlrev_b32 v%d, 7, v1" % (vDX + 1))
        a("s_mul_i32 s%d, s%d, %d" % (sT0, sSL, 56 * 1024))
        a("s_lshl_b32 s%d, s%d, 14" % (sT1, sWAVE))
        a("s_add_u32 s%d, s%d, s%d" % (sT0, sT0, sT1))
        a("s_add_u32 s%d, s%d, 8192" % (sT1, sT0))
        a("s_cmp_eq_u32 s%d, 3" % sWAVE)
        a("s_cselect_b32 s%d, 0x7ff00000, s%d" % (sT1, sT1))
        self.vmem("buffer_load_dword v%d, v%d, s[%d:%d], s%d offen" % (vDX + 2, vDX + 1, SRD_W2, SRD_W2 + 3, sT0), "wt")
        self.vmem("buffer_load_dword v%d, v%d, s[%d:%d], s%d offen" % (vDX + 3, vDX + 1, SRD_W2, SRD_W2 + 3, sT1), "wt")
    def code_touch(self):
        a = self.a
        a("s_getpc_b64 s[%d:%d]" % (SRD_W1, SRD_W1 + 1))
        a.label("L_PCREF")
        a("s_sub_u32 s%d, s%d, L_PCREF - %s" % (SRD_W1, SRD_W1, NAME))
        a("s_subb_u32 s%d, s%d, 0" % (SRD_W1 + 1, SRD_W1 + 1))
        a("s_mov_b32 s%d, L_CODE_END - %s" % (SRD_W1 + 2, NAME))
        a("s_mov_b32 s%d, 0x20000" % (SRD_W1 + 3))
        a("v_lshlrev_b32 v%d, 7, v1" % (vT + 6))
        a("s_lshr_b32 s%d, s2, 6" % sT0)
        a("s_lshl_b32 s%d, s%d, 13" % (sT0, sT0))
        a("s_cmp_eq_u32 s%d, 0" % sWAVE)
        a("s_cselect_b32 s%d, s%d, 0x7ff00000" % (sT0, sT0))
        a("buffer_load_dword v%d, v%d, s[%d:%d], s%d offen" % (vT + 5, vT + 6, SRD_W1, SRD_W1 + 3, sT0))
    def spare_path(self):
        a = self.a
        t = vT
        a.c("==== spare workgroup: statistics and transposed rows")
        if self.o["wtouch"]: self.w2_touch()
        a("v_and_b32 v%d, 15, v1" % t)
        a("v_lshrrev_b32 v%d, 4, v1" % (t + 1))
        a("v_lshl_add_u32 v%d, v%d, 2, v%d" % (t + 2, t, t + 1))
        a("v_mul_u32_u24 v%d, %d, v%d" % (t + 3, LNROW, t + 2))
        a("s_lshl_b32 s%d, s%d, 8" % (sT2, sWAVE))
        a("v_add_u32 v%d, s%d, v%d" % (t + 3, sT2, t + 3))
        a("v_mov_b32 v%d, 0\nv_mov_b32 v%d, 0" % (vRS, (vRS + 1)))
        a("s_mov_b32 s%d, 0x3f803f80" % sONES)
        self.wait_ds()
        if self.o["bv"]: a("s_barrier")
        self.wait_vm("ln"); a("s_barrier")
        self.ts()
        self.nonce_load()
        X = vACC
        for k in range(16): self.dsop("ds_read_b128 v[%d:%d], v%d offset:%d" % (X + 4 * k, X + 4 * k + 3, t + 3, 16 * k), "x%d" % k)
        a("v_lshlrev_b32 v%d, 13, v%d" % (t + 1, t + 1))
        a("v_lshl_add_u32 v%d, v%d, 4, v%d" % (t + 1, t, t + 1))
        a("s_lshl_b32 s%d, s%d, 19" % (sT0, sWAVE))
        a("s_lshl_b32 s%d, s%d, 8" % (sT1, sSL))
        a("s_add_u32 s%d, s%d, s%d" % (sT0, sT0, sT1))
        a("s_add_u32 s%d, s%d, 0x%x" % (sT0, sT0, WS_XN))
        for k in range(16):
            R = X + 4 * k
            self.wait_ds("x%d" % k)
            for q in range(4):
                a("v_dot2_f32_bf16 v%d, v%d, s%d, v%d" % (vRS, R + q, sONES, vRS))
                a("v_dot2_f32_bf16 v%d, v%d, v%d, v%d" % (vRS + 1, R + q, R + q, vRS + 1))
            a("v_permlane32_swap_b32 v%d, v%d" % (R, R + 2))
            a("v_permlane32_swap_b32 v%d, v%d" % (R + 1, R + 3))
            if k: a("s_add_u32 s%d, s%d, 32768" % (sT0, sT0))
            a("s_nop %d" % (0 if k else 1))
            a("v_permlane16_swap_b32 v%d, v%d" % (R, R + 1))
            a("v_permlane16_swap_b32 v%d, v%d" % (R + 2, R + 3))
            self.vmem("buffer_store_dwordx4 v[%d:%d], v%d, s[%d:%d], s%d offen sc1" % (R, R + 3, t + 1, SRD_WS, SRD_WS + 3, sT0), "lnst")
        a("v_lshlrev_b32 v%d, 3, v1" % (t + 4))
        a("s_lshl_b32 s%d, s%d, 9" % (sT2, sWAVE))
        a("s_add_u32 s%d, s%d, %d" % (sT2, sT2, L_LNS))
        a("v_add_u32 v%d, s%d, v%d" % (t + 5, sT2, t + 4))
        a("v_add_u32 v%d, %d, v%d" % (t + 4, L_LNS, t + 4))
        self.dsop("ds_write_b64 v%d, v[%d:%d]" % (t + 5, vRS, vRS + 1))
        self.wait_ds()
        a("s_barrier")
        self.ts()
        P = vFR
        for k in range(4): self.dsop("ds_read_b64 v[%d:%d], v%d offset:%d" % (P + 2 * k, P + 2 * k + 1, t + 4, 512 * k))
        self.wait_ds()
        a("v_pk_add_f32 v[%d:%d], v[%d:%d], v[%d:%d]" % (P, P + 1, P, P + 1, P + 2, P + 3))
        a("v_pk_add_f32 v[%d:%d], v[%d:%d], v[%d:%d]" % (P + 4, P + 5, P + 4, P + 5, P + 6, P + 7))
        a("v_pk_add_f32 v[%d:%d], v[%d:%d], v[%d:%d]" % (P, P + 1, P, P + 1, P + 4, P + 5))
        a("v_mul_f32 v%d, 0x3b000000, v%d\nv_mul_f32 v%d, 0x3b000000, v%d" % (P, P, P + 1, P + 1))
        a("v_fma_f32 v%d, -v%d, v%d, v%d" % (P + 1, P, P, P + 1))
        a("v_max_f32 v%d, 0, v%d" % (P + 1, P + 1))
        a("v_cvt_pk_bf16_f32 v%d, v%d, v%d" % (P + 2, P, P + 1))
        a("v_and_b32 v%d, 0xffff0000, v%d" % (P + 1, P + 2))
        a("v_add_f32 v%d, 0x3727c5ac, v%d" % (P + 1, P + 1))
        a("v_cvt_pk_bf16_f32 v%d, v%d, v%d" % (P + 1, P + 1, P + 1))
        a("v_and_b32 v%d, 0xffff0000, v%d" % (P + 1, P + 1))
        a("v_sqrt_f32 v%d, v%d" % (P + 1, P + 1))
        a("v_lshlrev_b32 v%d, 16, v%d" % (P, P + 2))
        a("v_cvt_pk_bf16_f32 v%d, v%d, v%d" % (P + 3, P, P + 1))
        a("v_lshlrev_b32 v%d, 2, v%d" % (t + 2, t + 2))
        a("s_lshl_b32 s%d, s%d, 8" % (sT2, sSL))
        a("s_add_u32 s%d, s%d, 0x%x" % (sT2, sT2, WS_ST))
        a("s_cmp_eq_u32 s%d, 0" % sWAVE)
        a("s_cselect_b32 s%d, s%d, 0x7ff00000" % (sT2, sT2))
        self.vmem("buffer_store_dword v%d, v%d, s[%d:%d], s%d offen sc1" % (P + 3, t + 2, SRD_WS, SRD_WS + 3, sT2), "lnst")
        self.get_nonce()
        self.wait_vm()
        self.ts()
        a("s_barrier")
        L = a.newlabel("noX")
        a("s_cmp_lg_u32 s%d, 0" % sWAVE)
        a("s_cbranch_scc1 %s" % L)
        a("v_lshlrev_b32 v%d, 7, v1" % t)
        a("v_mov_b32 v%d, s%d" % (t + 1, sNONCE))
        a("s_lshl_b32 s%d, s%d, 2" % (sT0, sSL))
        a("s_add_u32 s%d, s%d, 0x%x" % (sT0, sT0, WS_FX))
        a("s_mov_b64 exec, 0xff")
        a("buffer_store_dword v%d, v%d, s[%d:%d], s%d offen sc1" % (t + 1, t, SRD_WS, SRD_WS + 3, sT0))
        a("s_mov_b64 exec, -1")
        a.label(L)
        self.ts()
        for k in range(6): a("s_barrier")
        for k in range(0, 12, 4):
            for f in self.w2_dma_ops(k): f()
        self.toregs(0, 4)
        for f in self.w2_dma_ops(12): f()
        self.wait_vm()

    def cmul(self, d, x, y):
        a = self.a
        if not (self.o.get("pkc") == 2 or (self.o.get("pkc") == 1 and self.nb == 0)):
            a("v_mul_f32 v%d, v%d, v%d\nv_mul_f32 v%d, v%d, v%d" % (d, x, y, d + 1, x, y + 1))
            a("v_fma_f32 v%d, -v%d, v%d, v%d\nv_fmac_f32 v%d, v%d, v%d" % (d, x + 1, y + 1, d, d + 1, x + 1, y))
            return
        a("v_pk_mul_f32 v[%d:%d], v[%d:%d], v[%d:%d] op_sel_hi:[0,1]" % (d, d + 1, x, x + 1, y, y + 1))
        a("v_pk_fma_f32 v[%d:%d], v[%d:%d], v[%d:%d], v[%d:%d] op_sel:[1,1,0] op_sel_hi:[1,0,1] neg_lo:[0,1,0]" % (d, d + 1, x, x + 1, y, y + 1, d, d + 1))
    def k_poles(self, sidx, evals, full):
        a = self.a
        t = vT
        a("s_waitcnt lgkmcnt(0)"); self.ds = []
        a("s_lshr_b32 s%d, s%d, 1" % (sT1, sidx))
        a("s_lshl_b32 s%d, s%d, 4" % (sT1, sT1))
        a("s_lshr_b32 s%d, s%d, s%d" % (sT2, sLDT, sT1))
        a("s_lshl_b32 s%d, s%d, 16" % (sT2, sT2))
        if full:
            a("s_lshr_b32 s%d, s%d, s%d" % (sDSK, sDSK, sT1))
            a("s_lshl_b32 s%d, s%d, 16" % (sDSK, sDSK))
        a("v_mov_b32 v%d, 0x3fb8aa3b" % t)
        a("v_mul_f32 v%d, s%d, v%d" % (t, sT2, t))
        a("v_exp_f32 v%d, v%d" % (t, t))
        a("s_nop 0")
        a("v_cvt_pk_bf16_f32 v%d, v%d, v%d" % (t, t, t))
        a("v_and_b32 v%d, 0xffff0000, v%d" % (t, t))
        self.wait_vm("par")
        if full: self.ts()
        for k in range(4): a("v_mul_f32 v%d, v%d, v%d" % (vPAR + k, t, vPAR + k))
        a("v_mul_f32 v%d, 0x3fb8aa3b, v%d" % (vPAR, vPAR))
        a("v_mul_f32 v%d, 0.15915494, v%d" % (vPAR + 1, vPAR + 1))
        for Z, sc in evals:
            if sc:
                a("v_mul_f32 v%d, %s, v%d\nv_mul_f32 v%d, %s, v%d" % (t, sc, vPAR, t + 1, sc, vPAR + 1))
                e, p = t, t + 1
            else: e, p = vPAR, vPAR + 1
            a("v_fract_f32 v%d, v%d" % (t + 1, p))
            a("v_exp_f32 v%d, v%d" % (t, e))
            a("v_cos_f32 v%d, v%d" % (Z, t + 1))
            a("v_sin_f32 v%d, v%d" % (Z + 1, t + 1))
            a("s_nop 0")
            a("v_pk_mul_f32 v[%d:%d], v[%d:%d], v[%d:%d] op_sel_hi:[1,0]" % (Z, Z + 1, Z, Z + 1, t, t + 1))
    def f_vrows(self):
        a = self.a
        a.c("---- V rows and far rows of the kernel-generation table")
        AD, Z8, Z16, Z256, ZK, VV, PK, W = 64, 80, 82, 84, 86, 90, 94, 100
        a("s_lshl_b32 s%d, s%d, 12" % (sT3, sWAVE))
        a("s_add_u32 s%d, s%d, %d" % (sT3, sT3, L_TAB))
        a("v_lshl_add_u32 v%d, v1, 2, s%d" % (AD, sT3))
        for k in range(1, 16): a("v_xor_b32 v%d, %d, v%d" % (AD + k, 16 * k, AD))
        AU = 112
        a("s_mul_i32 s%d, s%d, %d" % (sT3, sWAVE, TABW - 4096))
        a("s_add_u32 s%d, s%d, %d" % (sT3, sT3, L_TABU - L_TAB))
        for k in range(12): a("v_add_u32 v%d, s%d, v%d" % (AU + k, sT3, AD + ((51 + k) & 15)))
        self.k_poles(sWAVE, ((Z8, "0x41000000"), (Z256, "0x43800000")), False)
        save = self.o.get("pkc"); self.o["pkc"] = 2
        self.cmul(Z16, Z8, Z8)
        self.cmul(ZK + 2, Z256, Z256)
        self.cmul(W, vPAR + 4, vPAR + 2)
        self.cmul(ZK, ZK + 2, ZK + 2)
        self.cmul(W + 2, W, Z8)
        a("v_mov_b32 v%d, 0x3f80" % PK)
        a("v_cvt_pk_bf16_f32 v%d, v%d, -v%d" % (PK + 1, Z16, Z16 + 1))
        self.cmul(W + 4, W + 2, Z8)
        self.dsop("ds_write_b32 v%d, v%d" % (AD, PK))
        pend = ["ds_write_b32 v%d, v%d offset:256" % (AD + 1, PK + 1)]
        prev = Z16
        for r in range(2, 16):
            cur = VV + 2 * (r & 1)
            self.cmul(cur, prev, Z16); prev = cur
            far = r - 2
            if far < 12:
                T, n = far // 3, far % 3
                src, dst = W + 6 * (T & 1) + 2 * n, W + 6 * ((T + 1) & 1) + 2 * n
                self.cmul(dst, src, ZK if T == 0 else Z256)
            while pend: self.dsop(pend.pop(0))
            p = PK + 2 * (r & 1)
            a("v_cvt_pk_bf16_f32 v%d, v%d, -v%d" % (p, cur, cur + 1))
            pend.append("ds_write_b32 v%d, v%d offset:%d" % (AD + r, p, 256 * r))
            if far < 12:
                a("v_cvt_pk_bf16_f32 v%d, v%d, v%d" % (p + 1, dst, dst + 1))
                pend.append("ds_write_b32 v%d, v%d offset:%d" % (AU + far, p + 1, 256 * (51 + far)))
        a("s_nop 0")
        while pend: self.dsop(pend.pop(0))
        self.o["pkc"] = save
    def s_bar_maybe(self, force=False):
        q = self.o["quota0"] if self.nb == 0 else self.o["quota"]
        if force or (self.ninstr() - self.lastb >= q and self.nb < self.nb_cap):
            self.a("s_barrier"); self.nb += 1; self.lastb = self.ninstr()
            k = self.nb - 1 - self.o["l2first"]
            if self.o["l2pf"] and 0 <= k < 7: self.l2_touch()

            if self.o.get("sts"): self.ts()
    def l2_touch(self):
        a = self.a
        self.vmem("buffer_load_dword v17, v16, s[%d:%d], s%d offen" % (SRD_W2, SRD_W2 + 3, sW2A), "l2")
        a("s_add_u32 s%d, s%d, 8192" % (sW2A, sW2A))
        a("s_cmp_eq_u32 s%d, s%d" % (sW2A, sW2B))
        a("s_cselect_b32 s%d, s%d, s%d" % (sW2A, sW2Z, sW2A))
    def s_entry(self):
        a = self.a
        t = vT
        a.label("L_SWAVE")
        a("s_sub_u32 s%d, s%d, 4" % (sSL, sWAVE))
        a("s_setprio %d" % self.o["sprio0"])
        self.srds(["dbg"])
        self.tag_store()
        self.srds(["ws", "x", "out", "w2"])
        if self.o["l2pf"]:
            a("v_lshlrev_b32 v16, 7, v1")
            a("s_lshr_b32 s%d, s2, 3" % sW2Z)
            a("s_mul_i32 s%d, s%d, %d" % (sW2Z, sW2Z, 56 * 1024))
            a("s_cmp_eq_u32 s%d, 3" % sSL)
            a("s_cselect_b32 s%d, s%d, 0x7ff00000" % (sW2Z, sW2Z))
            a("s_add_u32 s%d, s%d, %d" % (sW2B, sW2Z, 56 * 1024))
            a("s_and_b32 s%d, s2, 7" % sW2A)
            a("s_min_u32 s%d, s%d, 6" % (sW2A, sW2A))
            a("s_lshl_b32 s%d, s%d, 13" % (sW2A, sW2A))
            a("s_add_u32 s%d, s%d, s%d" % (sW2A, sW2A, sW2Z))
        if self.o["colpf"] >= 0:
            a("v_lshlrev_b32 v16, 10, v1")
            a("s_lshr_b32 s%d, s2, 6" % sW2A)
            a("s_mul_i32 s%d, s%d, %d" % (sW2A, sW2A, 448 * 1024))
            a("s_add_u32 s%d, s%d, %d" % (sW2A, sW2A, 128 * self.o["colpf"]))
            a("s_lshl_b32 s%d, s%d, 2" % (sT0, sDB))
            a("s_add_u32 s%d, s%d, s%d" % (sT0, sT0, sSL))
            a("s_cmp_eq_u32 s%d, 31" % sT0)
            a("s_cselect_b32 s%d, s%d, 0x7ff00000" % (sW2A, sW2A))
        a("v_mov_b32 v22, %d\nv_mov_b32 v23, 1" % L_CNT)
        a("s_waitcnt lgkmcnt(0)")
    def kgen(self):
        a = self.a
        a.c("==== kernel generation: K[l] = Re sum_n CB_n z_n^bf16(l)")
        self.nb, self.nb_cap, self.lastb = 0, 0, self.ninstr()
        AD = 128
        Z1, Z256 = 144, 148
        WR, VV, PK = 152, 186, 190
        KA, AA, BF, AF = 64, 96, 196, 212
        t = vT
        a("s_mul_i32 s%d, s%d, %d" % (sC, sSL, TABW))
        a("s_add_u32 s%d, s%d, %d" % (sC, sC, L_TABU))
        a("v_lshl_add_u32 v%d, v1, 2, s%d" % (AD, sC))
        for k in range(1, 16): a("v_xor_b32 v%d, %d, v%d" % (AD + k, 16 * k, AD))
        base = {0: 16, 1: 32, 2: 41, 3: 46}
        kk = [0, 1, 2, 2]
        a("v_and_b32 v%d, 15, v1" % t)
        a("v_lshrrev_b32 v%d, 4, v1" % (t + 1))
        def addr(dst, rowreg):
            a("v_and_b32 v%d, 15, v%d" % (t + 5, rowreg))
            a("v_xor_b32 v%d, v%d, v%d" % (t + 5, t + 5, t + 1))
            a("v_lshlrev_b32 v%d, 4, v%d" % (t + 5, t + 5))
            a("v_lshl_add_u32 v%d, v%d, 8, v%d" % (t + 5, rowreg, t + 5))
            a("v_add_u32 v%d, s%d, v%d" % (dst, sC, t + 5))
        addr(AA + 1, t)
        a("s_lshl_b32 s%d, s%d, 12" % (sT2, sSL))
        a("s_add_u32 s%d, s%d, %d" % (sT2, sT2, L_TAB))
        a("v_add_u32 v%d, s%d, v%d" % (AA, sT2, t + 5))
        a("v_add_u32 v%d, 4096, v%d" % (AA + 1, AA + 1))
        a("v_bfe_u32 v%d, v%d, 1, 1" % (t + 2, t))
        a("v_add_u32 v%d, v%d, v%d" % (t + 2, t + 2, t))
        a("v_lshrrev_b32 v%d, 1, v%d" % (t + 2, t + 2))
        a("v_add_u32 v%d, 32, v%d" % (t + 3, t + 2))
        addr(AA + 2, t + 3)
        a("v_and_b32 v%d, 3, v1" % (t + 2))
        a("v_min_u32 v%d, 2, v%d" % (t + 2, t + 2))
        a("v_bfe_u32 v%d, v1, 2, 1" % (t + 3))
        a("v_lshl_add_u32 v%d, v%d, 1, v%d" % (t + 3, t + 3, t + 2))
        a("v_bfe_u32 v%d, v1, 3, 1" % (t + 4))
        a("v_mul_u32_u24 v%d, 5, v%d" % (t + 4, t + 4))
        a("v_add3_u32 v%d, v%d, v%d, 41" % (t + 3, t + 3, t + 4))
        addr(AA + 3, t + 3)
        a("v_bfe_u32 v%d, v1, 2, 2" % (t + 3))
        a("v_mul_u32_u24 v%d, 3, v%d" % (t + 3, t + 3))
        a("v_add3_u32 v%d, v%d, v%d, 51" % (t + 3, t + 3, t + 2))
        addr(AA + 4, t + 3)
        XA, W = 106, 116
        a("s_and_b32 s%d, s%d, 1" % (sJ, sSL))
        a("v_lshl_add_u32 v%d, v1, 4, s%d" % (XA, sT2))
        a("s_xor_b32 s%d, s%d, 1" % (sT2, sSL))
        a("s_lshl_b32 s%d, s%d, 12" % (sT2, sT2))
        a("s_add_u32 s%d, s%d, %d" % (sT2, sT2, L_TAB))
        a("v_lshl_add_u32 v%d, v1, 4, s%d" % (XA + 1, sT2))
        for k in range(4): a("v_mov_b32 v%d, 0" % (W + k))
        a("v_and_b32 v%d, 31, v1" % (XA + 4))
        a("v_lshlrev_b32 v%d, 4, v%d" % (XA + 4, XA + 4))
        a("v_add_u32 v%d, %d, v%d" % (XA + 4, L_U, XA + 4))
        a("v_min_u32 v%d, 8, v1" % (XA + 5))
        a("v_lshlrev_b32 v%d, 2, v%d" % (XA + 5, XA + 5))
        a("s_lshr_b32 s%d, s%d, 1" % (sT2, sSL))
        a("s_mul_i32 s%d, s%d, 8320" % (sT2, sT2))
        a("s_add_u32 s%d, s%d, %d" % (sT2, sT2, L_K))
        a("v_add_u32 v%d, s%d, v%d" % (XA + 5, sT2, XA + 5))
        a("s_lshl_b32 s%d, s%d, 9" % (sT3, sJ))
        a("s_sub_u32 s%d, s%d, s%d" % (sT3, sT2, sT3))
        a("s_add_u32 s%d, s%d, 4088" % (sT3, sT3))
        a("v_lshlrev_b32 v%d, 5, v%d" % (t + 2, t))
        a("v_lshl_add_u32 v%d, v%d, 3, v%d" % (XA + 2, t + 1, t + 2))
        a("v_sub_u32 v%d, s%d, v%d" % (XA + 2, sT3, XA + 2))
        a("v_add_u32 v%d, 4158, v%d" % (XA + 6, XA + 2))
        a("s_lshl_b32 s%d, s%d, 6" % (sT3, sJ))
        a("s_sub_u32 s%d, s%d, 1" % (sT3, sT3))
        a("s_add_u32 s%d, s%d, 4144" % (sT1, sT2))
        a("v_mov_b32 v%d, s%d" % (t + 3, sT1))
        a("v_cmp_eq_u32 vcc, s%d, v1" % sT3)
        a("v_lshrrev_b32 v%d, s%d, v%d" % (t + 4, sJ, t + 1))
        a("v_lshl_add_u32 v%d, v%d, 9, v%d" % (t + 2, t + 4, t + 2))
        a("v_cndmask_b32 v%d, v%d, v%d, vcc" % (XA + 6, XA + 6, t + 3))
        a("v_and_b32 v%d, s%d, v%d" % (t + 4, sJ, t + 1))
        a("v_lshl_add_u32 v%d, v%d, 4, v%d" % (t + 2, t + 4, t + 2))
        a("s_mul_i32 s%d, s%d, 1040" % (sT3, sJ))
        a("s_add_u32 s%d, s%d, s%d" % (sT3, sT3, sT2))
        a("s_add_u32 s%d, s%d, 2016" % (sT3, sT3))
        a("v_sub_u32 v%d, s%d, v%d" % (XA + 3, sT3, t + 2))
        self.k_poles(sSL, ((Z1, None), (Z256, "0x43800000")), True)
        self.cmul(WR, vPAR + 4, vPAR + 2)
        self.nonce_load()
        pend = []
        for r in range(17):
            if r: self.cmul(WR + 2 * r, WR + 2 * (r - 1), Z1)
            if pend: self.dsop(pend.pop(0))
            if r < 16:
                p = PK + (r & 1)
                a("v_cvt_pk_bf16_f32 v%d, v%d, v%d" % (p, WR + 2 * r, WR + 2 * r + 1))
                pend.append("ds_write_b32 v%d, v%d offset:%d" % (AD + r, p, (16 + r) * 256))
        loc = {r: WR + 2 * r for r in range(17)}
        npk = 0
        for T in range(1, 4):
            for n, r in enumerate(range(0, 17, 1 << kk[T])):
                alt = (WR + 2 * (r + 1)) if r < 16 else VV
                dst = alt if loc[r] == WR + 2 * r else WR + 2 * r
                self.cmul(dst, loc[r], Z256); loc[r] = dst
                if pend: self.dsop(pend.pop(0))
                p = PK + (npk & 1); npk += 1
                a("v_cvt_pk_bf16_f32 v%d, v%d, v%d" % (p, dst, dst + 1))
                pend.append("ds_write_b32 v%d, v%d offset:%d" % (AD + ((base[T] + n) & 15), p, (base[T] + n) * 256))
        for ks in range(1, 4): a("v_xor_b32 v%d, %d, v%d" % (t + 1 + ks, 64 * ks, AA))
        self.dsop(pend.pop(0))
        self.wait_ds()
        if self.o.get("fine"): self.ts()
        if self.o["bv"]: a("s_barrier")
        else: self.s_bar_maybe(force=True)
        a("s_setprio %d" % self.o["sprio1"])
        seq = [(T, ks) for ks in range(4) for T in range(4)]
        NA = 11
        def rd(n):
            T, ks = seq[n]
            r = AA + 1 + T
            if T == 0: self.dsop("ds_read_b128 v[%d:%d], v%d" % (BF + 4 * ks, BF + 4 * ks + 3, t + 1 + ks if ks else AA))
            if ks: a("v_xor_b32 v%d, %d, v%d" % (r, 64 * (ks ^ (ks - 1)), r))
            k = AF + 4 * (n % NA)
            self.dsop("ds_read_b128 v[%d:%d], v%d" % (k, k + 3, r), "ka%d" % n)
        for n in range(NA): rd(n)
        for n in range(16):
            T, ks = seq[n]
            self.wait_ds("ka%d" % n)
            D = KA + 4 * T
            k = AF + 4 * (n % NA)
            a("v_mfma_f32_16x16x32_bf16 v[%d:%d], v[%d:%d], v[%d:%d], %s" % (D, D + 3, k, k + 3, BF + 4 * ks, BF + 4 * ks + 3,
                                                                          "0" if ks == 0 else "v[%d:%d]" % (D, D + 3)))
            if n + NA < 16: rd(n + NA)
        Lh, Lj = a.newlabel("khi"), a.newlabel("kj")
        self.colpf(0, self.o['col1'])
        a("s_cmp_lg_u32 s%d, 0" % sJ)
        a("s_nop 4")
        a("s_cbranch_scc1 %s" % Lh)
        for k in range(2): a("ds_write_b128 v%d, v[%d:%d] offset:%d" % (XA, KA + 4 + 4 * k, KA + 7 + 4 * k, 1024 * k))
        for k in range(4): a("v_mov_b32 v%d, v%d" % (KA + 4 + k + 16, KA + 12 + k))
        for k in range(4): a("v_mov_b32 v%d, v%d" % (KA + k + 16, KA + k))
        a("s_branch %s" % Lj)
        a.label(Lh)
        for k in range(2): a("ds_write_b128 v%d, v[%d:%d] offset:%d" % (XA, KA + 12 * k, KA + 3 + 12 * k, 1024 * k))
        for k in range(8): a("v_mov_b32 v%d, v%d" % (KA + k + 16, KA + 4 + k))
        a.label(Lj)
        a("s_waitcnt lgkmcnt(0)"); self.ds = []
        if self.o.get("fine"): self.ts()
        self.s_bar_maybe(force=True)
        for k in range(2): self.dsop("ds_read_b128 v[%d:%d], v%d offset:%d" % (KA + 4 * k, KA + 3 + 4 * k, XA + 1, 1024 * k))
        self.dsop("ds_write_b32 v%d, v%d offset:4096" % (XA + 5, W))
        Lz = a.newlabel("kz")
        a("s_cmp_lg_u32 s%d, 0" % sJ)
        a("s_cbranch_scc1 %s" % Lz)
        a("ds_write_b32 v%d, v%d offset:%d" % (XA + 5, W, 4160 + 4092))
        a.label(Lz)
        self.get_nonce()
        a("s_waitcnt lgkmcnt(0)"); self.ds = []
        for k in range(8): a("v_add_f32 v%d, v%d, v%d" % (KA + k, KA + k, KA + 16 + k))
        Q = AF
        a("v_cvt_pk_bf16_f32 v%d, v%d, v%d" % (Q, KA + 3, KA + 2))
        a("v_cvt_pk_bf16_f32 v%d, v%d, v%d" % (Q + 1, KA + 1, KA))
        a("v_cvt_pk_bf16_f32 v%d, v%d, v%d" % (Q + 2, KA + 2, KA + 1))
        if self.o["kwper"] == 1: self.s_bar_maybe(force=True)
        self.dsop("ds_write_b64 v%d, v[%d:%d]" % (XA + 2, Q, Q + 1))
        self.dsop("ds_write_b32 v%d, v%d offset:4160" % (XA + 2, Q + 2))
        self.dsop("ds_write_b16_d16_hi v%d, v%d offset:4164" % (XA + 2, Q + 1))
        self.dsop("ds_write_b16 v%d, v%d" % (XA + 6, Q))
        if self.o["kwper"] <= 2: self.s_bar_maybe(force=True)
        va, vb, vc = KA + 4, KA + 5, KA + 6
        Lh, Lj = a.newlabel("kfh"), a.newlabel("kfj")
        a("s_cmp_lg_u32 s%d, 0" % sJ)
        a("s_cbranch_scc1 %s" % Lh)
        Q = AF + 4
        for k, (lo, hi) in enumerate([(vc, vc), (vc, vc), (vb, vb), (vb, vb), (vb, vb), (vb, va), (va, va), (va, va),
                                      (vc, vc), (vc, vb), (vb, vb), (vb, vb), (vb, vb), (va, va), (va, va), (va, va)]):
            a("v_cvt_pk_bf16_f32 v%d, v%d, v%d" % (Q + k, lo, hi))
        for k in range(4): a("ds_write_b128 v%d, v[%d:%d] offset:%d" % (XA + 3, Q + 4 * k, Q + 4 * k + 3, 16 * (k & 1) + 4160 * (k >> 1)))
        a("s_branch %s" % Lj)
        a.label(Lh)
        for k, (lo, hi) in enumerate([(vc, vc), (vb, vb), (vb, va), (va, va), (vc, vb), (vb, vb), (va, va), (va, va)]):
            a("v_cvt_pk_bf16_f32 v%d, v%d, v%d" % (Q + k, lo, hi))
        for k in range(2): a("ds_write_b128 v%d, v[%d:%d] offset:%d" % (XA + 3, Q + 4 * k, Q + 4 * k + 3, 4160 * k))
        a.label(Lj)
        if self.o["kwper"] <= 2: self.s_bar_maybe(force=True)
        self.dsop("ds_write_b128 v%d, v[%d:%d]" % (XA + 4, W, W + 3))
        self.dsop("ds_write_b128 v%d, v[%d:%d] offset:4608" % (XA + 4, W, W + 3))
        self.dsop("ds_write_b128 v22, v[%d:%d]" % (W, W + 3))
        self.wait_ds()
        self.ts()
        self.colpf(self.o['col1'], 7)
        print("kgen barriers placed before the end:", self.nb)
        self.o["sts"] = 0
    def colpf(self, k0, k1):
        a = self.a
        if self.o["colpf"] >= 0:
            for k in range(k0, k1):
                self.vmem("buffer_load_dword v17, v16, s[%d:%d], s%d offen" % (SRD_W2, SRD_W2 + 3, sW2A), "col")
                if k < 6: a("s_add_u32 s%d, s%d, 65536" % (sW2A, sW2A))
    def stage_u(self):
        a = self.a
        t = vT
        a.c("==== stage the normalised channel pair")
        late = self.o["fxlate"]
        while self.nb < (7 if late == 3 else 6 + late): self.s_bar_maybe(force=True)
        a("s_setprio %d" % self.o["sprio"])
        a("v_and_b32 v%d, 7, v1" % t)
        a("v_lshlrev_b32 v%d, 2, v%d" % (t, t))
        a("s_and_b32 s%d, s2, 7" % sT0)
        a("s_lshl_b32 s%d, s%d, 2" % (sT0, sT0))
        a("s_add_u32 s%d, s%d, s%d" % (sT0, sT0, sSL))
        a("s_lshl_b32 s%d, s%d, 5" % (sT0, sT0))
        a("s_add_u32 s%d, s%d, 0x%x" % (sT2, sT0, WS_FX))
        ld = "buffer_load_dword v%d, v%d, s[%d:%d], s%d offen sc1" % (vFL, t, SRD_WS, SRD_WS + 3, sT2)
        self.vmem(ld, "poll")
        self.conv_addr()
        self.x_load()
        if late != 3: a("s_barrier")
        def cond_barrier():
            L = a.newlabel("nb")
            a("s_cmp_eq_u32 s%d, 0" % sJ)
            a("s_cbranch_scc1 %s" % L)
            a("s_barrier")
            a.label(L)
        if late == 2:
            self.poll(ld, "poll")
        else:
            self.wait_vm("poll")
            a("v_cmp_ne_u32 vcc, s%d, v%d" % (sNONCE, vFL))
            a("s_mov_b32 s%d, 1" % sJ)
            a("s_nop 0")
            a("s_cmp_eq_u64 vcc, 0")
            Lf = a.newlabel("fxfast")
            a("s_cbranch_scc1 %s" % Lf)
            a("s_mov_b32 s%d, 0" % sJ)
            for k in range(2 if late == 3 else 2 - late): a("s_barrier")
            save = list(self.vm)
            self.poll(ld)
            self.vm = save
            a.label(Lf)
        self.ts()
        D, S_, W = 128, 136, 144
        a("v_lshlrev_b32 v%d, 4, v1" % t)
        a("s_lshl_b32 s%d, s2, 13" % sT0)
        a("s_lshl_b32 s%d, s%d, 11" % (sT1, sSL))
        a("s_add_u32 s%d, s%d, s%d" % (sT0, sT0, sT1))
        a("s_add_u32 s%d, s%d, 0x%x" % (sT0, sT0, WS_XN))
        a("s_add_u32 s%d, s%d, 0x%x" % (sT1, sT1, WS_ST))
        for h in range(2):
            self.vmem("buffer_load_dwordx4 v[%d:%d], v%d, s[%d:%d], s%d offen offset:%d sc1" % (D + 4 * h, D + 4 * h + 3, t, SRD_WS, SRD_WS + 3, sT0, 1024 * h), "u%d" % h)
            self.vmem("buffer_load_dwordx4 v[%d:%d], v%d, s[%d:%d], s%d offen offset:%d sc1" % (S_ + 4 * h, S_ + 4 * h + 3, t, SRD_WS, SRD_WS + 3, sT1, 1024 * h), "u%d" % h)
        a("s_lshl_b32 s%d, s%d, 10" % (sT1, sSL))
        a("s_add_u32 s%d, s%d, %d" % (sT1, sT1, L_U + 512))
        a("v_lshl_add_u32 v%d, v1, 3, s%d" % (t + 1, sT1))
        if late != 2: cond_barrier()
        if late == 3: cond_barrier()
        for h in range(2):
            self.wait_vm("u%d" % h)
            if h == 1 and self.o.get("fine"): self.ts()
            for r in range(4):
                d, st, w = D + 4 * h + r, S_ + 4 * h + r, W + 4 * r
                a("v_and_b32 v%d, 0xffff0000, v%d" % (w + 2, st))
                a("v_rcp_f32 v%d, v%d" % (w + 2, w + 2))
                a("v_lshlrev_b32 v%d, 16, v%d" % (w + 3, st))
                a("v_lshlrev_b32 v%d, 16, v%d\nv_and_b32 v%d, 0xffff0000, v%d" % (w, d, w + 1, d))
                a("v_sub_f32 v%d, v%d, v%d\nv_sub_f32 v%d, v%d, v%d" % (w, w, w + 3, w + 1, w + 1, w + 3))
                a("v_cvt_pk_bf16_f32 v%d, v%d, v%d" % (d, w, w + 1))
                a("v_lshlrev_b32 v%d, 16, v%d\nv_and_b32 v%d, 0xffff0000, v%d" % (w, d, w + 1, d))
                a("v_mul_f32 v%d, v%d, v%d\nv_mul_f32 v%d, v%d, v%d" % (w, w, w + 2, w + 1, w + 1, w + 2))
            for ch in range(2):
                O = D + 4 * h + 2 * ch
                a("v_cvt_pk_bf16_f32 v%d, v%d, v%d" % (O, W + ch, W + 4 + ch))
                a("v_cvt_pk_bf16_f32 v%d, v%d, v%d" % (O + 1, W + 8 + ch, W + 12 + ch))
            for ch in range(2):
                O = D + 4 * h + 2 * ch
                self.dsop("ds_write_b64 v%d, v[%d:%d] offset:%d" % (t + 1, O, O + 1, 512 * h + 4608 * ch))
        self.sbar(cond_barrier if late == 0 else None)
        self.vmem("buffer_load_dword v%d, v%d, s[%d:%d], s%d offen sc1" % (self.ESD, self.ESD + 3, SRD_WS, SRD_WS + 3, sW2B), "ex")
    ESD, EX = 32, 24
    def x_load(self):
        a = self.a
        t = vT + 2
        ESD, EX = self.ESD, self.EX
        a("v_and_b32 v%d, 15, v1" % t)
        a("v_lshrrev_b32 v%d, 4, v1" % (t + 1))
        a("s_lshl_b32 s%d, s%d, 2" % (sT1, sMB))
        a("s_add_u32 s%d, s%d, s%d" % (sT1, sT1, sSL))
        a("s_lshl_b32 s%d, s%d, 6" % (sW2B, sT1))
        a("s_add_u32 s%d, s%d, 0x%x" % (sW2B, sW2B, WS_ST))
        a("v_lshlrev_b32 v%d, 2, v%d" % (ESD + 3, t))
        a("v_lshlrev_b32 v%d, 10, v%d" % (t + 2, t))
        a("v_lshl_add_u32 v%d, v%d, 4, v%d" % (ESD + 2, t + 1, t + 2))
        a("s_lshl_b32 s%d, s%d, 14" % (sT1, sT1))
        a("s_lshl_b32 s%d, s%d, 7" % (sT0, sDB))
        a("s_add_u32 s%d, s%d, s%d" % (sW2Z, sT1, sT0))
        self.vmem("buffer_load_dwordx4 v[%d:%d], v%d, s[%d:%d], s%d offen" % (EX, EX + 3, ESD + 2, SRD_X, SRD_X + 3, sW2Z), "ex")
        self.vmem("buffer_load_dwordx4 v[%d:%d], v%d, s[%d:%d], s%d offen offset:64" % (EX + 4, EX + 7, ESD + 2, SRD_X, SRD_X + 3, sW2Z), "ex")
    CA = 96
    def conv_addr(self):
        a = self.a
        t = vT + 2
        AA = self.CA
        a("s_lshr_b32 s%d, s%d, 1" % (sSOX, sSL))
        a("s_and_b32 s%d, s%d, 1" % (sSOW, sSL))
        a("v_and_b32 v%d, 15, v1" % t)
        a("v_lshrrev_b32 v%d, 4, v1" % (t + 1))
        a("v_and_b32 v%d, 1, v1" % (t + 2))
        a("v_mul_u32_u24 v%d, %d, v%d" % (t + 2, 4160 - 2, t + 2))
        a("v_lshl_add_u32 v%d, v%d, 1, v%d" % (t + 2, t, t + 2))
        a("v_lshlrev_b32 v%d, 4, v%d" % (t + 3, t + 1))
        a("v_sub_u32 v%d, v%d, v%d" % (t + 2, t + 3, t + 2))
        a("s_mul_i32 s%d, s%d, 8320" % (sT0, sSOX))
        a("s_lshl_b32 s%d, s%d, 8" % (sT1, sSOW))
        a("s_sub_u32 s%d, s%d, s%d" % (sT0, sT0, sT1))
        a("s_add_u32 s%d, s%d, %d" % (sT0, sT0, L_K + 4160 + 4060 - 64 - 512))
        a("v_add_u32 v%d, s%d, v%d" % (AA, sT0, t + 2))
        for ap in range(1, 4): a("v_subrev_u32 v%d, %d, v%d" % (AA + ap, 1024 * ap, AA))
        a("v_lshl_add_u32 v%d, v%d, 5, v%d" % (t + 2, t, t + 3))
        a("s_mul_i32 s%d, s%d, 4608" % (sT0, sSOX))
        a("s_sub_u32 s%d, s%d, s%d" % (sT1, sT0, sT1))
        a("s_add_u32 s%d, s%d, %d" % (sT1, sT1, L_U + 512 - 32 - 64))
        a("v_add_u32 v%d, s%d, v%d" % (AA + 4, sT1, t + 2))
        a("s_lshl_b32 s%d, s%d, 12" % (sT1, sSL))
        a("s_add_u32 s%d, s%d, %d" % (sT1, sT1, L_YX))
        a("v_lshl_add_u32 v%d, v1, 4, s%d" % (AA + 5, sT1))
        a("s_xor_b32 s%d, s%d, 1" % (sT1, sSL))
        a("s_lshl_b32 s%d, s%d, 12" % (sT1, sT1))
        a("s_add_u32 s%d, s%d, %d" % (sT1, sT1, L_YX))
        a("v_lshl_add_u32 v%d, v1, 4, s%d" % (AA + 6, sT1))
        a("v_lshlrev_b32 v%d, 5, v%d" % (AA + 7, t))
        a("v_lshl_add_u32 v%d, v%d, 3, v%d" % (AA + 7, t + 1, AA + 7))
        a("s_lshl_b32 s%d, s%d, 11" % (sT1, sSOW))
        a("s_add_u32 s%d, s%d, s%d" % (sT0, sT0, sT1))
        a("s_add_u32 s%d, s%d, %d" % (sT0, sT0, L_U + 512))
        a("v_add_u32 v%d, s%d, v%d" % (AA + 8, sT0, AA + 7))
        a("v_lshl_add_u32 v%d, v1, 4, s%d" % (AA + 9, sT0))
        a("s_lshl_b32 s%d, s%d, 2" % (sT0, sSOX))
        a("s_add_u32 s%d, s%d, %d" % (sT0, sT0, L_CNT + 4))
        a("v_mov_b32 v%d, s%d" % (AA + 10, sT0))
        a("v_lshrrev_b32 v%d, 3, v1" % (t + 2))
        a("v_and_b32 v%d, 7, v1" % (t + 3))
        a("v_lshlrev_b32 v%d, 4, v%d" % (t + 3, t + 3))
        a("v_lshl_add_u32 v%d, v%d, 13, v%d" % (AA + 7, t + 2, t + 3))
        a("v_add_u32 v%d, 65536, v%d" % (AA + 11, AA + 7))
        a("s_lshl_b32 s%d, s2, 1" % sT0)
        a("s_add_u32 s%d, s%d, s%d" % (sT0, sT0, sSOX))
        a("s_lshr_b32 s%d, s%d, 6" % (sLDT, sT0))
        a("s_lshl_b32 s%d, s%d, 1" % (sLDT, sLDT))
        a("s_add_u32 s%d, s%d, s%d" % (sLDT, sLDT, sSOW))
        a("s_lshl_b32 s%d, s%d, 10" % (sLDT, sLDT))
        a("s_and_b32 s%d, s%d, 63" % (sT1, sT0))
        a("s_add_u32 s%d, s%d, s%d" % (sLDT, sLDT, sT1))
        a("s_lshl_b32 s%d, s%d, 7" % (sLDT, sLDT))
        a("s_add_u32 s%d, s%d, 0x%x" % (sLDT, sLDT, WS_YT))
        a("s_lshl_b32 s%d, s%d, 9" % (sT1, sSOW))
        a("s_add_u32 s%d, s%d, s%d" % (sT0, sT0, sT1))
        a("s_lshr_b32 s%d, s%d, 4" % (sT1, sT0))
        a("s_lshl_b32 s%d, s%d, 7" % (sT1, sT1))
        a("s_and_b32 s%d, s%d, 15" % (sT0, sT0))
        a("s_lshl_b32 s%d, s%d, 2" % (sT0, sT0))
        a("s_add_u32 s%d, s%d, s%d" % (sT0, sT0, sT1))
        a("s_add_u32 s%d, s%d, 0x%x" % (sFLG, sT0, WS_FY))
    def conv(self):
        a = self.a
        a.c("==== causal convolution, Hankel(K) x windows(u); the two waves of a channel split the taps by residue class")
        YA, AA = 64, self.CA
        self.ts()
        a("s_setprio %d" % self.o["cprio"])
        for k in range(32): a("v_mov_b32 v%d, 0" % (YA + k))
        a("s_mov_b32 s%d, 0" % sT0)
        pairs = [(aa, b) for aa in range(8) for b in range(7 - aa, -1, -1)]
        def reads(buf):
            FA_, FB_ = 128 + 64 * buf, 160 + 64 * buf
            out, seenA, seenB = [], set(), set()
            for aa, b in pairs:
                if aa not in seenA:
                    seenA.add(aa)
                    o = 16 * (1 - buf) + 128 * (1 - (aa & 1))
                    out.append(("ds_read2_b32 v[%d:%d], v%d offset0:%d offset1:%d" % (FA_ + 4 * aa, FA_ + 4 * aa + 1, AA + (aa >> 1), o, o + 1), "x"))
                    out.append(("ds_read2_b32 v[%d:%d], v%d offset0:%d offset1:%d" % (FA_ + 4 * aa + 2, FA_ + 4 * aa + 3, AA + (aa >> 1), o + 2, o + 3), "A%d_%d" % (buf, aa)))
                if b not in seenB:
                    seenB.add(b)
                    out.append(("ds_read_b128 v[%d:%d], v%d offset:%d" % (FB_ + 4 * b, FB_ + 4 * b + 3, AA + 4, 512 * b + 64 * (1 - buf)), "B%d_%d" % (buf, b)))
            return out
        for r, tg in reads(0): self.dsop(r, tg)
        L = a.newlabel("cloop")
        a.label(L)
        for buf in range(2):
            FA_, FB_ = 128 + 64 * buf, 160 + 64 * buf
            nxt = reads(1 - buf)
            if buf == 1:
                for k in range(5): a("v_subrev_u32 v%d, 128, v%d" % (AA + k, AA + k))
            for n, (aa, b) in enumerate(pairs):
                self.wait_ds("A%d_%d" % (buf, aa)); self.wait_ds("B%d_%d" % (buf, b))
                D = YA + 4 * (aa + b)
                a("v_mfma_f32_16x16x32_bf16 v[%d:%d], v[%d:%d], v[%d:%d], v[%d:%d]" % (D, D + 3, FA_ + 4 * aa, FA_ + 4 * aa + 3, FB_ + 4 * b, FB_ + 4 * b + 3, D, D + 3))
                if n >= 4 and nxt:
                    r, tg = nxt.pop(0); self.dsop(r, tg)
            assert not nxt
        a("s_add_u32 s%d, s%d, 1" % (sT0, sT0))
        a("s_cmp_lt_u32 s%d, 2" % sT0)
        a("s_cbranch_scc1 %s" % L)
        a("s_setprio %d" % self.o["sprio"])
        U, W = 192, 200
        for k in range(4): self.dsop("ds_read_b64 v[%d:%d], v%d offset:%d" % (U + 2 * k, U + 2 * k + 1, AA + 8, 512 * k), "sk")
        self.ts()
        Lh, Lj = a.newlabel("yhi"), a.newlabel("yj")
        a("s_cmp_lg_u32 s%d, 0" % sSOW)
        a("s_cbranch_scc1 %s" % Lh)
        for k in range(4): a("ds_write_b128 v%d, v[%d:%d] offset:%d" % (AA + 5, YA + 16 + 4 * k, YA + 19 + 4 * k, 1024 * k))
        a("s_branch %s" % Lj)
        a.label(Lh)
        for k in range(4): a("ds_write_b128 v%d, v[%d:%d] offset:%d" % (AA + 5, YA + 4 * k, YA + 3 + 4 * k, 1024 * k))
        a("s_nop 0")
        for k in range(16): a("v_mov_b32 v%d, v%d" % (YA + k, YA + 16 + k))
        a.label(Lj)
        def skip_term():
            for k in range(4):
                D = YA + 4 * k
                for q in range(2):
                    a("v_lshlrev_b32 v%d, 16, v%d\nv_and_b32 v%d, 0xffff0000, v%d" % (W + 2 * q, U + 2 * k + q, W + 2 * q + 1, U + 2 * k + q))
                for q in range(4): a("v_fmac_f32 v%d, s%d, v%d" % (D + q, sDSK, W + q))
        self.sbar_arrive(AA + 10)
        a("s_waitcnt lgkmcnt(5)")
        skip_term()
        self.lds_wait(AA + 10, 2, behind=["ds_read_b128 v[%d:%d], v%d offset:%d" % (128 + 4 * k, 131 + 4 * k, AA + 6, 1024 * k) for k in range(4)])
        for k in range(4):
            D = YA + 4 * k
            for q in range(4): a("v_add_f32 v%d, v%d, v%d" % (D + q, D + q, 128 + 4 * k + q))
            Q = W + 4 + 2 * k
            a("v_cvt_pk_bf16_f32 v%d, v%d, v%d\nv_cvt_pk_bf16_f32 v%d, v%d, v%d" % (Q, D, D + 1, Q + 1, D + 2, D + 3))
            self.dsop("ds_write_b64 v%d, v[%d:%d] offset:%d" % (AA + 8, Q, Q + 1, 512 * k))
        for k in range(2): self.dsop("ds_read_b128 v[%d:%d], v%d offset:%d" % (YA + 4 * k, YA + 4 * k + 3, AA + 9, 1024 * k), "yb%d" % k)
        for k in range(2):
            self.wait_ds("yb%d" % k)
            self.vmem("buffer_store_dwordx4 v[%d:%d], v%d, s[%d:%d], s%d offen sc1" % (YA + 4 * k, YA + 4 * k + 3, AA + 7 + 4 * k, SRD_WS, SRD_WS + 3, sLDT), "y")
            if self.o.get("noyst"): a.lines[-1] = "s_nop 0"
    def s_final(self):
        a = self.a
        t = vT
        a.c("==== output: x + y + rstd * (sum of the four partial products)")
        EX, ESD = self.EX, self.ESD
        EY, AD, T1, W = 136, 148, 160, 176
        a("v_and_b32 v%d, 15, v1" % t)
        a("v_lshrrev_b32 v%d, 4, v1" % (t + 1))
        if self.o.get("fine"): self.ts()
        self.wait_vm("y")
        if not self.o.get("noyflag"): self.publish(sFLG, t + 2)
        self.ts()
        a("s_lshr_b32 s%d, s%d, 4" % (sT3, sMB))
        a("s_lshl_b32 s%d, s%d, 3" % (sT3, sT3))
        a("s_add_u32 s%d, s%d, s%d" % (sT3, sT3, sDB))
        a("s_lshl_b32 s%d, s%d, 2" % (sT3, sT3))
        a("s_add_u32 s%d, s%d, s%d" % (sT3, sT3, sSL))
        a("s_lshl_b32 s%d, s%d, 7" % (sT3, sT3))
        a("s_add_u32 s%d, s%d, 0x%x" % (sT3, sT3, WS_FY))
        a("v_lshlrev_b32 v%d, 2, v%d" % (t + 2, t))
        a("v_lshlrev_b32 v%d, 1, v%d" % (t + 3, t + 1))
        a("v_xor_b32 v%d, v%d, v%d" % (t + 3, t + 3, t))
        a("v_lshlrev_b32 v%d, 4, v%d" % (t + 3, t + 3))
        a("v_lshl_add_u32 v%d, v%d, 8, v%d" % (t + 3, t, t + 3))
        a("s_and_b32 s%d, s%d, 1" % (sT0, sSL))
        a("s_lshl_b32 s%d, s%d, 12" % (sT0, sT0))
        a("s_cmp_ge_u32 s%d, 2" % sSL)
        a("s_cselect_b32 s%d, %d, 0" % (sT1, W2BASE[1]))
        a("s_add_u32 s%d, s%d, s%d" % (sT0, sT0, sT1))
        a("v_add_u32 v%d, s%d, v%d" % (AD, sT0, t + 3))
        a("v_xor_b32 v%d, 16, v%d\nv_xor_b32 v%d, 128, v%d\nv_xor_b32 v%d, 144, v%d" % (AD + 1, AD, AD + 2, AD, AD + 3, AD))
        a("v_bfe_u32 v%d, v1, 2, 2" % (t + 3))
        a("v_lshl_add_u32 v%d, v%d, 3, v%d" % (t + 3, t + 1, t + 3))
        a("v_mul_u32_u24 v%d, 144, v%d" % (t + 3, t + 3))
        a("v_and_b32 v%d, 3, v1" % (t + 4))
        a("v_lshl_add_u32 v%d, v%d, 3, v%d" % (t + 3, t + 4, t + 3))
        a("s_lshl_b32 s%d, s%d, 5" % (sT0, sSL))
        a("s_add_u32 s%d, s%d, %d" % (sT0, sT0, L_YS))
        a("v_add_u32 v%d, s%d, v%d" % (AD + 4, sT0, t + 3))
        a("v_lshrrev_b32 v%d, 3, v1" % (t + 3))
        a("v_and_b32 v%d, 7, v1" % (t + 4))
        a("v_lshlrev_b32 v%d, 4, v%d" % (t + 4, t + 4))
        a("v_lshlrev_b32 v%d, 4, v1" % (AD + 5))
        a("v_mul_u32_u24 v%d, 144, v%d" % (t + 3, t + 3))
        a("s_mul_i32 s%d, s%d, %d" % (sT0, sSL, 16 * 144))
        a("s_add_u32 s%d, s%d, %d" % (sT0, sT0, L_YS))
        a("v_add3_u32 v%d, v%d, v%d, s%d" % (AD + 6, t + 3, t + 4, sT0))
        a("s_lshl_b32 s%d, s%d, 5" % (sT0, sDB))
        a("s_add_u32 s%d, s%d, s%d" % (sT0, sT0, sMB))
        a("s_lshl_b32 s%d, s%d, 2" % (sT0, sT0))
        a("s_add_u32 s%d, s%d, s%d" % (sT0, sT0, sSL))
        a("s_lshl_b32 s%d, s%d, 11" % (sT0, sT0))
        a("s_add_u32 s%d, s%d, 0x%x" % (sSOW, sT0, WS_YT))
        self.wait_vm("ex")
        a("v_and_b32 v%d, 0xffff0000, v%d" % (ESD, ESD))
        a("v_rcp_f32 v%d, v%d" % (ESD, ESD))
        for k in range(8):
            a("v_lshlrev_b32 v%d, 16, v%d\nv_and_b32 v%d, 0xffff0000, v%d" % (T1 + 2 * k, EX + k, T1 + 2 * k + 1, EX + k))
        if self.o["mark"] >= 0: self.lds_wait(22, 1, off=12, sleep=2)
        if not self.o.get("nofy"): self.poll("buffer_load_dword v%d, v%d, s[%d:%d], s%d offen sc1" % (vFL, t + 2, SRD_WS, SRD_WS + 3, sT3), sleep=self.o.get("ysleep"))
        self.ts()
        self.vmem("buffer_load_dwordx4 v[%d:%d], v%d, s[%d:%d], s%d offen sc1" % (EY, EY + 3, AD + 5, SRD_WS, SRD_WS + 3, sSOW), "ey")
        self.vmem("buffer_load_dwordx4 v[%d:%d], v%d, s[%d:%d], s%d offen offset:1024 sc1" % (EY + 4, EY + 7, AD + 5, SRD_WS, SRD_WS + 3, sSOW), "ey")
        if self.o.get("noyld"): a.lines[-1] = "s_nop 0"; a.lines[-2] = "s_nop 0"
        self.wait_vm("ey")
        if self.o.get("fine"): self.ts()
        self.dsop("ds_write_b128 v%d, v[%d:%d]" % (AD + 6, EY, EY + 3))
        self.dsop("ds_write_b128 v%d, v[%d:%d] offset:%d" % (AD + 6, EY + 4, EY + 7, 8 * 144))
        EY2 = 184
        self.sbar(behind=["ds_read_b64_tr_b16 v[%d:%d], v%d offset:%d" % (EY2 + 2 * j, EY2 + 2 * j + 1, AD + 4, ((j & 1) * 4 + (j >> 1) * 32) * 144) for j in range(4)])
        EY = EY2
        for k in range(8):
            a("v_lshlrev_b32 v%d, 16, v%d\nv_and_b32 v%d, 0xffff0000, v%d" % (W, EY + k, W + 1, EY + k))
            a("v_pk_add_f32 v[%d:%d], v[%d:%d], v[%d:%d]" % (T1 + 2 * k, T1 + 2 * k + 1, T1 + 2 * k, T1 + 2 * k + 1, W, W + 1))
        self.ts()
        a("s_barrier")
        self.ts()
        for P in range(4):
            for j in range(4):
                self.dsop("ds_read_b128 v[%d:%d], v%d offset:%d" % (vACC + 16 * P + 4 * j, vACC + 16 * P + 4 * j + 3, AD + j, 8192 * P), "p%d" % P)
        for P in range(1, 4):
            self.wait_ds("p%d" % P)
            for k in range(8):
                a("v_pk_add_f32 v[%d:%d], v[%d:%d], v[%d:%d]" % (vACC + 2 * k, vACC + 2 * k + 1, vACC + 2 * k, vACC + 2 * k + 1, vACC + 16 * P + 2 * k, vACC + 16 * P + 2 * k + 1))
        for h in range(2):
            for k in range(4 * h, 4 * h + 4):
                a("v_pk_fma_f32 v[%d:%d], v[%d:%d], v[%d:%d], v[%d:%d] op_sel_hi:[1,0,1]" % (T1 + 2 * k, T1 + 2 * k + 1, vACC + 2 * k, vACC + 2 * k + 1, ESD, ESD + 1, T1 + 2 * k, T1 + 2 * k + 1))
            for k in range(4 * h, 4 * h + 4):
                a("v_cvt_pk_bf16_f32 v%d, v%d, v%d" % (EX + k, T1 + 2 * k, T1 + 2 * k + 1))
            self.vmem("buffer_store_dwordx4 v[%d:%d], v%d, s[%d:%d], s%d offen offset:%d" % (EX + 4 * h, EX + 4 * h + 3, ESD + 2, SRD_OUT, SRD_OUT + 3, sW2Z, 64 * h))
            a.lines[-1] += ["", " nt", " sc1", " sc0 sc1"][self.o.get("ofl", 0)]

    def dump(self, wave):
        a = self.a
        if not self.diag: return
        a("s_waitcnt vmcnt(0)")
        self.ts()
        a("s_memrealtime s[%d:%d]" % (sM0, sM1)); a("s_waitcnt lgkmcnt(0)"); a("s_mov_b32 s98, s%d" % sM0)
        if self.o["hold"] and wave:
            a.label("L_HOLD")
            a("s_memrealtime s[%d:%d]" % (sM0, sM1)); a("s_waitcnt lgkmcnt(0)")
            a("s_sub_u32 s%d, s%d, s99" % (sT0, sM0))
            a("s_cmp_lt_u32 s%d, %d" % (sT0, self.o["hold"])); a("s_cbranch_scc1 L_HOLD")
        a("s_cmp_lg_u32 s%d, %d" % (sWAVE, wave)); a("s_cbranch_scc1 L_END")
        a("s_lshl_b32 s%d, s2, 8" % sT0); a("s_add_u32 s%d, s%d, 0x%x" % (sT0, sT0, WS_TS + (128 if wave else 0)))
        a("s_mov_b64 exec, 1")
        for k in range(20):
            a("v_mov_b32 v2, s%d" % (sTS + k))
            a("buffer_store_dword v2, off, s[%d:%d], s%d offset:%d" % (SRD_WS, SRD_WS + 3, sT0, 4 * k))
        a("s_waitcnt vmcnt(0)")

    def build(self):
        a = self.a
        if self.diag:
            for k in range(20): a("s_mov_b32 s%d, 0" % (sTS + k))
        self.setup()
        nts0 = self.nts
        if self.o["fprio"]: a("s_setprio %d" % self.o["fprio"])
        vm_s = list(self.vm)
        self.srds(["x"])
        a("s_cmp_eq_u32 s%d, 7" % sDB)
        a("s_cbranch_scc1 L_SPARE0")
        self.srds(["w1"])
        for f in self.g1_dma_ops(0, "c0"): f()
        self.chunk_soffsets()
        for f in self.g1_dma_ops(1, "c1"): f()
        a.label("L_FCOMMON")
        self.srds(["ws", "dbg", "w2"])
        self.w2_setup()
        self.g1_addr()
        self.f_vrows()
        a("s_cmp_eq_u32 s%d, 7" % sDB)
        a("s_cbranch_scc1 L_SPARE")
        self.wait_ds()
        if self.o["bv"]: a("s_barrier")
        self.gemm1()
        self.ts()
        self.g1_epilogue()
        self.ts()
        self.gemm2("L_JOIN")
        self.dump(0)
        a("s_endpgm")
        a.label("L_SPARE0")
        self.vm, self.ds = list(vm_s), []
        self.spare_loads()
        a("s_branch L_FCOMMON")
        a.label("L_SPARE")
        self.w2next = 0
        self.nts = nts0
        self.spare_path()
        a("s_branch L_JOIN")
        self.vm, self.ds, self.nts = list(vm_s), [], nts0
        self.s_entry()
        self.kgen()
        if self.o.get("nos"):
            while self.nb < 9: self.s_bar_maybe(force=True)
            a("s_barrier"); self.dump(4); a("s_endpgm")
            self.diag = False
        self.stage_u()
        self.conv()
        self.s_final()
        self.dump(4)
        a.label("L_END")
        a("s_endpgm")
        a.label("L_CODE_END")
        return a

def full_text(a, header=""):
    return header + """; @launch grid=(256,1,1) block=(%d,1,1) lds=%d
.amdgcn_target "amdgcn-amd-amdhsa--gfx950"
.text
.globl %s
.p2align 8
.type %s,@function
%s:
""" % (BLOCK, LDS_BYTES, NAME, NAME, NAME) + a.text() + """.section .rodata,"a"
.p2align 6
.amdhsa_kernel %s
  .amdhsa_next_free_vgpr 256
  .amdhsa_next_free_sgpr 102
  .amdhsa_accum_offset 256
  .amdhsa_group_segment_fixed_size 0
  .amdhsa_kernarg_size 120
  .amdhsa_user_sgpr_count 2
  .amdhsa_user_sgpr_kernarg_segment_ptr 1
  .amdhsa_system_sgpr_workgroup_id_x 1
  .amdhsa_float_denorm_mode_32 3
.end_amdhsa_kernel
""" % NAME

if __name__ == "__main__":
    import argparse
    HEADER = open("parallel_sum__ssm_conv_s4__dense_activation_relu__prompt.s.ref").read().split("; Override launch")[0]
    ap = argparse.ArgumentParser()
    ap.add_argument("-o", default="k2.s")
    ap.add_argument("--diag", action="store_true")
    ap.add_argument("--opt", default="")
    args = ap.parse_args()
    opt = {}
    for kv in args.opt.split(","):
        if kv: k, v = kv.split("="); opt[k] = int(v)
    g = Gen(diag=args.diag, opt=opt)
    a = g.build()
    check_hazards(a.lines)
    open(args.o, "w").write(full_text(a, HEADER))
    print("wrote", args.o, "instructions:", sum(1 for l in a.lines if parse(l)))
```
